```python
import torch

def _softmax(x, axis=-1):
    return torch.softmax(x, dim=axis)
def _gelu(x):
    return torch.nn.functional.gelu(x, approximate="tanh")
def _silu(x):
    return torch.nn.functional.silu(x)
def _sigmoid(x):
    return torch.sigmoid(x)
def _layernorm(x, axis=-1, eps=1e-5):
    m = x.mean(dim=axis, keepdim=True)
    v = x.var(dim=axis, keepdim=True, unbiased=False)
    return (x - m) / torch.sqrt(v + eps)
def _scatter_add(tgt, idx, src, axis=0):
    return tgt.clone().index_add_(axis, idx, src)
def _segment_sum(src, seg, n):
    out = torch.zeros((n,) + src.shape[1:], dtype=src.dtype)
    return out.index_add_(0, seg, src)
def _pad(x, pw):
    flat = tuple(v for pair in reversed(pw) for v in pair)
    return torch.nn.functional.pad(x, flat)

kernel_name = 'parallel_sum__sliding_block_cached__dense_activation_gelu__decode'

def setup_inputs():

    _w = (lambda a: (lambda t: t.to(torch.bfloat16) if t.is_floating_point() else t)(torch.as_tensor(a)))
    def _A_setup():
        B, Sq, D = 1, 1, 448
        Hq, Hkv, Sk, Dh = 16, 8, 65536, 256
        assert Hq % Hkv == 0, (Hq, Hkv)
        return {
            "x": _w((lambda *s: torch.randn(*s, dtype=torch.bfloat16) * 0.05)(B, Sq, D)),
            "k_cache": _w((lambda *s: torch.randn(*s, dtype=torch.bfloat16) * 3.2)(B, Hkv, Sk, Dh)),
            "v_cache": _w((lambda *s: torch.randn(*s, dtype=torch.bfloat16) * 0.8)(B, Hkv, Sk, Dh)),
            "wq": _w((lambda *s: torch.randn(*s, dtype=torch.bfloat16) * 3.2)(D, Hq * Dh) * (D ** -0.5)),
            "wo": _w((lambda *s: torch.randn(*s, dtype=torch.bfloat16) * 0.8)(Hq * Dh, D) * ((Hq * Dh) ** -0.5)),
        }
    _A_in = _A_setup()

    def _B_setup():
        B, S, D, F = 1, 1, 448, 1792
        return {
            "x": _w((lambda *s: torch.randn(*s, dtype=torch.bfloat16) * 0.05)(B, S, D)),
            "w1": _w((lambda *s: torch.randn(*s, dtype=torch.bfloat16) * 3.2)(D, F) * (D ** -0.5)),
            "b1": _w((lambda *s: torch.randn(*s, dtype=torch.bfloat16) * 3.2)(F) * 0.01),
            "w2": _w((lambda *s: torch.randn(*s, dtype=torch.bfloat16) * 0.2)(F, D) * (F ** -0.5)),
            "b2": _w((lambda *s: torch.randn(*s, dtype=torch.bfloat16) * 0.2)(D) * 0.01),
        }
    _B_in = _B_setup()

    return {
        "A_x": _A_in["x"],
        "A_k_cache": _A_in["k_cache"],
        "A_v_cache": _A_in["v_cache"],
        "A_wq": _A_in["wq"],
        "A_wo": _A_in["wo"],
        "B_x": _B_in["x"],
        "B_w1": _B_in["w1"],
        "B_b1": _B_in["b1"],
        "B_w2": _B_in["w2"],
        "B_b2": _B_in["b2"],
    }

def reference(A_x, A_k_cache, A_v_cache, A_wq, A_wo, B_x, B_w1, B_b1, B_w2, B_b2):
    def _A_ref(x, k_cache, v_cache, wq, wo):
        B, Sq, D = x.shape
        Hq, Dh = 16, 256
        Hkv, Sk = k_cache.shape[1], k_cache.shape[2]
        W = min(4096, max(256, Sk // 4))
        rep = Hq // Hkv
        q = (lambda x, *d: x.permute(*d))((x @ wq).reshape(B, Sq, Hq, Dh), 0, 2, 1, 3)
        k = (lambda x, n, axis: torch.repeat_interleave(x, n, dim=axis))(k_cache[:, :, Sk - W:, :], rep, axis=1)
        v = (lambda x, n, axis: torch.repeat_interleave(x, n, dim=axis))(v_cache[:, :, Sk - W:, :], rep, axis=1)
        scores = torch.einsum("bhqd,bhkd->bhqk", q, k) * (Dh ** -0.5)
        p = _softmax(scores, axis=-1)
        o = torch.einsum("bhqk,bhkd->bhqd", p, v)
        return (lambda x, *d: x.permute(*d))(o, 0, 2, 1, 3).reshape(B, Sq, Hq * Dh) @ wo

    def _B_ref(x, w1, b1, w2, b2):
        h = torch.einsum("bsd,df->bsf", x, w1) + b1
        h = _gelu(h)
        return torch.einsum("bsf,fd->bsd", h, w2) + b2

    x = A_x
    xn = _layernorm(x, axis=-1)
    return x + _A_ref(xn, A_k_cache, A_v_cache, A_wq, A_wo) + _B_ref(xn, B_w1, B_b1, B_w2, B_b2)
```

```python
import sys, os, struct
NAME = "parallel_sum__sliding_block_cached__dense_activation_gelu__decode"
PROFILE = int(sys.argv[2]) if len(sys.argv) > 2 else 0
OPT = dict(kv.split("=") for kv in os.environ.get("GOPT", "").split(",") if kv)
def opt(k, d): return type(d)(OPT.get(k, d))
QDELAY = opt("qdelay", 4)
W1LATE = opt("w1late", 0)

out = []
def e(s=""): out.append(s)
def lab(s): out.append(s + ":")
_uid = [0]
def uid(p):
    _uid[0] += 1
    return f"L_{p}_{_uid[0]}"
def f2h(x): return "0x%08x" % struct.unpack("<I", struct.pack("<f", x))[0]

F_KISS, F_VISS, F_QRDY, F_SDONE, F_XN, F_CLR = 0, 4, 8, 12, 16, 20
L_XN = 256
L_Q = 1280
L_SC = 2304
L_WL = 4352
L_OL = 4480
L_HL = 4736
LDS_BYTES = 8192
W_EPOCH = 0
W_READY = 0x1000
W_ML = 0x2000
W_QMB = 0x4000
W_HMB = 0x20000
W_OP = 0x40000
W_AP = 0xC0000
W_PROF = 0x4000000
WS_SIZE = 0x8000000
SPIN_LIMIT = 200000

NWAVES = 11
sH, sJ, sXR, sWV = "s4", "s5", "s6", "s3"
sTAG = "s7"
sT0, sT1, sT2, sT3 = "s8", "s9", "s10", "s11"
sCNT = "s12"
sSELLO, sSELHI = "s13", "s14"
sFAST = "s15"
pX, pK, pV, pWQ, pWO, pW1, pB1 = 16, 18, 20, 22, 24, 28, 30
pW2, pB2, pOUT, pDBG, pWS = 32, 34, 36, 38, 40
SRD_A, SRD_B, SRD_WS, SRD_C = 44, 48, 52, 56
sSTAMP = 60
sX7, sXS, sXW = "s76", "s77", "s78"
sU0, sU1, sU2, sU3 = "s80", "s81", "s82", "s83"
sU4, sU5 = "s84", "s85"

def srd(n): return f"s[{n}:{n+3}]"

def mk_srd(n, p, size, add_lo=None):
    if add_lo is None:
        e(f"s_mov_b32 s{n}, s{p}")
        e(f"s_and_b32 s{n+1}, s{p+1}, 0xffff")
    else:
        e(f"s_add_u32 s{n}, s{p}, {add_lo}")
        e(f"s_addc_u32 s{n+1}, s{p+1}, 0")
        e(f"s_and_b32 s{n+1}, s{n+1}, 0xffff")
    e(f"s_mov_b32 s{n+2}, {size}")
    e(f"s_mov_b32 s{n+3}, 0x20000")

def stamp(k):
    if PROFILE: e(f"s_memrealtime s[{sSTAMP+2*k}:{sSTAMP+2*k+1}]")

def stamps_out(n):
    if not PROFILE: return
    e("s_waitcnt lgkmcnt(0)")
    e("s_mov_b64 exec, 1")
    e(f"s_lshl_b32 {sT0}, s2, 4")
    e(f"s_add_u32 {sT0}, {sT0}, {sWV}")
    e(f"s_lshl_b32 {sT0}, {sT0}, 6")
    e(f"s_add_u32 {sT0}, {sT0}, {W_PROF}")
    e(f"v_mov_b32 v1, {sT0}")
    for k in range(n):
        e(f"v_mov_b32 v2, s{sSTAMP+2*k}")
        e(f"v_mov_b32 v3, s{sSTAMP+2*k+1}")
        e(f"buffer_store_dwordx2 v[2:3], v1, {srd(SRD_WS)}, 0 offen offset:{8*k}")
        e("s_nop 1")
    e("s_waitcnt vmcnt(0)")

def lds_wait(flag, val, vz, vt, sleep=1):
    L = uid("lw"); D = uid("lwd")
    e(f"s_mov_b32 {sCNT}, 0")
    lab(L)
    e(f"ds_read_b32 v{vt}, v{vz} offset:{flag}")
    e("s_waitcnt lgkmcnt(0)")
    e(f"v_readfirstlane_b32 {sT0}, v{vt}")
    e(f"s_cmp_ge_u32 {sT0}, {val}")
    e(f"s_cbranch_scc1 {D}")
    e(f"s_sleep {sleep}")
    e(f"s_add_u32 {sCNT}, {sCNT}, 1")
    e(f"s_cmp_lt_u32 {sCNT}, {SPIN_LIMIT}")
    e(f"s_cbranch_scc1 {L}")
    lab(D)

def lds_signal(flag, vz, vone):
    e("s_mov_b64 exec, 1")
    e(f"ds_add_u32 v{vz}, v{vone} offset:{flag}")
    e("s_mov_b64 exec, -1")

def bf16r(dst, src):
    e(f"v_cvt_pk_bf16_f32 v{dst}, v{src}, v{src}")
    e(f"v_lshlrev_b32 v{dst}, 16, v{dst}")

def allreduce(op, a, t):
    for r in (8, 4, 2, 1):
        e("s_nop 1")
        e(f"{op}_dpp v{a}, v{a}, v{a} row_ror:{r} row_mask:0xf bank_mask:0xf")
    e(f"v_mov_b32 v{t}, v{a}")
    e("s_nop 1")
    e(f"v_permlane16_swap_b32 v{a}, v{t}")
    e("s_nop 1")
    e(f"{op} v{a}, v{a}, v{t}")
    e(f"v_mov_b32 v{t}, v{a}")
    e("s_nop 1")
    e(f"v_permlane32_swap_b32 v{a}, v{t}")
    e("s_nop 1")
    e(f"{op} v{a}, v{a}, v{t}")

def common_scalars():
    e(f"s_lshr_b32 {sT0}, {sJ}, 2")
    e(f"s_mul_i32 {sT1}, {sH}, 5")
    e(f"s_add_u32 {sT0}, {sT0}, {sT1}")
    e(f"s_and_b32 {sT1}, {sJ}, 3")
    e(f"s_lshl_b32 {sT1}, {sT1}, 2")
    e(f"s_add_u32 {sT0}, {sT0}, {sT1}")
    e(f"s_and_b32 {sXR}, {sT0}, 15")
    e(f"s_and_b32 {sX7}, {sXR}, 7")
    e(f"s_lshr_b32 {sT0}, {sXR}, 2")
    e(f"s_lshl_b32 {sT0}, {sT0}, 3")
    e(f"s_or_b32 {sX7}, {sX7}, {sT0}")
    e(f"s_lshr_b32 {sT0}, {sXR}, 3")
    e(f"s_lshl_b32 {sT0}, {sT0}, 6")
    e(f"s_or_b32 {sX7}, {sX7}, {sT0}")
    e(f"s_and_b32 {sXS}, {sXR}, 3")
    e(f"s_add_u32 {sT0}, {sJ}, {sH}")
    e(f"s_and_b32 {sXW}, {sT0}, 3")
    e(f"s_mov_b32 {sSELLO}, 0x05040100")
    e(f"s_mov_b32 {sSELHI}, 0x07060302")

def kv_srd(n, p):
    e(f"s_lshl_b32 {sT0}, {sH}, 25")
    e(f"s_lshl_b32 {sT1}, {sJ}, 16")
    e(f"s_add_u32 {sT0}, {sT0}, {sT1}")
    e(f"s_add_u32 {sT0}, {sT0}, 0x1E00000")
    mk_srd(n, p, 65536, add_lo=sT0)

def transpose_set(src, dst, waits=None):
    for kp in range(4):
        if waits is not None:
            e(f"s_waitcnt vmcnt({waits[kp]})")
        a = src+8*kp; b = a+4
        for d in range(4):
            e(f"v_perm_b32 v{dst+4*(2*d)+kp}, v{b+d}, v{a+d}, {sSELLO}")
            e(f"v_perm_b32 v{dst+4*(2*d+1)+kp}, v{b+d}, v{a+d}, {sSELHI}")

def mfma_set(D, A, B, first):
    for rp in range(8):
        c = "0" if first else f"v[{D+4*rp}:{D+4*rp+3}]"
        e(f"v_mfma_f32_16x16x32_bf16 v[{D+4*rp}:{D+4*rp+3}], v[{A}:{A+3}], v[{B+4*rp}:{B+4*rp+3}], {c}")

def mk_tag(dst_s):
    e(f"s_add_u32 {sTAG}, {sTAG}, 8")
    e(f"s_andn2_b32 {sTAG}, {sTAG}, 7")

GPOS = [0, 1, 2, 4, 5, 6, 8, 9]
def tile_out_granules(D, G, vtag):
    e("s_nop 3")
    for rp in range(8):
        if rp == 7: e("s_nop 3")
        e(f"v_add_f32_dpp v{G+GPOS[rp]}, v{D+4*rp+2}, v{D+4*rp} row_shl:8 row_mask:0xf bank_mask:0xf")
    for k in (3, 7, 10, 11):
        e(f"v_mov_b32 v{G+k}, v{vtag}")

e(f"""; Fused decode kernel: LN -> (GQA sliding-window attention + Wo) + (GELU FFN) + residual
; @launch grid=(256,1,1) block=({NWAVES*64},1,1) lds={LDS_BYTES}
.amdgcn_target "amdgcn-amd-amdhsa--gfx950"
.text
.globl {NAME}_kernel
.p2align 8
.type {NAME}_kernel,@function
{NAME}_kernel:""")
e("s_cmp_ge_u32 s2, 256")
e("s_cbranch_scc1 L_end")
stamp(0)
e("s_load_dwordx16 s[16:31], s[0:1], 0")
e("s_load_dwordx8 s[32:39], s[0:1], 64")
e("s_load_dwordx2 s[40:41], s[0:1], 96")
e("v_lshrrev_b32 v1, 6, v0")
e("v_and_b32 v0, 63, v0")
e(f"v_readfirstlane_b32 {sWV}, v1")
e(f"s_and_b32 {sH}, s2, 7")
e(f"s_lshr_b32 {sJ}, s2, 3")
common_scalars()
e(f"s_cmp_eq_u32 {sWV}, 0")
e("s_cbranch_scc1 L_roleQ")
e(f"s_cmp_lt_u32 {sWV}, 5")
e("s_cbranch_scc1 L_roleK")
e(f"s_cmp_lt_u32 {sWV}, 9")
e("s_cbranch_scc1 L_roleV")
e(f"s_cmp_eq_u32 {sWV}, 9")
e("s_cbranch_scc1 L_roleF")
e("s_branch L_roleW")

lab("L_roleQ")
e("s_setprio 3")
XD = 8
FX = 12
TD = 24
TB = 88
TDA = 120
TA = 152
e("v_lshlrev_b32 v2, 2, v0")
e("v_mov_b32 v3, 0")
e("ds_write_b32 v2, v3")
e("v_lshlrev_b32 v4, 4, v0")
e("v_lshrrev_b32 v5, 3, v0")
e("v_min_u32 v6, 5, v5")
e("v_and_b32 v7, 7, v0")
e("v_lshlrev_b32 v7, 4, v7")
e("v_lshl_add_u32 v5, v5, 16, v7")
e("v_lshl_add_u32 v6, v6, 16, v7")
e("s_waitcnt lgkmcnt(0)")
mk_srd(SRD_A, pX, 896)
mk_srd(SRD_B, pWQ, 448*8192)
mk_srd(SRD_WS, pWS, WS_SIZE)
e(f"s_load_dword {sTAG}, s[{pWS}:{pWS+1}], 0")
e(f"buffer_load_dwordx4 v[{XD}:{XD+3}], v4, {srd(SRD_A)}, 0 offen")
e(f"s_lshr_b32 {sU4}, {sJ}, 3")
e(f"s_mul_i32 {sT0}, {sU4}, {112*8192}")
e(f"s_lshl_b32 {sT1}, {sH}, 10")
e(f"s_add_u32 {sT0}, {sT0}, {sT1}")
e(f"s_and_b32 {sT1}, {sJ}, 7")
e(f"s_lshl_b32 {sT1}, {sT1}, 7")
e(f"s_add_u32 {sT0}, {sT0}, {sT1}")
for s in range(2):
    for r in range(8):
        q = TD+32*s+4*r
        e(f"s_add_u32 {sT1}, {sT0}, {(64*s+r)*8192}")
        e(f"buffer_load_dwordx4 v[{q}:{q+3}], v{5+s}, {srd(SRD_B)}, {sT1} offen nt")
e("s_barrier")
stamp(1)
e(f"s_getreg_b32 {sU0}, hwreg(HW_REG_XCC_ID, 0, 3)")
e("s_waitcnt vmcnt(16)")
stamp(2)
for k in range(4):
    e(f"v_lshlrev_b32 v{FX+2*k}, 16, v{XD+k}")
    e(f"v_and_b32 v{FX+2*k+1}, 0xffff0000, v{XD+k}")
e(f"v_add_f32 v2, v{FX}, v{FX+1}")
for k in range(2, 8):
    e(f"v_add_f32 v2, v2, v{FX+k}")
allreduce("v_add_f32", 2, 3)
e(f"v_mul_f32 v2, {f2h(1.0/448)}, v2")
e(f"v_sub_f32 v6, v{FX}, v2")
e("v_mul_f32 v7, v6, v6")
for k in range(1, 8):
    e(f"v_sub_f32 v6, v{FX+k}, v2")
    e("v_fmac_f32 v7, v6, v6")
e("v_cmp_gt_u32 vcc, 56, v0")
e("s_nop 1")
e("v_cndmask_b32 v7, 0, v7, vcc")
allreduce("v_add_f32", 7, 3)
e(f"v_mul_f32 v7, {f2h(1.0/448)}, v7")
bf16r(2, 2)
bf16r(7, 7)
e("v_add_f32 v7, 0x3727c5ac, v7")
bf16r(7, 7)
e("v_sqrt_f32 v7, v7")
e("s_nop 0")
bf16r(7, 7)
e("v_rcp_f32 v7, v7")
for k in range(4):
    e(f"v_sub_f32 v{FX+2*k}, v{FX+2*k}, v2")
    e(f"v_sub_f32 v{FX+2*k+1}, v{FX+2*k+1}, v2")
    e(f"v_cvt_pk_bf16_f32 v6, v{FX+2*k}, v{FX+2*k+1}")
    e(f"v_lshlrev_b32 v{FX+2*k}, 16, v6")
    e(f"v_and_b32 v{FX+2*k+1}, 0xffff0000, v6")
    e(f"v_mul_f32 v{FX+2*k}, v{FX+2*k}, v7")
    e(f"v_mul_f32 v{FX+2*k+1}, v{FX+2*k+1}, v7")
    e(f"v_cvt_pk_bf16_f32 v{XD+k}, v{FX+2*k}, v{FX+2*k+1}")
    e(f"v_cndmask_b32 v{XD+k}, 0, v{XD+k}, vcc")
e(f"ds_write_b128 v4, v[{XD}:{XD+3}] offset:{L_XN}")
e("v_mov_b32 v3, 0")
e("v_mov_b32 v6, 1")
lds_signal(F_XN, 3, 6)
e("v_bfe_u32 v2, v0, 1, 1")
e("v_lshrrev_b32 v7, 4, v0")
e("v_lshl_add_u32 v2, v7, 1, v2")
e("v_lshlrev_b32 v2, 4, v2")
e(f"s_mul_i32 {sT0}, {sU4}, 224")
e(f"v_add_u32 v2, {sT0}, v2")
e(f"ds_read_b128 v[{TA}:{TA+3}], v2 offset:{L_XN}")
e(f"ds_read_b128 v[{TA+4}:{TA+7}], v2 offset:{L_XN+128}")
e("v_cmp_gt_u32 vcc, 48, v0")
e("s_waitcnt lgkmcnt(0)")
for k in range(4):
    e(f"v_cndmask_b32 v{TA+4+k}, 0, v{TA+4+k}, vcc")
stamp(3)
e("s_waitcnt vmcnt(8)")
transpose_set(TD, TB)
e("s_nop 1")
mfma_set(TDA, TA, TB, True)
transpose_set(TD+32, TB, waits=[6, 4, 2, 0])
e("s_nop 1")
mfma_set(TDA, TA+4, TB, False)
stamp(4)
mk_tag(None)
e(f"s_or_b32 {sU1}, {sTAG}, {sU0}")
e(f"v_mov_b32 v9, {sU1}")
G = 12
tile_out_granules(TDA, G, 9)
e(f"s_mul_i32 {sT0}, {sH}, 12288")
e(f"s_add_u32 {sU3}, {sT0}, {W_QMB}")
e(f"s_mul_i32 {sT1}, {sJ}, 384")
e(f"s_add_u32 {sU2}, {sU3}, {sT1}")
lds_wait(F_CLR, 2, 3, 7)
e("s_mov_b64 exec, 0xff")
for k in range(3):
    e(f"buffer_store_dwordx4 v[{G+4*k}:{G+4*k+3}], v4, {srd(SRD_WS)}, {sU2} offen offset:{128*k} sc1")
e("s_mov_b64 exec, 1")
e(f"s_lshl_b32 {sT0}, s2, 2")
e(f"s_add_u32 {sT0}, {sT0}, {W_READY}")
e(f"buffer_store_dword v9, v3, {srd(SRD_WS)}, {sT0} offen sc1")
e("s_mov_b64 exec, -1")
stamp(5)
e("v_lshrrev_b32 v2, 3, v0")
e("v_mul_u32_u24 v2, 384, v2")
e("v_and_b32 v7, 7, v0")
e("v_lshl_add_u32 v2, v7, 4, v2")
e(f"v_mov_b32 v10, {sTAG}")
e(f"v_mov_b32 v11, {sU1}")
lds_wait(F_KISS, 4, 3, 7)
if QDELAY: e(f"s_sleep {QDELAY}")
e(f"s_mov_b32 {sU5}, 0")
GD = 24
lab("L_qpoll")
for rq in range(4):
    e(f"s_add_u32 {sT1}, {sU3}, {3072*rq}")
    for k in range(3):
        r = GD+12*rq+4*k
        e(f"buffer_load_dwordx4 v[{r}:{r+3}], v2, {srd(SRD_WS)}, {sT1} offen offset:{128*k} sc1")
e("s_waitcnt vmcnt(0)")
e(f"v_xor_b32 v12, v{GD+3}, v10")
for i in range(1, 12):
    e(f"v_xor_b32 v13, v{GD+4*i+3}, v10")
    e("v_or_b32 v12, v12, v13")
e("v_cmp_lt_u32 vcc, 7, v12")
e("s_cmp_eq_u64 vcc, 0")
e("s_cbranch_scc1 L_qgot")
e(f"s_add_u32 {sU5}, {sU5}, 1")
e(f"s_cmp_lt_u32 {sU5}, {SPIN_LIMIT}")
e("s_cbranch_scc1 L_qpoll")
lab("L_qgot")
stamp(6)
e(f"v_xor_b32 v12, v{GD+3}, v11")
for rq in range(1, 4):
    e(f"v_xor_b32 v13, v{GD+12*rq+3}, v11")
    e("v_or_b32 v12, v12, v13")
e("v_cmp_ne_u32 vcc, 0, v12")
for i in range(8):
    p = GPOS[i]
    e(f"v_add_f32 v{GD+p}, v{GD+p}, v{GD+12+p}")
    e(f"v_add_f32 v{GD+24+p}, v{GD+24+p}, v{GD+36+p}")
for i in range(8):
    p = GPOS[i]
    e(f"v_add_f32 v{GD+p}, v{GD+p}, v{GD+24+p}")
for k in range(4):
    e(f"v_cvt_pk_bf16_f32 v{12+k}, v{GD+GPOS[2*k]}, v{GD+GPOS[2*k+1]}")
e(f"ds_write_b128 v4, v[12:15] offset:{L_Q}")
e("s_cmp_eq_u64 vcc, 0")
e(f"s_cselect_b32 {sT0}, 2, 1")
e(f"v_mov_b32 v6, {sT0}")
e("s_mov_b64 exec, 1")
e(f"ds_write_b32 v3, v6 offset:{F_QRDY}")
e("s_mov_b64 exec, -1")
if PROFILE:
    e(f"s_mov_b32 s{sSTAMP+14}, {sU5}"); e(f"s_mov_b32 s{sSTAMP+15}, 0")
stamps_out(8)
e("s_endpgm")

lab("L_roleK")
KD = 16
QF = 80
KA = 96
e(f"s_sub_u32 {sU0}, {sWV}, 1")
e(f"s_and_b32 {sT0}, {sX7}, 7")
e("v_and_b32 v2, 7, v0")
e(f"v_xor_b32 v2, {sT0}, v2")
e("v_lshlrev_b32 v2, 9, v2")
e("v_lshrrev_b32 v3, 3, v0")
e("v_lshl_or_b32 v2, v3, 4, v2")
e("v_mov_b32 v4, 0")
e("v_mov_b32 v5, 1")
e("v_and_b32 v6, 1, v0")
e("v_lshlrev_b32 v6, 9, v6")
e("v_bfe_u32 v7, v0, 1, 1")
e("v_lshrrev_b32 v8, 4, v0")
e("v_lshl_add_u32 v7, v8, 1, v7")
e("v_lshl_add_u32 v6, v7, 4, v6")
e("v_bfe_u32 v9, v0, 1, 1")
e("v_lshlrev_b32 v9, 10, v9")
e("v_and_b32 v10, 1, v0")
e("v_lshl_or_b32 v9, v10, 9, v9")
e("v_bfe_u32 v10, v0, 4, 1")
e("v_lshl_or_b32 v9, v10, 4, v9")
e(f"s_lshl_b32 {sT0}, {sU0}, 7")
e(f"v_add_u32 v9, {sT0}, v9")
e("s_waitcnt lgkmcnt(0)")
kv_srd(SRD_A, pK)
if PROFILE: mk_srd(SRD_WS, pWS, WS_SIZE)
e(f"s_and_b32 {sU1}, {sX7}, 0x78")
e(f"s_lshl_b32 {sU2}, {sU0}, 5")
e("s_barrier")
stamp(1)
for rgp in range(4):
    e(f"s_add_u32 {sT0}, {sU2}, {8*rgp}")
    e(f"s_xor_b32 {sT0}, {sT0}, {sU1}")
    e(f"s_lshl_b32 {sT0}, {sT0}, 9")
    for u in range(4):
        e(f"s_xor_b32 {sT1}, {sXS}, {u}")
        e(f"s_lshl_b32 {sT1}, {sT1}, 7")
        e(f"s_or_b32 {sT1}, {sT1}, {sT0}")
        r = KD+16*rgp+4*u
        e(f"buffer_load_dwordx4 v[{r}:{r+3}], v2, {srd(SRD_A)}, {sT1} offen nt")
lds_signal(F_KISS, 4, 5)
stamp(2)
lds_wait(F_QRDY, 1, 4, 11)
stamp(3)
for u in range(4):
    e(f"s_xor_b32 {sT1}, {sXS}, {u}")
    e(f"s_lshl_b32 {sT1}, {sT1}, 7")
    e(f"s_add_u32 {sT1}, {sT1}, {L_Q}")
    e(f"v_add_u32 v11, {sT1}, v6")
    e(f"ds_read_b128 v[{QF+4*u}:{QF+4*u+3}], v11")
e("s_waitcnt vmcnt(0) lgkmcnt(0)")
stamp(4)
for u in range(4):
    for rgp in range(4):
        r = KD+16*rgp+4*u
        c = "0" if u == 0 else f"v[{KA+4*rgp}:{KA+4*rgp+3}]"
        e(f"v_mfma_f32_16x16x32_bf16 v[{KA+4*rgp}:{KA+4*rgp+3}], v[{r}:{r+3}], v[{QF+4*u}:{QF+4*u+3}], {c}")
e("s_nop 7")
e("s_mov_b32 exec_lo, 0x00030003")
e("s_mov_b32 exec_hi, 0x000C000C")
for rgp in range(4):
    e(f"ds_write_b128 v9, v[{KA+4*rgp}:{KA+4*rgp+3}] offset:{L_SC+32*rgp}")
e("s_mov_b64 exec, -1")
lds_signal(F_SDONE, 4, 5)
stamp(5)
stamps_out(6)
e("s_endpgm")

lab("L_roleV")
VD = 16
BF = 80
DA = 112
AF = 144
SCR = 80
e(f"s_sub_u32 {sU0}, {sWV}, 5")
e(f"s_xor_b32 {sU3}, {sU0}, {sXW}")
e(f"s_and_b32 {sT0}, {sX7}, 0x38")
e("v_and_b32 v2, 0x38, v0")
e(f"v_xor_b32 v2, {sT0}, v2")
e("v_lshlrev_b32 v2, 9, v2")
e("v_and_b32 v3, 7, v0")
e("v_lshl_or_b32 v2, v3, 4, v2")
e(f"s_lshl_b32 {sT0}, {sU3}, 7")
e(f"v_add_u32 v2, {sT0}, v2")
e("v_mov_b32 v4, 0")
e("v_mov_b32 v5, 1")
e("v_and_b32 v6, 1, v0")
e("v_lshlrev_b32 v6, 9, v6")
e("v_bfe_u32 v7, v0, 1, 1")
e("v_lshrrev_b32 v8, 4, v0")
e("v_lshl_add_u32 v7, v8, 1, v7")
e("v_lshl_add_u32 v6, v7, 5, v6")
e("v_and_b32 v9, 7, v0")
e("v_lshlrev_b32 v9, 5, v9")
e(f"s_lshl_b32 {sT0}, {sU3}, 8")
e(f"v_add_u32 v9, {sT0}, v9")
e(f"s_lshl_b32 {sT0}, {sH}, 5")
e(f"s_add_u32 {sT0}, {sT0}, {sJ}")
e(f"s_lshl_b32 {sT0}, {sT0}, 11")
e(f"s_add_u32 {sU2}, {sT0}, {W_OP}")
e("s_waitcnt lgkmcnt(0)")
kv_srd(SRD_A, pV)
mk_srd(SRD_WS, pWS, WS_SIZE)
e(f"s_and_b32 {sU1}, {sX7}, 0x47")
e("s_barrier")
lds_wait(F_KISS, 4, 4, 11)
stamp(1)
for s in range(2):
    for r in range(8):
        e(f"s_xor_b32 {sT1}, {sU1}, {r | (s << 6)}")
        e(f"s_lshl_b32 {sT1}, {sT1}, 9")
        q = VD+32*s+4*r
        e(f"buffer_load_dwordx4 v[{q}:{q+3}], v2, {srd(SRD_A)}, {sT1} offen nt")
lds_signal(F_VISS, 4, 5)
stamp(2)
lds_wait(F_SDONE, 4, 4, 11)
stamp(3)
e(f"ds_read_b32 v12, v4 offset:{F_QRDY}")
for s in range(2):
    for pk in range(2):
        for hh in range(2):
            r = SCR+16*s+8*pk+4*hh
            e(f"ds_read_b128 v[{r}:{r+3}], v6 offset:{L_SC+1024*pk+256*s+16*hh}")
e("s_waitcnt lgkmcnt(0)")
e(f"v_readfirstlane_b32 {sFAST}, v12")
SV = 112
for s in range(2):
    for k in range(0, 8, 2):
        a = SCR+16*s+k
        e(f"v_add_f32 v{a}, v{a}, v{a+8}")
        e(f"v_add_f32 v{a+1}, v{a+1}, v{a+9}")
        e(f"v_cvt_pk_bf16_f32 v10, v{a}, v{a+1}")
        e(f"v_lshlrev_b32 v{SV+8*s+k}, 16, v10")
        e(f"v_and_b32 v{SV+8*s+k+1}, 0xffff0000, v10")
e(f"v_max3_f32 v10, v{SV}, v{SV+1}, v{SV+2}")
for k in range(3, 15, 2):
    e(f"v_max3_f32 v10, v10, v{SV+k}, v{SV+k+1}")
e(f"v_max_f32 v10, v10, v{SV+15}")
e("s_nop 1")
e("v_max_f32_dpp v10, v10, v10 quad_perm:[2,3,0,1] row_mask:0xf bank_mask:0xf")
e("v_mov_b32 v11, v10")
e("s_nop 1")
e("v_permlane16_swap_b32 v10, v11")
e("s_nop 1")
e("v_max_f32 v10, v10, v11")
e("v_mov_b32 v11, v10")
e("s_nop 1")
e("v_permlane32_swap_b32 v10, v11")
e("s_nop 1")
e("v_max_f32 v10, v10, v11")
C_EXP = 0.0625*1.4426950408889634
e(f"s_mov_b32 {sT2}, {f2h(C_EXP)}")
for k in range(16): e(f"v_sub_f32 v{SV+k}, v{SV+k}, v10")
for k in range(16): e(f"v_mul_f32 v{SV+k}, {sT2}, v{SV+k}")
for k in range(16): e(f"v_exp_f32 v{SV+k}, v{SV+k}")
e("s_nop 0")
for k in range(8): e(f"v_cvt_pk_bf16_f32 v{AF+k}, v{SV+2*k}, v{SV+2*k+1}")
e(f"v_add_f32 v11, v{SV}, v{SV+1}")
for k in range(2, 16): e(f"v_add_f32 v11, v11, v{SV+k}")
e("s_nop 1")
e("v_add_f32_dpp v11, v11, v11 quad_perm:[2,3,0,1] row_mask:0xf bank_mask:0xf")
e("v_mov_b32 v12, v11")
e("s_nop 1")
e("v_permlane16_swap_b32 v11, v12")
e("s_nop 1")
e("v_add_f32 v11, v11, v12")
e("v_mov_b32 v12, v11")
e("s_nop 1")
e("v_permlane32_swap_b32 v11, v12")
e("s_nop 1")
e("v_add_f32 v11, v11, v12")
e(f"v_mul_f32 v10, {sT2}, v10")
e(f"s_cmp_lg_u32 {sU0}, 0")
e("s_cbranch_scc1 L_v_noml")
e("v_lshlrev_b32 v12, 8, v0")
e(f"s_lshl_b32 {sT0}, {sH}, 9")
e(f"s_lshl_b32 {sT1}, {sJ}, 3")
e(f"s_add_u32 {sT0}, {sT0}, {sT1}")
e(f"s_add_u32 {sT0}, {sT0}, {W_ML}")
e("s_mov_b64 exec, 3")
e(f"s_cmp_eq_u32 {sFAST}, 2")
e("s_cbranch_scc1 L_v_mlfast")
e(f"buffer_store_dwordx2 v[10:11], v12, {srd(SRD_WS)}, {sT0} offen sc1")
e("s_branch L_v_mldone")
lab("L_v_mlfast")
e(f"buffer_store_dwordx2 v[10:11], v12, {srd(SRD_WS)}, {sT0} offen")
lab("L_v_mldone")
e("s_mov_b64 exec, -1")
lab("L_v_noml")
stamp(4)
e("s_waitcnt vmcnt(8)")
transpose_set(VD, BF)
e("s_nop 1")
mfma_set(DA, AF, BF, True)
transpose_set(VD+32, BF, waits=[6, 4, 2, 0])
stamp(5)
e("s_nop 1")
mfma_set(DA, AF+4, BF, False)
e("s_nop 3")
OO = 80
for rp in range(8):
    if rp == 7: e("s_nop 3")
    for hd in range(2):
        e(f"v_add_f32_dpp v{OO+8*hd+rp}, v{DA+4*rp+2+hd}, v{DA+4*rp+hd} row_shl:8 row_mask:0xf bank_mask:0xf")
e("s_mov_b64 exec, 0xff")
e(f"s_cmp_eq_u32 {sFAST}, 2")
e("s_cbranch_scc1 L_v_ofast")
for hd in range(2):
    for q in range(2):
        e(f"buffer_store_dwordx4 v[{OO+8*hd+4*q}:{OO+8*hd+4*q+3}], v9, {srd(SRD_WS)}, {sU2} offen offset:{1024*hd+16*q} sc1")
e("s_branch L_v_odone")
lab("L_v_ofast")
for hd in range(2):
    for q in range(2):
        e(f"buffer_store_dwordx4 v[{OO+8*hd+4*q}:{OO+8*hd+4*q+3}], v9, {srd(SRD_WS)}, {sU2} offen offset:{1024*hd+16*q}")
lab("L_v_odone")
e("s_mov_b64 exec, -1")
stamp(6)
stamps_out(7)
e("s_endpgm")

lab("L_roleF")
FD = 16
FB = 48
FDA = 80
FA_ = 112
FG = 116
F2D = 128
e(f"s_lshr_b32 {sT0}, {sJ}, 3")
e(f"s_lshl_b32 {sT0}, {sT0}, 3")
e(f"s_add_u32 {sU0}, {sT0}, {sH}")
e(f"s_and_b32 {sU1}, {sJ}, 7")
e(f"s_mul_i32 {sT0}, {sJ}, 37")
e(f"s_lshr_b32 {sT0}, {sT0}, 8")
e(f"s_mul_i32 {sT1}, {sT0}, 7")
e(f"s_sub_u32 {sU3}, {sJ}, {sT1}")
e(f"s_lshl_b32 {sT0}, {sT0}, 3")
e(f"s_add_u32 {sU2}, {sT0}, {sH}")
e("v_mov_b32 v4, 0")
e("v_mov_b32 v5, 1")
e("v_lshlrev_b32 v6, 4, v0")
e("v_lshrrev_b32 v2, 3, v0")
e("v_min_u32 v3, 6, v2")
e("v_mul_u32_u24 v3, 28672, v3")
e("v_and_b32 v7, 7, v0")
e("v_lshl_add_u32 v3, v7, 4, v3")
e("v_mul_u32_u24 v2, 7168, v2")
e("v_lshl_add_u32 v2, v7, 4, v2")
e("s_waitcnt lgkmcnt(0)")
mk_srd(SRD_WS, pWS, WS_SIZE)
mk_srd(SRD_A, pW1, 448*3584)
mk_srd(SRD_B, pW2, 1792*896)
mk_srd(SRD_C, pB1, 3584)
e(f"s_load_dword {sTAG}, s[{pWS}:{pWS+1}], 0")
def w1_loads():
    L = uid("now1")
    e(f"s_cmp_ge_u32 {sU0}, 28")
    e(f"s_cbranch_scc1 {L}")
    e(f"s_mul_i32 {sT0}, {sU1}, {56*3584}")
    e(f"s_lshl_b32 {sT1}, {sU0}, 7")
    e(f"s_add_u32 {sT0}, {sT0}, {sT1}")
    for r in range(8):
        e(f"s_add_u32 {sT1}, {sT0}, {r*3584}")
        e(f"buffer_load_dwordx4 v[{FD+4*r}:{FD+4*r+3}], v3, {srd(SRD_A)}, {sT1} offen nt")
    lab(L)
e(f"s_add_u32 {sT0}, {sU2}, 32")
e(f"s_lshl_b32 {sT0}, {sT0}, 11")
e(f"s_lshl_b32 {sT1}, {sU3}, 8")
e(f"s_add_u32 {sT0}, {sT0}, {sT1}")
e(f"s_add_u32 {sU4}, {sT0}, {W_AP}")
e(f"s_cmp_ge_u32 {sU2}, 28")
e("s_cbranch_scc1 L_f_noclr")
for k in range(4): e(f"v_mov_b32 v{8+k}, -1")
e("s_mov_b64 exec, 0xffff")
e(f"buffer_store_dwordx4 v[8:11], v6, {srd(SRD_WS)}, {sU4} offen sc1")
e("s_mov_b64 exec, -1")
lab("L_f_noclr")
if not W1LATE: w1_loads()
e("s_barrier")
if W1LATE:
    e("s_waitcnt vmcnt(0)")
else:
    e(f"s_cmp_ge_u32 {sU0}, 28")
    e("s_cbranch_scc1 L_f_w0")
    e("s_waitcnt vmcnt(8)")
    e("s_branch L_f_w1")
    lab("L_f_w0")
    e("s_waitcnt vmcnt(0)")
    lab("L_f_w1")
lds_signal(F_CLR, 4, 5)
stamp(1)
if W1LATE:
    lds_wait(F_VISS, 4, 4, 11)
    w1_loads()
e(f"s_cmp_ge_u32 {sU0}, 28")
e("s_cbranch_scc1 L_f_stage2")
lds_wait(F_XN, 1, 4, 11)
e("v_bfe_u32 v12, v0, 1, 1")
e("v_lshrrev_b32 v13, 4, v0")
e("v_lshl_add_u32 v12, v13, 1, v12")
e("v_cmp_gt_u32 vcc, 7, v12")
e("v_lshlrev_b32 v12, 4, v12")
e(f"s_mul_i32 {sT0}, {sU1}, 112")
e(f"v_add_u32 v12, {sT0}, v12")
e(f"ds_read_b128 v[{FA_}:{FA_+3}], v12 offset:{L_XN}")
e("s_waitcnt vmcnt(0) lgkmcnt(0)")
for k in range(4): e(f"v_cndmask_b32 v{FA_+k}, 0, v{FA_+k}, vcc")
transpose_set(FD, FB)
e("s_nop 1")
mfma_set(FDA, FA_, FB, True)
mk_tag(None)
e(f"v_mov_b32 v9, {sTAG}")
tile_out_granules(FDA, FG, 9)
e(f"s_mul_i32 {sT0}, {sU0}, 3072")
e(f"s_mul_i32 {sT1}, {sU1}, 384")
e(f"s_add_u32 {sT0}, {sT0}, {sT1}")
e(f"s_add_u32 {sT0}, {sT0}, {W_HMB}")
e("s_mov_b64 exec, 0xff")
for k in range(3):
    e(f"buffer_store_dwordx4 v[{FG+4*k}:{FG+4*k+3}], v6, {srd(SRD_WS)}, {sT0} offen offset:{128*k} sc1")
e("s_mov_b64 exec, -1")
stamp(2)
e("s_branch L_f_stage2b")
lab("L_f_stage2")
e("s_waitcnt lgkmcnt(0)")
mk_tag(None)
lab("L_f_stage2b")
e(f"s_cmp_ge_u32 {sU2}, 28")
e("s_cbranch_scc1 L_f_end")
e("v_and_b32 v12, 7, v0")
e("v_lshlrev_b32 v12, 4, v12")
e("v_lshrrev_b32 v13, 4, v0")
e("v_lshl_add_u32 v14, v13, 2, v12")
e(f"s_lshl_b32 {sT0}, {sU2}, 7")
e(f"v_add_u32 v15, {sT0}, v14")
e("v_lshrrev_b32 v13, 3, v0")
e("v_mul_u32_u24 v13, 384, v13")
e("v_add_u32 v13, v13, v12")
e(f"s_mul_i32 {sT0}, {sU2}, 3072")
e(f"s_add_u32 {sU5}, {sT0}, {W_HMB}")
e(f"v_mov_b32 v10, {sTAG}")
lds_wait(F_VISS, 4, 4, 11)
stamp(3)
e(f"buffer_load_dword v8, v15, {srd(SRD_C)}, 0 offen")
e(f"s_mov_b32 {sCNT}, 0")
HG = 16
lab("L_hpoll")
for k in range(3):
    e(f"buffer_load_dwordx4 v[{HG+4*k}:{HG+4*k+3}], v13, {srd(SRD_WS)}, {sU5} offen offset:{128*k} sc1")
e(f"s_cmp_lg_u32 {sCNT}, 0")
e("s_cbranch_scc1 L_h_now2")
e(f"s_mul_i32 {sT0}, {sU2}, {64*896}")
e(f"s_lshl_b32 {sT1}, {sU3}, 7")
e(f"s_add_u32 {sT0}, {sT0}, {sT1}")
for r in range(8):
    e(f"s_add_u32 {sT1}, {sT0}, {r*896}")
    e(f"buffer_load_dwordx4 v[{F2D+4*r}:{F2D+4*r+3}], v2, {srd(SRD_B)}, {sT1} offen nt")
e("s_waitcnt vmcnt(8)")
e("s_branch L_h_chk")
lab("L_h_now2")
e("s_waitcnt vmcnt(0)")
lab("L_h_chk")
e(f"v_xor_b32 v11, v{HG+3}, v10")
e(f"v_xor_b32 v12, v{HG+7}, v10")
e("v_or_b32 v11, v11, v12")
e(f"v_xor_b32 v12, v{HG+11}, v10")
e("v_or_b32 v11, v11, v12")
e("v_cmp_lt_u32 vcc, 7, v11")
e("s_cmp_eq_u64 vcc, 0")
e("s_cbranch_scc1 L_hgot")
e(f"s_add_u32 {sCNT}, {sCNT}, 1")
e(f"s_cmp_lt_u32 {sCNT}, {SPIN_LIMIT}")
e("s_cbranch_scc1 L_hpoll")
lab("L_hgot")
stamp(4)
hv = [HG+p for p in GPOS]
e("s_nop 1")
for i in range(8):
    e(f"v_add_f32_dpp v{hv[i]}, v{hv[i]}, v{hv[i]} row_ror:8 row_mask:0xf bank_mask:0xf")
e("s_nop 1")
for i in range(4): e(f"v_permlane32_swap_b32 v{hv[i]}, v{hv[i+4]}")
e("s_nop 1")
for i in range(4): e(f"v_add_f32 v{hv[i]}, v{hv[i]}, v{hv[i+4]}")
e("s_nop 1")
for i in range(2): e(f"v_permlane16_swap_b32 v{hv[i]}, v{hv[i+2]}")
e("s_nop 1")
for i in range(2): e(f"v_add_f32 v{hv[i]}, v{hv[i]}, v{hv[i+2]}")
X0, X1 = hv[0], hv[1]
e(f"v_cvt_pk_bf16_f32 v11, v{X0}, v{X1}")
e(f"v_lshlrev_b32 v{X0}, 16, v11")
e(f"v_and_b32 v{X1}, 0xffff0000, v11")
e("v_lshlrev_b32 v11, 16, v8")
e("v_and_b32 v12, 0xffff0000, v8")
e(f"v_add_f32 v{X0}, v{X0}, v11")
e(f"v_add_f32 v{X1}, v{X1}, v12")
e(f"v_cvt_pk_bf16_f32 v11, v{X0}, v{X1}")
e(f"v_lshlrev_b32 v{X0}, 16, v11")
e(f"v_and_b32 v{X1}, 0xffff0000, v11")
KB = -2.0*0.7978845608028654*1.4426950408889634
e(f"s_mov_b32 {sT2}, {f2h(0.044715)}")
e(f"s_mov_b32 {sT3}, {f2h(KB)}")
for x, t in ((X0, 32), (X1, 33)):
    e(f"v_mul_f32 v{t}, v{x}, v{x}")
    e(f"v_mul_f32 v{t}, v{t}, v{x}")
    e(f"v_fma_f32 v{t}, v{t}, {sT2}, v{x}")
    e(f"v_mul_f32 v{t}, {sT3}, v{t}")
    e(f"v_exp_f32 v{t}, v{t}")
    e("s_nop 0")
    e(f"v_add_f32 v{t}, 1.0, v{t}")
    e(f"v_rcp_f32 v{t}, v{t}")
    e("s_nop 0")
    e(f"v_mul_f32 v{x}, v{x}, v{t}")
e(f"v_cvt_pk_bf16_f32 v11, v{X0}, v{X1}")
e(f"ds_write_b32 v14, v11 offset:{L_HL}")
e("v_bfe_u32 v12, v0, 1, 1")
e("v_lshrrev_b32 v13, 4, v0")
e("v_lshl_add_u32 v12, v13, 1, v12")
e("v_lshlrev_b32 v12, 4, v12")
e(f"ds_read_b128 v[{FA_}:{FA_+3}], v12 offset:{L_HL}")
e("s_waitcnt vmcnt(0)")
transpose_set(F2D, FB)
e("s_waitcnt lgkmcnt(0)")
mfma_set(FDA, FA_, FB, True)
e("v_and_b32 v10, 7, v0")
e("v_lshlrev_b32 v10, 5, v10")
e("s_nop 3")
for rp in range(8):
    if rp == 7: e("s_nop 3")
    e(f"v_add_f32_dpp v{16+rp}, v{FDA+4*rp+2}, v{FDA+4*rp} row_shl:8 row_mask:0xf bank_mask:0xf")
e("s_mov_b64 exec, 0xff")
e(f"buffer_store_dwordx4 v[16:19], v10, {srd(SRD_WS)}, {sU4} offen sc1")
e(f"buffer_store_dwordx4 v[20:23], v10, {srd(SRD_WS)}, {sU4} offen offset:16 sc1")
e("s_mov_b64 exec, -1")
stamp(5)
lab("L_f_end")
stamps_out(6)
e("s_endpgm")

lab("L_roleW")
e("s_setprio 2")
WI = 16
WB = 80
WW = 144
e("v_mov_b32 v4, 0")
e("v_mov_b32 v5, 1")
e("v_lshlrev_b32 v6, 4, v0")
e("s_waitcnt lgkmcnt(0)")
mk_srd(SRD_WS, pWS, WS_SIZE)
e(f"s_load_dword {sTAG}, s[{pWS}:{pWS+1}], 0")
for k in range(4): e(f"v_mov_b32 v{8+k}, -1")
e(f"s_lshl_b32 {sT0}, {sH}, 5")
e(f"s_add_u32 {sT0}, {sT0}, {sJ}")
e(f"s_lshl_b32 {sT0}, {sT0}, 11")
e(f"s_add_u32 {sT0}, {sT0}, {W_OP}")
e(f"buffer_store_dwordx4 v[8:11], v6, {srd(SRD_WS)}, {sT0} offen sc1")
e(f"buffer_store_dwordx4 v[8:11], v6, {srd(SRD_WS)}, {sT0} offen offset:1024 sc1")
e("v_lshlrev_b32 v7, 8, v0")
e(f"s_lshl_b32 {sT0}, {sH}, 9")
e(f"s_lshl_b32 {sT1}, {sJ}, 3")
e(f"s_add_u32 {sT0}, {sT0}, {sT1}")
e(f"s_add_u32 {sT0}, {sT0}, {W_ML}")
e("s_mov_b64 exec, 3")
e(f"buffer_store_dwordx2 v[8:9], v7, {srd(SRD_WS)}, {sT0} offen sc1")
e("s_mov_b64 exec, -1")
e(f"s_cmp_ge_u32 {sJ}, 28")
e("s_cbranch_scc1 L_final")
e(f"s_and_b32 {sU0}, {sJ}, 3")
e(f"s_lshr_b32 {sU1}, {sJ}, 2")
e(f"s_lshl_b32 {sT0}, {sH}, 2")
e(f"s_add_u32 {sT0}, {sT0}, {sU0}")
e(f"s_lshl_b32 {sT0}, {sT0}, 11")
e(f"s_lshl_b32 {sT1}, {sU1}, 8")
e(f"s_add_u32 {sT0}, {sT0}, {sT1}")
e(f"s_add_u32 {sU2}, {sT0}, {W_AP}")
e("s_mov_b64 exec, 0xffff")
e(f"buffer_store_dwordx4 v[8:11], v6, {srd(SRD_WS)}, {sU2} offen sc1")
e("s_mov_b64 exec, -1")
e("s_barrier")
e("s_waitcnt vmcnt(0)")
lds_signal(F_CLR, 4, 5)
stamp(1)
mk_srd(SRD_A, pWO, 4096*896)
e("v_lshrrev_b32 v2, 3, v0")
e("v_mul_u32_u24 v2, 7168, v2")
e("v_and_b32 v3, 7, v0")
e("v_lshl_add_u32 v2, v3, 4, v2")
e(f"s_lshl_b32 {sT0}, {sH}, 2")
e(f"s_add_u32 {sT0}, {sT0}, {sU0}")
e(f"s_mul_i32 {sT0}, {sT0}, {128*896}")
e(f"s_lshl_b32 {sT1}, {sU1}, 7")
e(f"s_add_u32 {sU3}, {sT0}, {sT1}")
e("v_lshlrev_b32 v3, 3, v0")
e("v_and_b32 v3, 0xff, v3")
e(f"s_lshr_b32 {sT0}, {sU0}, 1")
e(f"s_lshl_b32 {sT1}, {sH}, 1")
e(f"s_add_u32 {sT0}, {sT0}, {sT1}")
e(f"s_lshl_b32 {sT0}, {sT0}, 8")
e(f"s_add_u32 {sU4}, {sT0}, {W_ML}")
lds_wait(F_VISS, 4, 4, 11)
lds_wait(F_SDONE, 4, 4, 11)
stamp(2)
e(f"buffer_load_dwordx2 v[8:9], v3, {srd(SRD_WS)}, {sU4} offen sc1")
for s in range(2):
    for r in range(8):
        q = WI+32*s+4*r
        e(f"s_add_u32 {sT1}, {sU3}, {(64*s+r)*896}")
        e(f"buffer_load_dwordx4 v[{q}:{q+3}], v2, {srd(SRD_A)}, {sT1} offen nt")
e("s_waitcnt vmcnt(16)")
e(f"s_mov_b32 {sCNT}, 0")
lab("L_mlchk")
e("v_cmp_eq_u32 vcc, -1, v8")
e("v_cmp_eq_u32 s[86:87], -1, v9")
e("s_or_b64 vcc, vcc, s[86:87]")
e("s_cmp_eq_u64 vcc, 0")
e("s_cbranch_scc1 L_mlgot")
e(f"buffer_load_dwordx2 v[8:9], v3, {srd(SRD_WS)}, {sU4} offen sc1")
e("s_waitcnt vmcnt(0)")
e(f"s_add_u32 {sCNT}, {sCNT}, 1")
e(f"s_cmp_lt_u32 {sCNT}, {SPIN_LIMIT}")
e("s_cbranch_scc1 L_mlchk")
lab("L_mlgot")
stamp(3)
e("v_cmp_gt_u32 vcc, 32, v0")
e("v_mov_b32 v10, 0xff800000")
e("s_nop 0")
e("v_cndmask_b32 v8, v10, v8, vcc")
e("v_cndmask_b32 v9, 0, v9, vcc")
e("v_mov_b32 v10, v8")
allreduce("v_max_f32", 10, 11)
e("v_sub_f32 v8, v8, v10")
e("v_exp_f32 v8, v8")
e("s_nop 0")
e("v_mul_f32 v9, v8, v9")
allreduce("v_add_f32", 9, 11)
e("v_rcp_f32 v9, v9")
e("s_nop 0")
e("v_mul_f32 v8, v8, v9")
e("v_and_b32 v10, 1, v0")
e("v_lshlrev_b32 v10, 6, v10")
e("v_lshrrev_b32 v11, 1, v0")
e("v_lshl_add_u32 v10, v11, 2, v10")
e("s_mov_b32 exec_hi, 0")
e(f"ds_write_b32 v10, v8 offset:{L_WL}")
e("s_mov_b64 exec, -1")
e("v_lshrrev_b32 v10, 5, v0")
e("v_lshlrev_b32 v10, 6, v10")
for k in range(4):
    e(f"ds_read_b128 v[{WW+4*k}:{WW+4*k+3}], v10 offset:{L_WL+16*k}")
e("v_lshrrev_b32 v2, 5, v0")
e("v_lshlrev_b32 v2, 11, v2")
e("v_and_b32 v3, 31, v0")
e("v_lshl_add_u32 v2, v3, 4, v2")
e(f"s_lshl_b32 {sT0}, {sH}, 16")
e(f"s_lshl_b32 {sT1}, {sU0}, 9")
e(f"s_add_u32 {sT0}, {sT0}, {sT1}")
e(f"s_add_u32 {sU4}, {sT0}, {W_OP}")
e("s_waitcnt vmcnt(8)")
transpose_set(WI, WB)
e("s_waitcnt vmcnt(0)")
transpose_set(WI+32, WB+32)
e(f"s_mov_b32 {sCNT}, 0")
e("s_waitcnt lgkmcnt(0)")
stamp(4)
lab("L_opoll")
for u in range(16):
    e(f"s_add_u32 {sT1}, {sU4}, {4096*u}")
    e(f"buffer_load_dwordx4 v[{WI+4*u}:{WI+4*u+3}], v2, {srd(SRD_WS)}, {sT1} offen sc1")
for u in range(16):
    e(f"s_waitcnt vmcnt({15-u})")
    for d in range(4):
        if u == 0: e(f"v_mul_f32 v{8+d}, v{WW}, v{WI+d}")
        else: e(f"v_fmac_f32 v{8+d}, v{WW+u}, v{WI+4*u+d}")
e("v_add_f32 v12, v8, v9")
e("v_add_f32 v13, v10, v11")
e("v_add_f32 v12, v12, v13")
e("v_cmp_u_f32 vcc, v12, v12")
e("s_cmp_eq_u64 vcc, 0")
e("s_cbranch_scc1 L_ogot")
e("s_mov_b64 s[86:87], 0")
for u in range(16):
    for d in range(4):
        e(f"v_cmp_eq_u32 vcc, -1, v{WI+4*u+d}")
        e("s_or_b64 s[86:87], s[86:87], vcc")
e("s_cmp_eq_u64 s[86:87], 0")
e("s_cbranch_scc1 L_ogot")
e(f"s_add_u32 {sCNT}, {sCNT}, 1")
e(f"s_cmp_lt_u32 {sCNT}, {SPIN_LIMIT}")
e("s_cbranch_scc1 L_opoll")
lab("L_ogot")
stamp(5)
for d in range(4): e(f"v_mov_b32 v{12+d}, v{8+d}")
e("s_nop 1")
for d in range(4): e(f"v_permlane32_swap_b32 v{8+d}, v{12+d}")
e("s_nop 1")
for d in range(4): e(f"v_add_f32 v{8+d}, v{8+d}, v{12+d}")
e("v_cvt_pk_bf16_f32 v8, v8, v9")
e("v_cvt_pk_bf16_f32 v9, v10, v11")
e("v_lshlrev_b32 v10, 3, v3")
e("s_mov_b32 exec_hi, 0")
e(f"ds_write_b64 v10, v[8:9] offset:{L_OL}")
e("s_mov_b64 exec, -1")
e("v_bfe_u32 v10, v0, 1, 1")
e("v_lshrrev_b32 v11, 4, v0")
e("v_lshl_add_u32 v10, v11, 1, v10")
e("v_lshlrev_b32 v10, 4, v10")
e(f"ds_read_b128 v[16:19], v10 offset:{L_OL}")
e(f"ds_read_b128 v[20:23], v10 offset:{L_OL+128}")
e("s_waitcnt lgkmcnt(0)")
WDA = 32
mfma_set(WDA, 16, WB, True)
mfma_set(WDA, 20, WB+32, False)
e("v_and_b32 v10, 7, v0")
e("v_lshlrev_b32 v10, 5, v10")
e("s_nop 3")
for rp in range(8):
    if rp == 7: e("s_nop 3")
    e(f"v_add_f32_dpp v{64+rp}, v{WDA+4*rp+2}, v{WDA+4*rp} row_shl:8 row_mask:0xf bank_mask:0xf")
e("s_mov_b64 exec, 0xff")
e(f"buffer_store_dwordx4 v[64:67], v10, {srd(SRD_WS)}, {sU2} offen sc1")
e(f"buffer_store_dwordx4 v[68:71], v10, {srd(SRD_WS)}, {sU2} offen offset:16 sc1")
e("s_mov_b64 exec, -1")
stamp(6)
if PROFILE:
    e(f"s_mov_b32 s{sSTAMP+14}, {sCNT}"); e(f"s_mov_b32 s{sSTAMP+15}, 0")
stamps_out(8)
e("s_endpgm")

lab("L_final")
e("s_barrier")
e("s_waitcnt vmcnt(0)")
lds_signal(F_CLR, 4, 5)
e(f"s_sub_u32 {sT0}, {sJ}, 28")
e(f"s_lshl_b32 {sT0}, {sT0}, 3")
e(f"s_add_u32 {sU0}, {sT0}, {sH}")
e(f"s_cmp_ge_u32 {sU0}, 28")
e("s_cbranch_scc1 L_end")
stamp(1)
mk_srd(SRD_A, pX, 896)
mk_srd(SRD_B, pB2, 896)
mk_srd(SRD_C, pOUT, 896)
e("v_and_b32 v2, 3, v0")
e("v_lshlrev_b32 v2, 2, v2")
e("v_bfe_u32 v3, v0, 5, 1")
e("v_lshl_add_u32 v2, v3, 1, v2")
e("v_bfe_u32 v3, v0, 4, 1")
e("v_add_u32 v2, v2, v3")
e(f"s_lshl_b32 {sT0}, {sU0}, 4")
e(f"v_add_u32 v2, {sT0}, v2")
e("v_lshlrev_b32 v2, 1, v2")
e(f"buffer_load_ushort v12, v2, {srd(SRD_A)}, 0 offen")
e(f"buffer_load_ushort v13, v2, {srd(SRD_B)}, 0 offen")
e("s_waitcnt lgkmcnt(0)")
mk_tag(None)
e(f"v_mov_b32 v7, {sTAG}")
e(f"s_mov_b32 {sT1}, {W_READY}")
lds_wait(F_KISS, 4, 4, 11)
e(f"s_mov_b32 {sCNT}, 0")
lab("L_rdy")
e(f"buffer_load_dwordx4 v[8:11], v6, {srd(SRD_WS)}, {sT1} offen sc1")
e("s_waitcnt vmcnt(0)")
for k in range(4): e(f"v_xor_b32 v{8+k}, v{8+k}, v7")
e("v_or_b32 v8, v8, v9")
e("v_or_b32 v10, v10, v11")
e("v_or_b32 v8, v8, v10")
e("v_cmp_lt_u32 vcc, 7, v8")
e("s_cmp_eq_u64 vcc, 0")
e("s_cbranch_scc1 L_rdy_ok")
e("s_sleep 8")
e(f"s_add_u32 {sCNT}, {sCNT}, 1")
e(f"s_cmp_lt_u32 {sCNT}, {SPIN_LIMIT}")
e("s_cbranch_scc1 L_rdy")
lab("L_rdy_ok")
stamp(2)
e(f"s_cmp_lg_u32 {sU0}, 0")
e("s_cbranch_scc1 L_noep")
e("s_mov_b64 exec, 1")
e(f"buffer_store_dword v7, v4, {srd(SRD_WS)}, 0 offen sc1")
e("s_mov_b64 exec, -1")
lab("L_noep")
e("v_lshrrev_b32 v3, 2, v0")
e("v_lshlrev_b32 v3, 11, v3")
e("v_and_b32 v7, 3, v0")
e("v_lshl_add_u32 v3, v7, 4, v3")
e(f"s_lshl_b32 {sU1}, {sU0}, 6")
e(f"s_add_u32 {sU1}, {sU1}, {W_AP}")
e("v_lshlrev_b32 v13, 16, v13")
e("v_lshlrev_b32 v12, 16, v12")
lds_wait(F_VISS, 4, 4, 11)
lds_wait(F_SDONE, 4, 4, 11)
stamp(3)
e(f"s_mov_b32 {sCNT}, 0")
lab("L_fpoll")
for u in range(4):
    e(f"s_add_u32 {sT1}, {sU1}, {16*2048*u}")
    if u == 3: e("s_mov_b32 exec_hi, 0x0000ffff")
    e(f"buffer_load_dwordx4 v[{WI+4*u}:{WI+4*u+3}], v3, {srd(SRD_WS)}, {sT1} offen sc1")
e("s_mov_b64 exec, -1")
e("s_waitcnt vmcnt(0)")
e("s_mov_b32 exec_lo, 0")
e("s_mov_b32 exec_hi, 0xffff0000")
for d in range(4): e(f"v_mov_b32 v{WI+12+d}, 0")
e("s_mov_b64 exec, -1")
for d in range(4):
    e(f"v_add_f32 v{100+d}, v{WI+d}, v{WI+4+d}")
    e(f"v_add_f32 v{104+d}, v{WI+8+d}, v{WI+12+d}")
e("v_add_f32 v14, v100, v101")
e("v_add_f32 v15, v102, v103")
e("v_add_f32 v14, v14, v15")
e("v_add_f32 v15, v104, v105")
e("v_add_f32 v14, v14, v15")
e("v_add_f32 v15, v106, v107")
e("v_add_f32 v14, v14, v15")
e("v_cmp_u_f32 vcc, v14, v14")
e("s_cmp_eq_u64 vcc, 0")
e("s_cbranch_scc1 L_fgot")
e("s_mov_b64 s[86:87], 0")
for i in range(16):
    e(f"v_cmp_eq_u32 vcc, -1, v{WI+i}")
    e("s_or_b64 s[86:87], s[86:87], vcc")
e("s_cmp_eq_u64 s[86:87], 0")
e("s_cbranch_scc1 L_fgot")
e(f"s_add_u32 {sCNT}, {sCNT}, 1")
e(f"s_cmp_lt_u32 {sCNT}, {SPIN_LIMIT}")
e("s_cbranch_scc1 L_fpoll")
lab("L_fgot")
stamp(4)
for r in (4, 8):
    e("s_nop 1")
    for d in range(8):
        e(f"v_add_f32_dpp v{100+d}, v{100+d}, v{100+d} row_ror:{r} row_mask:0xf bank_mask:0xf")
e("s_nop 1")
for lo in (100, 104):
    e(f"v_permlane32_swap_b32 v{lo}, v{lo+2}")
    e(f"v_permlane32_swap_b32 v{lo+1}, v{lo+3}")
e("s_nop 1")
for lo in (100, 104):
    e(f"v_add_f32 v{lo}, v{lo}, v{lo+2}")
    e(f"v_add_f32 v{lo+1}, v{lo+1}, v{lo+3}")
e("s_nop 1")
for lo in (100, 104):
    e(f"v_permlane16_swap_b32 v{lo}, v{lo+1}")
e("s_nop 1")
for lo in (100, 104):
    e(f"v_add_f32 v{lo}, v{lo}, v{lo+1}")
bf16r(104, 104)
bf16r(100, 100)
e("v_add_f32 v104, v104, v13")
e("v_add_f32 v100, v100, v12")
bf16r(104, 104)
bf16r(100, 100)
e("v_add_f32 v100, v100, v104")
e("v_cvt_pk_bf16_f32 v100, v100, v100")
e("s_mov_b32 exec_lo, 0x000f000f")
e("s_mov_b32 exec_hi, 0x000f000f")
e(f"buffer_store_short v100, v2, {srd(SRD_C)}, 0 offen")
e("s_mov_b64 exec, -1")
stamp(5)
if PROFILE:
    e(f"s_mov_b32 s{sSTAMP+14}, {sCNT}"); e(f"s_mov_b32 s{sSTAMP+15}, 0")
    e(f"s_mov_b32 s{sSTAMP+12}, 0"); e(f"s_mov_b32 s{sSTAMP+13}, 0")
stamps_out(8)
lab("L_end")
e("s_endpgm")

e(f""".section .rodata,"a"
.p2align 6
.amdhsa_kernel {NAME}_kernel
  .amdhsa_next_free_vgpr 160
  .amdhsa_next_free_sgpr 96
  .amdhsa_accum_offset 160
  .amdhsa_group_segment_fixed_size 0
  .amdhsa_kernarg_size 104
  .amdhsa_user_sgpr_count 2
  .amdhsa_user_sgpr_kernarg_segment_ptr 1
  .amdhsa_system_sgpr_workgroup_id_x 1
  .amdhsa_float_denorm_mode_32 3
.end_amdhsa_kernel""")

txt = "\n".join(x for x in out if x is not None) + "\n"
path = sys.argv[1] if len(sys.argv) > 1 else "cdna_kernels/" + NAME + ".s"
open(path, "w").write(txt)
print("wrote", path, len(txt), "bytes")
```

```python
import sys, os, struct
NAME = "parallel_sum__sliding_block_cached__dense_activation_gelu__decode"
PROFILE = int(sys.argv[2]) if len(sys.argv) > 2 else 0
OPT = dict(kv.split("=") for kv in os.environ.get("GOPT", "").split(",") if kv)
def opt(k, d): return type(d)(OPT.get(k, d))
QDELAY = opt("qdelay", 8)
QSPACE = opt("qspace", 4)
HDELAY = opt("hdelay", 8)
TLBPF = opt("tlbpf", 0)
KWIN = opt("kwin", 16)
VWIN = opt("vwin", 16)
NTRY = 4
KTRIG = opt("ktrig", 10)
W2LATE = opt("w2late", 1)
MLDELAY = opt("mldelay", 12)
KEARLY = opt("kearly", 0)
VGATE = opt("vgate", 0)
OHINT = opt("ohint", 0)
CLR = opt("clr", "sc1")
FPIPE = opt("fpipe", 1)

out = []
def e(s=""): out.append(s)
def lab(s): out.append(s + ":")
_uid = [0]
def uid(p):
    _uid[0] += 1
    return f"L_{p}_{_uid[0]}"
def f2h(x): return "0x%08x" % struct.unpack("<I", struct.pack("<f", x))[0]

F_KISS, F_VISS, F_QRDY, F_SDONE, F_XN, F_CLR, F_ORDY, F_WRDY, F_KHALF, F_QISS, F_MLP, F_VDONE, F_WQA, F_PRDY = 0, 4, 8, 12, 16, 20, 24, 28, 32, 36, 40, 44, 48, 52
L_XN = 256
L_Q = 1280
L_SC = 2304
L_OL = 4352
L_HL = 4608
L_WL = 4736
L_P = 4864
LDS_BYTES = 8192
W_EPOCH = 0
W_READY = 0x1000
W_ML = 0x2000
W_QMB = 0x5000
W_HMB = 0x1D000
W_BOFF = 0x40000
W_OP = 0x90000
W_AP = 0x110000
W_QH = 0x3000
W_HH = 0x3400
W_OF = 0x110000+0x20000
W_PROF = 0x4000000
WS_SIZE = 0x8000000
SPIN_LIMIT = 200000

NWAVES = 11
sH, sJ, sXR, sWV = "s4", "s5", "s6", "s3"
sTAG = "s7"
sT0, sT1, sT2, sT3 = "s8", "s9", "s10", "s11"
sCNT = "s12"
sSELLO, sSELHI = "s13", "s14"
sFAST = "s15"
pX, pK, pV, pWQ, pWO, pW1, pB1 = 16, 18, 20, 22, 24, 28, 30
pW2, pB2, pOUT, pDBG, pWS = 32, 34, 36, 38, 40
SRD_A, SRD_B, SRD_WS, SRD_C = 44, 48, 52, 56
sSTAMP = 60
sX7, sXS, sXW = "s76", "s77", "s78"
sU0, sU1, sU2, sU3, sU4, sU5 = "s80", "s81", "s82", "s83", "s84", "s85"

def srd(n): return f"s[{n}:{n+3}]"

def mk_srd(n, p, size, add_lo=None):
    if add_lo is None:
        e(f"s_mov_b32 s{n}, s{p}")
        e(f"s_and_b32 s{n+1}, s{p+1}, 0xffff")
    else:
        e(f"s_add_u32 s{n}, s{p}, {add_lo}")
        e(f"s_addc_u32 s{n+1}, s{p+1}, 0")
        e(f"s_and_b32 s{n+1}, s{n+1}, 0xffff")
    e(f"s_mov_b32 s{n+2}, {size}")
    e(f"s_mov_b32 s{n+3}, 0x20000")

def stamp(k):
    if PROFILE: e(f"s_memrealtime s[{sSTAMP+2*k}:{sSTAMP+2*k+1}]")

def stamps_out(n, cnt=None):
    if not PROFILE: return
    e("s_waitcnt lgkmcnt(0)")
    if cnt is not None:
        e(f"s_mov_b32 s{sSTAMP+14}, {cnt}"); e(f"s_mov_b32 s{sSTAMP+15}, 0")
        n = 8
    e("s_mov_b64 exec, 1")
    e(f"s_lshl_b32 {sT0}, s2, 4")
    e(f"s_add_u32 {sT0}, {sT0}, {sWV}")
    e(f"s_lshl_b32 {sT0}, {sT0}, 6")
    e(f"s_add_u32 {sT0}, {sT0}, {W_PROF}")
    e(f"v_mov_b32 v1, {sT0}")
    for k in range(n):
        e(f"v_mov_b32 v2, s{sSTAMP+2*k}")
        e(f"v_mov_b32 v3, s{sSTAMP+2*k+1}")
        e(f"buffer_store_dwordx2 v[2:3], v1, {srd(SRD_WS)}, 0 offen offset:{8*k}")
        e("s_nop 1")
    e("s_waitcnt vmcnt(0)")

def zero_stamps():
    if PROFILE:
        for k in range(1, 8):
            e(f"s_mov_b64 s[{sSTAMP+2*k}:{sSTAMP+2*k+1}], 0")

def lds_wait(flag, val, vz, vt, sleep=1):
    L = uid("lw"); D = uid("lwd")
    e(f"s_mov_b32 {sCNT}, 0")
    lab(L)
    e(f"ds_read_b32 v{vt}, v{vz} offset:{flag}")
    e("s_waitcnt lgkmcnt(0)")
    e(f"v_readfirstlane_b32 {sT0}, v{vt}")
    e(f"s_cmp_ge_u32 {sT0}, {val}")
    e(f"s_cbranch_scc1 {D}")
    if sleep: e(f"s_sleep {sleep}")
    e(f"s_add_u32 {sCNT}, {sCNT}, 1")
    e(f"s_cmp_lt_u32 {sCNT}, {SPIN_LIMIT*4}")
    e(f"s_cbranch_scc1 {L}")
    lab(D)

def lds_signal(flag, vz, vone):
    e("s_mov_b64 exec, 1")
    e(f"ds_add_u32 v{vz}, v{vone} offset:{flag}")
    e("s_mov_b64 exec, -1")

def bf16r(dst, src):
    e(f"v_cvt_pk_bf16_f32 v{dst}, v{src}, v{src}")
    e(f"v_lshlrev_b32 v{dst}, 16, v{dst}")

def allreduce(op, a, t):
    for r in (8, 4, 2, 1):
        e("s_nop 1")
        e(f"{op}_dpp v{a}, v{a}, v{a} row_ror:{r} row_mask:0xf bank_mask:0xf")
    e(f"v_mov_b32 v{t}, v{a}")
    e("s_nop 1")
    e(f"v_permlane16_swap_b32 v{a}, v{t}")
    e("s_nop 1")
    e(f"{op} v{a}, v{a}, v{t}")
    e(f"v_mov_b32 v{t}, v{a}")
    e("s_nop 1")
    e(f"v_permlane32_swap_b32 v{a}, v{t}")
    e("s_nop 1")
    e(f"{op} v{a}, v{a}, v{t}")

def common_scalars():
    e(f"s_lshr_b32 {sT0}, {sJ}, 2")
    e(f"s_mul_i32 {sT1}, {sH}, 5")
    e(f"s_add_u32 {sT0}, {sT0}, {sT1}")
    e(f"s_and_b32 {sT1}, {sJ}, 3")
    e(f"s_lshl_b32 {sT1}, {sT1}, 2")
    e(f"s_add_u32 {sT0}, {sT0}, {sT1}")
    e(f"s_and_b32 {sXR}, {sT0}, 15")
    e(f"s_and_b32 {sX7}, {sXR}, 7")
    e(f"s_lshr_b32 {sT0}, {sXR}, 2")
    e(f"s_lshl_b32 {sT0}, {sT0}, 3")
    e(f"s_or_b32 {sX7}, {sX7}, {sT0}")
    e(f"s_lshr_b32 {sT0}, {sXR}, 3")
    e(f"s_lshl_b32 {sT0}, {sT0}, 6")
    e(f"s_or_b32 {sX7}, {sX7}, {sT0}")
    e(f"s_and_b32 {sXS}, {sXR}, 3")
    e(f"s_add_u32 {sT0}, {sJ}, {sH}")
    e(f"s_and_b32 {sXW}, {sT0}, 3")
    e(f"s_mov_b32 {sSELLO}, 0x05040100")
    e(f"s_mov_b32 {sSELHI}, 0x07060302")

def kv_off():
    e(f"s_lshl_b32 {sT0}, {sH}, 25")
    e(f"s_lshl_b32 {sT1}, {sJ}, 16")
    e(f"s_add_u32 {sT0}, {sT0}, {sT1}")
    e(f"s_add_u32 {sT0}, {sT0}, 0x1E00000")
def kv_srd(n, p):
    kv_off()
    mk_srd(n, p, 65536, add_lo=sT0)

def transpose_set(src, dst, waits=None):
    for kp in range(4):
        if waits is not None:
            e(f"s_waitcnt vmcnt({waits[kp]})")
        a = src+8*kp; b = a+4
        for d in range(4):
            e(f"v_perm_b32 v{dst+4*(2*d)+kp}, v{b+d}, v{a+d}, {sSELLO}")
            e(f"v_perm_b32 v{dst+4*(2*d+1)+kp}, v{b+d}, v{a+d}, {sSELHI}")

def mfma_set(D, A, B, first):
    for rp in range(8):
        c = "0" if first else f"v[{D+4*rp}:{D+4*rp+3}]"
        e(f"v_mfma_f32_16x16x32_bf16 v[{D+4*rp}:{D+4*rp+3}], v[{A}:{A+3}], v[{B+4*rp}:{B+4*rp+3}], {c}")

def mk_tag():
    e(f"s_add_u32 {sTAG}, {sTAG}, 8")
    e(f"s_andn2_b32 {sTAG}, {sTAG}, 7")

GPOS = [0, 1, 2, 4, 5, 6, 8, 9]
def tile_out_granules(D, G, vtag):
    e("s_nop 3")
    for rp in range(8):
        if rp == 7: e("s_nop 3")
        e(f"v_add_f32_dpp v{G+GPOS[rp]}, v{D+4*rp+2}, v{D+4*rp} row_shl:8 row_mask:0xf bank_mask:0xf")
    for k in (3, 7, 10, 11):
        e(f"v_mov_b32 v{G+k}, v{vtag}")

def publish_granules(G, vaddr, soff, slotB):
    e("s_mov_b64 exec, 0xff")
    if slotB:
        e(f"s_add_u32 {sT3}, {soff}, {W_BOFF}")
        for k in range(3):
            e(f"buffer_store_dwordx4 v[{G+4*k}:{G+4*k+3}], v{vaddr}, {srd(SRD_WS)}, {sT3} offen offset:{128*k} sc1")
    else:
        for k in range(3):
            e(f"buffer_store_dwordx4 v[{G+4*k}:{G+4*k+3}], v{vaddr}, {srd(SRD_WS)}, {soff} offen offset:{128*k}")
    e("s_mov_b64 exec, -1")

def nan_or_sentinel_check(accs, regs, okl, retry_l, cnt, tmp1, tmp2):
    e(f"v_add_f32 v{tmp1}, v{accs[0]}, v{accs[1]}")
    for a in accs[2:]:
        e(f"v_add_f32 v{tmp1}, v{tmp1}, v{a}")
    e(f"v_cmp_u_f32 vcc, v{tmp1}, v{tmp1}")
    e("s_cmp_eq_u64 vcc, 0")
    e(f"s_cbranch_scc1 {okl}")
    e(f"v_max_u32 v{tmp1}, v{regs[0]}, v{regs[1]}")
    rest = regs[2:]
    for i in range(0, len(rest)-1, 2):
        e(f"v_max3_u32 v{tmp1}, v{tmp1}, v{rest[i]}, v{rest[i+1]}")
    if len(rest) % 2: e(f"v_max_u32 v{tmp1}, v{tmp1}, v{rest[-1]}")
    e(f"v_cmp_eq_u32 vcc, -1, v{tmp1}")
    e("s_cmp_eq_u64 vcc, 0")
    e(f"s_cbranch_scc1 {okl}")
    e(f"s_add_u32 {cnt}, {cnt}, 1")
    e(f"s_cmp_lt_u32 {cnt}, {SPIN_LIMIT}")
    e(f"s_cbranch_scc1 {retry_l}")

e(f"""; Fused decode kernel: LN -> (GQA sliding-window attention + Wo) + (GELU FFN) + residual
; @launch grid=(256,1,1) block=({NWAVES*64},1,1) lds={LDS_BYTES}
.amdgcn_target "amdgcn-amd-amdhsa--gfx950"
.text
.globl {NAME}_kernel
.p2align 8
.type {NAME}_kernel,@function
{NAME}_kernel:""")
e("s_cmp_ge_u32 s2, 256")
e("s_cbranch_scc1 L_end")
e("s_load_dwordx16 s[16:31], s[0:1], 0")
e("s_load_dwordx8 s[32:39], s[0:1], 64")
e("s_load_dwordx2 s[40:41], s[0:1], 96")
stamp(0)
zero_stamps()
e("v_lshrrev_b32 v1, 6, v0")
e("v_and_b32 v0, 63, v0")
e(f"v_readfirstlane_b32 {sWV}, v1")
e(f"s_and_b32 {sH}, s2, 7")
e(f"s_lshr_b32 {sJ}, s2, 3")
common_scalars()
e(f"s_cmp_eq_u32 {sWV}, 0")
e("s_cbranch_scc1 L_roleQ")
e(f"s_cmp_lt_u32 {sWV}, 5")
e("s_cbranch_scc1 L_roleK")
e(f"s_cmp_lt_u32 {sWV}, 9")
e("s_cbranch_scc1 L_roleV")
e(f"s_cmp_eq_u32 {sWV}, 9")
e("s_cbranch_scc1 L_roleF")
e("s_branch L_roleW")

lab("L_roleQ")
e("s_setprio 3")
XD = 8; FX = 12; TD = 24; TB = 88; TDA = 120; TA = 152
e("v_lshlrev_b32 v2, 2, v0")
e("v_mov_b32 v3, 0")
e("ds_write_b32 v2, v3")
e("v_lshlrev_b32 v4, 4, v0")
e("v_lshrrev_b32 v5, 3, v0")
e("v_min_u32 v6, 5, v5")
e("v_and_b32 v7, 7, v0")
e("v_lshlrev_b32 v7, 4, v7")
e("v_lshl_add_u32 v5, v5, 16, v7")
e("v_lshl_add_u32 v6, v6, 16, v7")
e(f"s_lshr_b32 {sU4}, {sJ}, 3")
e(f"s_mul_i32 {sU2}, {sU4}, {112*8192}")
e(f"s_lshl_b32 {sT1}, {sH}, 10")
e(f"s_add_u32 {sU2}, {sU2}, {sT1}")
e(f"s_and_b32 {sT1}, {sJ}, 7")
e(f"s_lshl_b32 {sT1}, {sT1}, 7")
e(f"s_add_u32 {sU2}, {sU2}, {sT1}")
e("s_waitcnt lgkmcnt(0)")
mk_srd(SRD_A, pX, 896)
mk_srd(SRD_B, pWQ, 448*8192)
e(f"buffer_load_dwordx4 v[{XD}:{XD+3}], v4, {srd(SRD_A)}, 0 offen")
for s in range(2):
    for r in range(8):
        q = TD+32*s+4*r
        e(f"s_add_u32 {sT1}, {sU2}, {(64*s+r)*8192}")
        e(f"buffer_load_dwordx4 v[{q}:{q+3}], v{5+s}, {srd(SRD_B)}, {sT1} offen nt")
e(f"s_load_dword {sTAG}, s[{pWS}:{pWS+1}], 0")
mk_srd(SRD_WS, pWS, WS_SIZE)
e("s_barrier")
stamp(1)
e(f"s_getreg_b32 {sU0}, hwreg(HW_REG_XCC_ID, 0, 3)")
e("s_waitcnt vmcnt(16)")
stamp(2)
for k in range(4):
    e(f"v_lshlrev_b32 v{FX+2*k}, 16, v{XD+k}")
    e(f"v_and_b32 v{FX+2*k+1}, 0xffff0000, v{XD+k}")
e(f"v_add_f32 v2, v{FX}, v{FX+1}")
for k in range(2, 8):
    e(f"v_add_f32 v2, v2, v{FX+k}")
allreduce("v_add_f32", 2, 3)
e(f"v_mul_f32 v2, {f2h(1.0/448)}, v2")
e(f"v_sub_f32 v6, v{FX}, v2")
e("v_mul_f32 v7, v6, v6")
for k in range(1, 8):
    e(f"v_sub_f32 v6, v{FX+k}, v2")
    e("v_fmac_f32 v7, v6, v6")
e("v_cmp_gt_u32 vcc, 56, v0")
e("s_nop 1")
e("v_cndmask_b32 v7, 0, v7, vcc")
allreduce("v_add_f32", 7, 3)
e(f"v_mul_f32 v7, {f2h(1.0/448)}, v7")
bf16r(2, 2)
bf16r(7, 7)
e("v_add_f32 v7, 0x3727c5ac, v7")
bf16r(7, 7)
e("v_sqrt_f32 v7, v7")
e("s_nop 0")
bf16r(7, 7)
e("v_rcp_f32 v7, v7")
for k in range(4):
    e(f"v_sub_f32 v{FX+2*k}, v{FX+2*k}, v2")
    e(f"v_sub_f32 v{FX+2*k+1}, v{FX+2*k+1}, v2")
    e(f"v_cvt_pk_bf16_f32 v6, v{FX+2*k}, v{FX+2*k+1}")
    e(f"v_lshlrev_b32 v{FX+2*k}, 16, v6")
    e(f"v_and_b32 v{FX+2*k+1}, 0xffff0000, v6")
    e(f"v_mul_f32 v{FX+2*k}, v{FX+2*k}, v7")
    e(f"v_mul_f32 v{FX+2*k+1}, v{FX+2*k+1}, v7")
    e(f"v_cvt_pk_bf16_f32 v{XD+k}, v{FX+2*k}, v{FX+2*k+1}")
    e(f"v_cndmask_b32 v{XD+k}, 0, v{XD+k}, vcc")
e(f"ds_write_b128 v4, v[{XD}:{XD+3}] offset:{L_XN}")
e("v_mov_b32 v3, 0")
e("v_mov_b32 v6, 1")
lds_signal(F_XN, 3, 6)
e("v_bfe_u32 v2, v0, 1, 1")
e("v_lshrrev_b32 v7, 4, v0")
e("v_lshl_add_u32 v2, v7, 1, v2")
e("v_lshlrev_b32 v2, 4, v2")
e(f"s_mul_i32 {sT0}, {sU4}, 224")
e(f"v_add_u32 v2, {sT0}, v2")
e(f"ds_read_b128 v[{TA}:{TA+3}], v2 offset:{L_XN}")
e(f"ds_read_b128 v[{TA+4}:{TA+7}], v2 offset:{L_XN+128}")
e("v_cmp_gt_u32 vcc, 48, v0")
e("s_waitcnt lgkmcnt(0)")
for k in range(4):
    e(f"v_cndmask_b32 v{TA+4+k}, 0, v{TA+4+k}, vcc")
stamp(3)
e("s_waitcnt vmcnt(8)")
e("v_mov_b32 v6, 1")
lds_signal(F_WQA, 3, 6)
transpose_set(TD, TB)
e("s_nop 1")
mfma_set(TDA, TA, TB, True)
transpose_set(TD+32, TB, waits=[6, 4, 2, 0])
e("s_nop 1")
mfma_set(TDA, TA+4, TB, False)
mk_tag()
e(f"s_or_b32 {sU1}, {sTAG}, {sU0}")
e(f"v_mov_b32 v9, {sU1}")
e(f"s_mul_i32 {sT0}, {sH}, 12288")
e(f"s_add_u32 {sU3}, {sT0}, {W_QMB}")
e(f"s_mul_i32 {sT1}, {sJ}, 384")
e(f"s_add_u32 {sU2}, {sU3}, {sT1}")
G = 12
tile_out_granules(TDA, G, 9)
publish_granules(G, 4, sU2, False)
stamp(4)
e("v_lshrrev_b32 v2, 3, v0")
e("v_mul_u32_u24 v2, 384, v2")
e("v_and_b32 v7, 7, v0")
e("v_lshl_add_u32 v2, v7, 4, v2")
e(f"v_mov_b32 v10, {sTAG}")
e(f"v_mov_b32 v11, {sU1}")
e(f"s_mov_b32 {sU5}, 0")
e(f"s_mov_b32 {sU0}, 0")
GD = 24
lds_wait(F_KHALF, 4, 3, 7)
stamp(5)
lab("L_qpoll")
e(f"s_cmp_ge_u32 {sU5}, {NTRY}")
e(f"s_cselect_b32 {sT2}, {sU5}, 0")
e(f"s_and_b32 {sT2}, {sT2}, 1")
e(f"s_mul_i32 {sT2}, {sT2}, {W_BOFF}")
e(f"s_add_u32 {sT0}, {sT2}, {sU3}")
for rq in range(4):
    e(f"s_add_u32 {sT1}, {sT0}, {3072*rq}")
    for k in range(3):
        r = GD+12*rq+4*k
        e(f"buffer_load_dwordx4 v[{r}:{r+3}], v2, {srd(SRD_WS)}, {sT1} offen offset:{128*k} sc1")
e(f"s_cmp_lg_u32 {sU5}, 0")
e("s_cbranch_scc1 L_q_nosig")
e("v_mov_b32 v6, 1")
lds_signal(F_QISS, 3, 6)
lab("L_q_nosig")
e("s_waitcnt vmcnt(0)")
e(f"v_xor_b32 v6, v{GD+3}, v10")
for i in range(1, 12):
    e(f"v_xor_b32 v7, v{GD+4*i+3}, v10")
    e("v_or_b32 v6, v6, v7")
e("v_cmp_lt_u32 vcc, 7, v6")
e("s_cmp_eq_u64 vcc, 0")
e("s_cbranch_scc1 L_qgot")
e(f"s_add_u32 {sU5}, {sU5}, 1")
e(f"s_cmp_lg_u32 {sU5}, {NTRY}")
e("s_cbranch_scc1 L_q_nob")
def q_pub_b():
    publish_granules(G, 4, sU2, True)
    e(f"s_mov_b32 {sU0}, 1")
q_pub_b()
lab("L_q_nob")
e(f"s_cmp_lt_u32 {sU5}, {SPIN_LIMIT}")
e("s_cbranch_scc1 L_qpoll")
lab("L_qgot")
e(f"v_xor_b32 v5, v{GD+3}, v11")
for rq in range(1, 4):
    e(f"v_xor_b32 v6, v{GD+12*rq+3}, v11")
    e("v_or_b32 v5, v5, v6")
for i in range(8):
    p = GPOS[i]
    e(f"v_add_f32 v{GD+p}, v{GD+p}, v{GD+12+p}")
    e(f"v_add_f32 v{GD+24+p}, v{GD+24+p}, v{GD+36+p}")
for i in range(8):
    p = GPOS[i]
    e(f"v_add_f32 v{GD+p}, v{GD+p}, v{GD+24+p}")
for k in range(4):
    e(f"v_cvt_pk_bf16_f32 v{GD+12+k}, v{GD+GPOS[2*k]}, v{GD+GPOS[2*k+1]}")
e(f"ds_write_b128 v4, v[{GD+12}:{GD+15}] offset:{L_Q}")
e("v_cmp_ne_u32 vcc, 0, v5")
e("s_cmp_eq_u64 vcc, 0")
e(f"s_cselect_b32 {sT0}, 2, 1")
e(f"v_mov_b32 v6, {sT0}")
e("s_mov_b64 exec, 1")
e(f"ds_write_b32 v3, v6 offset:{F_QRDY}")
e("s_mov_b64 exec, -1")
stamp(6)
e(f"s_cmp_lg_u32 {sU0}, 0")
e("s_cbranch_scc1 L_q_bdone2")
q_pub_b()
lab("L_q_bdone2")
stamps_out(7, sU5)
e("s_endpgm")

lab("L_roleK")
KD = 16; QF = 80; KA = 96
e(f"s_sub_u32 {sU0}, {sWV}, 1")
e(f"s_and_b32 {sT0}, {sX7}, 7")
e("v_and_b32 v2, 7, v0")
e(f"v_xor_b32 v2, {sT0}, v2")
e("v_lshlrev_b32 v2, 9, v2")
e("v_lshrrev_b32 v3, 3, v0")
e("v_lshl_or_b32 v2, v3, 4, v2")
e("v_mov_b32 v4, 0")
e("v_mov_b32 v5, 1")
e("v_and_b32 v6, 1, v0")
e("v_lshlrev_b32 v6, 9, v6")
e("v_bfe_u32 v7, v0, 1, 1")
e("v_lshrrev_b32 v8, 4, v0")
e("v_lshl_add_u32 v7, v8, 1, v7")
e("v_lshl_add_u32 v6, v7, 4, v6")
e("v_bfe_u32 v9, v0, 1, 1")
e("v_lshlrev_b32 v9, 10, v9")
e("v_and_b32 v10, 1, v0")
e("v_lshl_or_b32 v9, v10, 9, v9")
e("v_bfe_u32 v10, v0, 4, 1")
e("v_lshl_or_b32 v9, v10, 4, v9")
e(f"s_lshl_b32 {sT0}, {sU0}, 7")
e(f"v_add_u32 v9, {sT0}, v9")
e(f"s_and_b32 {sU1}, {sX7}, 0x78")
e(f"s_lshl_b32 {sU2}, {sU0}, 5")
kv_off()
e(f"s_mov_b32 {sU3}, {sT0}")
e("s_waitcnt lgkmcnt(0)")
mk_srd(SRD_A, pK, 65536, add_lo=sU3)
mk_srd(SRD_WS, pWS, WS_SIZE)
e("s_barrier")
stamp(1)
for rgp in range(4):
    e(f"s_add_u32 {sT2}, {sU2}, {8*rgp}")
    e(f"s_xor_b32 {sT2}, {sT2}, {sU1}")
    e(f"s_lshl_b32 {sT2}, {sT2}, 9")
    for u in range(4):
        e(f"s_xor_b32 {sT1}, {sXS}, {u}")
        e(f"s_lshl_b32 {sT1}, {sT1}, 7")
        e(f"s_or_b32 {sT1}, {sT1}, {sT2}")
        r = KD+16*rgp+4*u
        if 4*rgp+u == KEARLY:
            e(f"s_mov_b32 {sT3}, {sT1}")
            lds_wait(F_WQA, 1, 4, 11)
            e(f"s_mov_b32 {sT1}, {sT3}")
        if 4*rgp+u >= KWIN: e(f"s_waitcnt vmcnt({KWIN-1})")
        e(f"buffer_load_dwordx4 v[{r}:{r+3}], v2, {srd(SRD_A)}, {sT1} offen nt")
lds_signal(F_KISS, 4, 5)
e(f"s_load_dword {sTAG}, s[{pWS}:{pWS+1}], 0")
e(f"s_waitcnt vmcnt({KTRIG})")
lds_signal(F_KHALF, 4, 5)
stamp(2)
if PROFILE:
    e("s_waitcnt vmcnt(0)")
    e(f"s_memrealtime s[{sSTAMP+2}:{sSTAMP+3}]")
lds_wait(F_QRDY, 1, 4, 11)
e(f"s_mov_b32 {sFAST}, {sT0}")
for u in range(4):
    e(f"s_xor_b32 {sT1}, {sXS}, {u}")
    e(f"s_lshl_b32 {sT1}, {sT1}, 7")
    e(f"s_add_u32 {sT1}, {sT1}, {L_Q}")
    e(f"v_add_u32 v11, {sT1}, v6")
    e(f"ds_read_b128 v[{QF+4*u}:{QF+4*u+3}], v11")
e("s_waitcnt vmcnt(0) lgkmcnt(0)")
for u in range(4):
    for rgp in range(4):
        r = KD+16*rgp+4*u
        c = "0" if u == 0 else f"v[{KA+4*rgp}:{KA+4*rgp+3}]"
        e(f"v_mfma_f32_16x16x32_bf16 v[{KA+4*rgp}:{KA+4*rgp+3}], v[{r}:{r+3}], v[{QF+4*u}:{QF+4*u+3}], {c}")
e("s_nop 7")
e("s_mov_b32 exec_lo, 0x00030003")
e("s_mov_b32 exec_hi, 0x000C000C")
for rgp in range(4):
    e(f"ds_write_b128 v9, v[{KA+4*rgp}:{KA+4*rgp+3}] offset:{L_SC+32*rgp}")
e("s_mov_b64 exec, -1")
lds_signal(F_SDONE, 4, 5)
stamp(3)
def reduce32(op, a, t):
    for r in (8, 4, 2, 1):
        e("s_nop 1")
        e(f"{op}_dpp v{a}, v{a}, v{a} row_ror:{r} row_mask:0xf bank_mask:0xf")
    e(f"v_mov_b32 v{t}, v{a}")
    e("s_nop 1")
    e(f"v_permlane16_swap_b32 v{a}, v{t}")
    e("s_nop 1")
    e(f"{op} v{a}, v{a}, v{t}")
e(f"s_cmp_lg_u32 {sU0}, 0")
e("s_cbranch_scc1 L_k_nosoft")
e("v_lshrrev_b32 v6, 5, v0")
e("v_and_b32 v7, 31, v0")
e("v_lshlrev_b32 v8, 9, v6")
e("v_lshl_add_u32 v8, v7, 4, v8")
e("v_lshlrev_b32 v9, 8, v6")
e("v_lshl_add_u32 v16, v7, 3, v9")
C_EXP = 0.0625*1.4426950408889634
e(f"s_mov_b32 {sT2}, {f2h(C_EXP)}")
e(f"s_lshl_b32 {sT1}, {sH}, 9")
e(f"s_lshl_b32 {sT3}, {sJ}, 3")
e(f"s_add_u32 {sT1}, {sT1}, {sT3}")
e(f"s_add_u32 {sU1}, {sT1}, {W_ML}")
lds_wait(F_SDONE, 4, 4, 11, sleep=0)
e(f"ds_read_b128 v[20:23], v8 offset:{L_SC}")
e(f"ds_read_b128 v[24:27], v8 offset:{L_SC+1024}")
e("s_waitcnt lgkmcnt(0)")
for k in range(4): e(f"v_add_f32 v{20+k}, v{20+k}, v{24+k}")
e("v_cvt_pk_bf16_f32 v24, v20, v21")
e("v_cvt_pk_bf16_f32 v25, v22, v23")
e("v_lshlrev_b32 v20, 16, v24")
e("v_and_b32 v21, 0xffff0000, v24")
e("v_lshlrev_b32 v22, 16, v25")
e("v_and_b32 v23, 0xffff0000, v25")
e("v_max3_f32 v10, v20, v21, v22")
e("v_max_f32 v10, v10, v23")
reduce32("v_max_f32", 10, 11)
for k in range(4): e(f"v_sub_f32 v{20+k}, v{20+k}, v10")
for k in range(4): e(f"v_mul_f32 v{20+k}, {sT2}, v{20+k}")
for k in range(4): e(f"v_exp_f32 v{20+k}, v{20+k}")
e("s_nop 0")
e("v_cvt_pk_bf16_f32 v24, v20, v21")
e("v_cvt_pk_bf16_f32 v25, v22, v23")
e(f"ds_write_b64 v16, v[24:25] offset:{L_P}")
lds_signal(F_PRDY, 4, 5)
e("v_add_f32 v11, v20, v21")
e("v_add_f32 v12, v22, v23")
e("v_add_f32 v11, v11, v12")
reduce32("v_add_f32", 11, 12)
e(f"v_mul_f32 v10, {sT2}, v10")
e("s_mov_b32 exec_lo, 1")
e("s_mov_b32 exec_hi, 1")
e(f"s_cmp_eq_u32 {sFAST}, 2")
e("s_cbranch_scc1 L_k_mlfast")
e(f"buffer_store_dwordx2 v[10:11], v9, {srd(SRD_WS)}, {sU1} offen sc1")
e("s_branch L_k_mldone")
lab("L_k_mlfast")
e(f"buffer_store_dwordx2 v[10:11], v9, {srd(SRD_WS)}, {sU1} offen")
lab("L_k_mldone")
e("s_mov_b64 exec, -1")
if PROFILE: e(f"s_memrealtime s[{sSTAMP+4}:{sSTAMP+5}]")
lab("L_k_nosoft")
e(f"s_cmp_ge_u32 {sJ}, 28")
e("s_cbranch_scc1 L_k_end")
e(f"s_and_b32 {sU1}, {sJ}, 3")
mk_tag()
e(f"v_mov_b32 v12, {sTAG}")
e("v_and_b32 v13, 31, v0")
e("v_lshlrev_b32 v13, 2, v13")
e(f"s_lshl_b32 {sT0}, {sH}, 7")
e(f"s_add_u32 {sU2}, {sT0}, {W_READY}")
e("v_lshlrev_b32 v14, 1, v13")
e(f"s_lshr_b32 {sT0}, {sU1}, 1")
e(f"s_lshl_b32 {sT1}, {sH}, 1")
e(f"s_add_u32 {sT0}, {sT0}, {sT1}")
e(f"s_lshl_b32 {sT0}, {sT0}, 8")
e(f"s_add_u32 {sU4}, {sT0}, {W_ML}")
e("v_lshrrev_b32 v15, 3, v0")
e("v_lshlrev_b32 v16, 11, v15")
e("v_and_b32 v17, 7, v0")
e("v_lshl_add_u32 v16, v17, 4, v16")
e(f"s_lshl_b32 {sT0}, {sH}, 16")
e(f"s_lshl_b32 {sT1}, {sU1}, 9")
e(f"s_add_u32 {sT0}, {sT0}, {sT1}")
e(f"s_lshl_b32 {sT1}, {sU0}, 7")
e(f"s_add_u32 {sT0}, {sT0}, {sT1}")
e(f"s_add_u32 {sU5}, {sT0}, {W_OP}")
e("v_lshlrev_b32 v15, 2, v15")
e("v_lshlrev_b32 v18, 2, v17")
e("v_bfe_u32 v19, v0, 5, 1")
e("v_lshl_add_u32 v18, v19, 1, v18")
e("v_bfe_u32 v19, v0, 4, 1")
e("v_add_u32 v18, v18, v19")
e("v_lshlrev_b32 v18, 1, v18")
e(f"s_lshl_b32 {sT0}, {sU0}, 6")
e(f"v_add_u32 v18, {sT0}, v18")
e(f"s_mov_b32 {sCNT}, 0")
lab("L_k_rdy")
e(f"buffer_load_dword v20, v13, {srd(SRD_WS)}, {sU2} offen sc1")
e("s_waitcnt vmcnt(0)")
e("v_xor_b32 v20, v20, v12")
e("v_cmp_lt_u32 vcc, 7, v20")
e("s_cmp_eq_u64 vcc, 0")
e("s_cbranch_scc1 L_k_rdy_ok")
e("s_sleep 4")
e(f"s_add_u32 {sCNT}, {sCNT}, 1")
e(f"s_cmp_lt_u32 {sCNT}, {SPIN_LIMIT}")
e("s_cbranch_scc1 L_k_rdy")
lab("L_k_rdy_ok")
lds_wait(F_VDONE, 4, 4, 11, sleep=0)
e(f"s_mov_b32 {sCNT}, 0")
OG = 32
lab("L_opoll")
e(f"buffer_load_dwordx2 v[20:21], v14, {srd(SRD_WS)}, {sU4} offen sc1")
for u in range(4):
    e(f"s_add_u32 {sT1}, {sU5}, {8*2048*u}")
    e(f"buffer_load_dwordx4 v[{OG+4*u}:{OG+4*u+3}], v16, {srd(SRD_WS)}, {sT1} offen sc1")
e("s_waitcnt vmcnt(4)")
e("v_max_u32 v22, v20, v21")
e("v_cmp_eq_u32 vcc, -1, v22")
e("s_cmp_eq_u64 vcc, 0")
e("s_cbranch_scc1 L_mlgot")
e("s_waitcnt vmcnt(0)")
e(f"s_add_u32 {sCNT}, {sCNT}, 1")
e(f"s_cmp_lt_u32 {sCNT}, {SPIN_LIMIT}")
e("s_cbranch_scc1 L_opoll")
lab("L_mlgot")
stamp(4)
e("v_mov_b32 v22, v20")
reduce32("v_max_f32", 22, 23)
e("v_sub_f32 v20, v20, v22")
e("v_exp_f32 v20, v20")
e("s_nop 0")
e("v_mul_f32 v21, v20, v21")
reduce32("v_add_f32", 21, 23)
e("v_rcp_f32 v21, v21")
e("s_nop 0")
e("v_mul_f32 v20, v20, v21")
for u in range(4):
    e(f"v_add_u32 v23, {32*u}, v15")
    e(f"ds_bpermute_b32 v{24+u}, v23, v20")
e("s_waitcnt vmcnt(0) lgkmcnt(0)")
for u in range(4):
    for d in range(4):
        if u == 0: e(f"v_mul_f32 v{28+d}, v24, v{OG+d}")
        else: e(f"v_fmac_f32 v{28+d}, v{24+u}, v{OG+4*u+d}")
nan_or_sentinel_check([28, 29, 30, 31], list(range(OG, OG+16)), "L_ogot", "L_opoll", sCNT, 22, 23)
lab("L_ogot")
stamp(5)
e("v_permlane32_swap_b32 v28, v30")
e("v_permlane32_swap_b32 v29, v31")
e("s_nop 1")
e("v_add_f32 v28, v28, v30")
e("v_add_f32 v29, v29, v31")
e("s_nop 1")
e("v_permlane16_swap_b32 v28, v29")
e("s_nop 1")
e("v_add_f32 v28, v28, v29")
e("s_nop 1")
e("v_add_f32_dpp v28, v28, v28 row_ror:8 row_mask:0xf bank_mask:0xf")
e("v_cvt_pk_bf16_f32 v28, v28, v28")
e(f"ds_write_b16 v18, v28 offset:{L_OL}")
lds_signal(F_ORDY, 4, 5)
stamp(6)
lab("L_k_end")
stamps_out(7, sCNT)
e("s_endpgm")

lab("L_roleV")
VD = 16; BF = 80; DA = 112; AF = 144; SCR = 80
e(f"s_sub_u32 {sU0}, {sWV}, 5")
e(f"s_xor_b32 {sU3}, {sU0}, {sXW}")
e(f"s_and_b32 {sT0}, {sX7}, 0x38")
e("v_and_b32 v2, 0x38, v0")
e(f"v_xor_b32 v2, {sT0}, v2")
e("v_lshlrev_b32 v2, 9, v2")
e("v_and_b32 v3, 7, v0")
e("v_lshl_or_b32 v2, v3, 4, v2")
e(f"s_lshl_b32 {sT0}, {sU3}, 7")
e(f"v_add_u32 v2, {sT0}, v2")
e("v_mov_b32 v4, 0")
e("v_mov_b32 v5, 1")
e("v_and_b32 v6, 1, v0")
e("v_lshlrev_b32 v6, 9, v6")
e("v_bfe_u32 v7, v0, 1, 1")
e("v_lshrrev_b32 v8, 4, v0")
e("v_lshl_add_u32 v7, v8, 1, v7")
e("v_lshl_add_u32 v6, v7, 5, v6")
e("v_and_b32 v9, 7, v0")
e("v_lshlrev_b32 v9, 5, v9")
e(f"s_lshl_b32 {sT0}, {sU3}, 8")
e(f"v_add_u32 v9, {sT0}, v9")
e(f"s_lshl_b32 {sT0}, {sH}, 5")
e(f"s_add_u32 {sT0}, {sT0}, {sJ}")
e(f"s_lshl_b32 {sT0}, {sT0}, 11")
e(f"s_add_u32 {sU2}, {sT0}, {W_OP}")
e(f"s_and_b32 {sU1}, {sX7}, 0x47")
kv_off()
e(f"s_mov_b32 {sU4}, {sT0}")
e("s_waitcnt lgkmcnt(0)")
mk_srd(SRD_A, pV, 65536, add_lo=sU4)
mk_srd(SRD_WS, pWS, WS_SIZE)
e(f"s_load_dword {sTAG}, s[{pWS}:{pWS+1}], 0")
e(f"s_lshl_b32 {sT0}, {sH}, 2")
e(f"s_add_u32 {sT0}, {sT0}, {sU3}")
e(f"s_lshl_b32 {sT0}, {sT0}, 7")
e(f"s_lshl_b32 {sT1}, {sJ}, 2")
e(f"s_add_u32 {sT0}, {sT0}, {sT1}")
e(f"s_add_u32 {sU5}, {sT0}, {W_OF}")
e("s_barrier")
lds_wait(F_QISS, 1, 4, 11)
stamp(1)
for s in range(2):
    if s == 1 and VGATE: lds_wait(F_QRDY, 1, 4, 11)
    for r in range(8):
        e(f"s_xor_b32 {sT1}, {sU1}, {r | (s << 6)}")
        e(f"s_lshl_b32 {sT1}, {sT1}, 9")
        q = VD+32*s+4*r
        if 8*s+r >= VWIN: e(f"s_waitcnt vmcnt({VWIN-1})")
        e(f"buffer_load_dwordx4 v[{q}:{q+3}], v2, {srd(SRD_A)}, {sT1} offen nt")
lds_signal(F_VISS, 4, 5)
stamp(2)
BF1 = 112; DA = 16
mk_tag()
e(f"v_mov_b32 v13, {sTAG}")
e("v_and_b32 v10, 1, v0")
e("v_lshlrev_b32 v10, 8, v10")
e("v_bfe_u32 v11, v0, 1, 1")
e("v_lshrrev_b32 v14, 4, v0")
e("v_lshl_add_u32 v11, v14, 1, v11")
e("v_lshl_add_u32 v10, v11, 4, v10")
e("s_waitcnt vmcnt(8)")
transpose_set(VD, BF)
e(f"ds_read_b32 v11, v4 offset:{F_PRDY}")
e(f"ds_read_b32 v12, v4 offset:{F_QRDY}")
e(f"ds_read_b128 v[{AF}:{AF+3}], v10 offset:{L_P}")
e(f"ds_read_b128 v[{AF+4}:{AF+7}], v10 offset:{L_P+128}")
e("s_waitcnt lgkmcnt(0)")
e(f"v_readfirstlane_b32 {sU1}, v11")
e(f"v_readfirstlane_b32 {sFAST}, v12")
e(f"s_cmp_eq_u32 {sU1}, 0")
e("s_cbranch_scc1 L_v_late")
stamp(3)
mfma_set(DA, AF, BF, True)
transpose_set(VD+32, BF1, waits=[6, 4, 2, 0])
stamp(5)
e("s_branch L_v_m1")
lab("L_v_late")
transpose_set(VD+32, BF1, waits=[6, 4, 2, 0])
lds_wait(F_PRDY, 1, 4, 11, sleep=0)
e(f"ds_read_b32 v12, v4 offset:{F_QRDY}")
e(f"ds_read_b128 v[{AF}:{AF+3}], v10 offset:{L_P}")
e(f"ds_read_b128 v[{AF+4}:{AF+7}], v10 offset:{L_P+128}")
e("s_waitcnt lgkmcnt(0)")
e(f"v_readfirstlane_b32 {sFAST}, v12")
stamp(3)
mfma_set(DA, AF, BF, True)
stamp(5)
lab("L_v_m1")
e("s_nop 1")
mfma_set(DA, AF+4, BF1, False)
e("s_nop 3")
OO = 80
for rp in range(8):
    if rp == 7: e("s_nop 3")
    for hd in range(2):
        e(f"v_add_f32_dpp v{OO+8*hd+rp}, v{DA+4*rp+2+hd}, v{DA+4*rp+hd} row_shl:8 row_mask:0xf bank_mask:0xf")
e("s_mov_b64 exec, 0xff")
e(f"s_cmp_eq_u32 {sFAST}, 2")
e("s_cbranch_scc1 L_v_ofast")
for hd in range(2):
    for q in range(2):
        e(f"buffer_store_dwordx4 v[{OO+8*hd+4*q}:{OO+8*hd+4*q+3}], v9, {srd(SRD_WS)}, {sU2} offen offset:{1024*hd+16*q} sc1")
e("s_branch L_v_odone")
lab("L_v_ofast")
for hd in range(2):
    for q in range(2):
        e(f"buffer_store_dwordx4 v[{OO+8*hd+4*q}:{OO+8*hd+4*q+3}], v9, {srd(SRD_WS)}, {sU2} offen offset:{1024*hd+16*q}")
lab("L_v_odone")
if OHINT:
    e("s_mov_b64 exec, 1")
    e(f"s_cmp_eq_u32 {sFAST}, 2")
    e("s_cbranch_scc1 L_v_ffast")
    e(f"buffer_store_dword v13, v4, {srd(SRD_WS)}, {sU5} offen sc1")
    e("s_branch L_v_fdone")
    lab("L_v_ffast")
    e(f"buffer_store_dword v13, v4, {srd(SRD_WS)}, {sU5} offen")
    lab("L_v_fdone")
e("s_mov_b64 exec, -1")
lds_signal(F_VDONE, 4, 5)
stamp(6)
stamps_out(7)
e("s_endpgm")

lab("L_roleF")
FD = 16; FB = 48; FDA = 80; FA_ = 112; FG = 116; F2D = 128
e(f"s_lshr_b32 {sT0}, {sJ}, 3")
e(f"s_lshl_b32 {sT0}, {sT0}, 3")
e(f"s_add_u32 {sU0}, {sT0}, {sH}")
e(f"s_and_b32 {sU1}, {sJ}, 7")
e(f"s_mul_i32 {sT0}, {sJ}, 37")
e(f"s_lshr_b32 {sT0}, {sT0}, 8")
e(f"s_mul_i32 {sT1}, {sT0}, 7")
e(f"s_sub_u32 {sU3}, {sJ}, {sT1}")
e(f"s_lshl_b32 {sT0}, {sT0}, 3")
e(f"s_add_u32 {sU2}, {sT0}, {sH}")
e("v_mov_b32 v4, 0")
e("v_mov_b32 v5, 1")
e("v_lshlrev_b32 v6, 4, v0")
e("v_lshrrev_b32 v2, 3, v0")
e("v_min_u32 v3, 6, v2")
e("v_mul_u32_u24 v3, 28672, v3")
e("v_and_b32 v7, 7, v0")
e("v_lshl_add_u32 v3, v7, 4, v3")
e("v_mul_u32_u24 v2, 7168, v2")
e("v_lshl_add_u32 v2, v7, 4, v2")
e("s_waitcnt lgkmcnt(0)")
mk_srd(SRD_WS, pWS, WS_SIZE)
mk_srd(SRD_A, pW1, 448*3584)
mk_srd(SRD_B, pW2, 1792*896)
mk_srd(SRD_C, pB1, 3584)
e(f"s_add_u32 {sT0}, {sU2}, 32")
e(f"s_lshl_b32 {sT0}, {sT0}, 11")
e(f"s_lshl_b32 {sT1}, {sU3}, 8")
e(f"s_add_u32 {sT0}, {sT0}, {sT1}")
e(f"s_add_u32 {sU4}, {sT0}, {W_AP}")
e("s_setprio 1")
e(f"s_cmp_ge_u32 {sU2}, 28")
e("s_cbranch_scc1 L_f_noclr")
for k in range(4): e(f"v_mov_b32 v{8+k}, -1")
e("s_mov_b64 exec, 0xffff")
if CLR != "none": e(f"buffer_store_dwordx4 v[8:11], v6, {srd(SRD_WS)}, {sU4} offen sc1")
e("s_mov_b64 exec, -1")
lab("L_f_noclr")
e(f"s_mov_b32 {sU5}, 0")
e(f"s_cmp_ge_u32 {sU0}, 28")
e("s_cbranch_scc1 L_f_now1")
e(f"s_mul_i32 {sT0}, {sU1}, {56*3584}")
e(f"s_lshl_b32 {sT1}, {sU0}, 7")
e(f"s_add_u32 {sT0}, {sT0}, {sT1}")
for r in range(8):
    e(f"s_add_u32 {sT1}, {sT0}, {r*3584}")
    e(f"buffer_load_dwordx4 v[{FD+4*r}:{FD+4*r+3}], v3, {srd(SRD_A)}, {sT1} offen nt")
lab("L_f_now1")
e(f"s_load_dword {sTAG}, s[{pWS}:{pWS+1}], 0")
e("s_barrier")
stamp(1)
def w2_loads():
    e(f"s_mul_i32 {sT0}, {sU2}, {64*896}")
    e(f"s_lshl_b32 {sT1}, {sU3}, 7")
    e(f"s_add_u32 {sT0}, {sT0}, {sT1}")
    for r in range(8):
        e(f"s_add_u32 {sT1}, {sT0}, {r*896}")
        e(f"buffer_load_dwordx4 v[{F2D+4*r}:{F2D+4*r+3}], v2, {srd(SRD_B)}, {sT1} offen nt")
    e("v_and_b32 v12, 7, v0")
    e("v_lshlrev_b32 v12, 4, v12")
    e("v_lshrrev_b32 v13, 4, v0")
    e("v_lshl_add_u32 v14, v13, 2, v12")
    e(f"s_lshl_b32 {sT0}, {sU2}, 7")
    e(f"v_add_u32 v15, {sT0}, v14")
    e(f"buffer_load_dword v8, v15, {srd(SRD_C)}, 0 offen")
e(f"s_cmp_ge_u32 {sU0}, 28")
e("s_cbranch_scc1 L_f_stage2")
lds_wait(F_XN, 1, 4, 11)
e("v_bfe_u32 v12, v0, 1, 1")
e("v_lshrrev_b32 v13, 4, v0")
e("v_lshl_add_u32 v12, v13, 1, v12")
e("v_cmp_gt_u32 vcc, 7, v12")
e("v_lshlrev_b32 v12, 4, v12")
e(f"s_mul_i32 {sT0}, {sU1}, 112")
e(f"v_add_u32 v12, {sT0}, v12")
e(f"ds_read_b128 v[{FA_}:{FA_+3}], v12 offset:{L_XN}")
e("s_waitcnt vmcnt(0) lgkmcnt(0)")
lds_signal(F_CLR, 4, 5)
for k in range(4): e(f"v_cndmask_b32 v{FA_+k}, 0, v{FA_+k}, vcc")
transpose_set(FD, FB)
e("s_nop 1")
mfma_set(FDA, FA_, FB, True)
mk_tag()
e(f"v_mov_b32 v9, {sTAG}")
e(f"s_mul_i32 {sT0}, {sU0}, 3072")
e(f"s_mul_i32 {sT1}, {sU1}, 384")
e(f"s_add_u32 {sT0}, {sT0}, {sT1}")
e(f"s_add_u32 {sU5}, {sT0}, {W_HMB}")
tile_out_granules(FDA, FG, 9)
publish_granules(FG, 6, sU5, False)
e(f"s_mov_b32 s86, {sU5}")
e("s_mov_b32 s87, 0")
stamp(2)
e("s_branch L_f_stage2b")
lab("L_f_stage2")
e("s_mov_b32 s87, 1")
e("s_waitcnt vmcnt(0) lgkmcnt(0)")
lds_signal(F_CLR, 4, 5)
mk_tag()
def f_pub_b():
    L = uid("fb")
    e("s_cmp_lg_u32 s87, 0")
    e(f"s_cbranch_scc1 {L}")
    publish_granules(FG, 6, "s86", True)
    e("s_mov_b32 s87, 1")
    lab(L)
lab("L_f_stage2b")
e(f"s_cmp_ge_u32 {sU2}, 28")
e("s_cbranch_scc1 L_f_endb")
e("v_and_b32 v12, 7, v0")
e("v_lshlrev_b32 v12, 4, v12")
e("v_lshrrev_b32 v13, 3, v0")
e("v_mul_u32_u24 v13, 384, v13")
e("v_add_u32 v13, v13, v12")
e(f"s_mul_i32 {sT0}, {sU2}, 3072")
e(f"s_add_u32 {sU5}, {sT0}, {W_HMB}")
e(f"v_mov_b32 v10, {sTAG}")
lds_wait(F_KHALF, 4, 4, 11)
e(f"s_mov_b32 {sCNT}, 0")
e(f"s_mov_b32 s88, 0")
HG = 16
lab("L_hpoll")
e(f"s_cmp_ge_u32 s88, {NTRY}")
e(f"s_cselect_b32 {sT2}, s88, 0")
e(f"s_and_b32 {sT2}, {sT2}, 1")
e(f"s_mul_i32 {sT2}, {sT2}, {W_BOFF}")
e(f"s_add_u32 {sT0}, {sT2}, {sU5}")
for k in range(3):
    e(f"buffer_load_dwordx4 v[{HG+4*k}:{HG+4*k+3}], v13, {srd(SRD_WS)}, {sT0} offen offset:{128*k} sc1")
if not W2LATE:
    e("s_cmp_lg_u32 s88, 0")
    e("s_cbranch_scc1 L_h_w2done")
    e("v_mov_b32 v28, v13")
    w2_loads()
    e("v_mov_b32 v13, v28")
    e("s_waitcnt vmcnt(9)")
    e("s_branch L_h_chk")
    lab("L_h_w2done")
e("s_waitcnt vmcnt(0)")
lab("L_h_chk")
e(f"v_xor_b32 v11, v{HG+3}, v10")
e(f"v_xor_b32 v28, v{HG+7}, v10")
e("v_or_b32 v11, v11, v28")
e(f"v_xor_b32 v28, v{HG+11}, v10")
e("v_or_b32 v11, v11, v28")
e("v_cmp_lt_u32 vcc, 7, v11")
e("s_cmp_eq_u64 vcc, 0")
e("s_cbranch_scc1 L_hgot")
e("s_add_u32 s88, s88, 1")
e(f"s_cmp_lg_u32 s88, {NTRY}")
e("s_cbranch_scc1 L_h_nob")
f_pub_b()
lab("L_h_nob")
e(f"s_cmp_lt_u32 s88, {SPIN_LIMIT}")
e("s_cbranch_scc1 L_hpoll")
lab("L_hgot")
stamp(4)
e("s_waitcnt vmcnt(0)")
if W2LATE:
    e("v_and_b32 v12, 7, v0")
    e("v_lshlrev_b32 v12, 4, v12")
    e("v_lshrrev_b32 v13, 4, v0")
    e("v_lshl_add_u32 v14, v13, 2, v12")
    e(f"s_lshl_b32 {sT0}, {sU2}, 7")
    e(f"v_add_u32 v15, {sT0}, v14")
    e(f"buffer_load_dword v8, v15, {srd(SRD_C)}, 0 offen")
    lds_wait(F_VISS, 4, 4, 11)
    e(f"s_mul_i32 {sT0}, {sU2}, {64*896}")
    e(f"s_lshl_b32 {sT1}, {sU3}, 7")
    e(f"s_add_u32 {sT0}, {sT0}, {sT1}")
    for r in range(8):
        e(f"s_add_u32 {sT1}, {sT0}, {r*896}")
        e(f"buffer_load_dwordx4 v[{F2D+4*r}:{F2D+4*r+3}], v2, {srd(SRD_B)}, {sT1} offen nt")
    e("s_waitcnt vmcnt(8)")
hv = [HG+p for p in GPOS]
e("s_nop 1")
for i in range(8):
    e(f"v_add_f32_dpp v{hv[i]}, v{hv[i]}, v{hv[i]} row_ror:8 row_mask:0xf bank_mask:0xf")
e("s_nop 1")
for i in range(4): e(f"v_permlane32_swap_b32 v{hv[i]}, v{hv[i+4]}")
e("s_nop 1")
for i in range(4): e(f"v_add_f32 v{hv[i]}, v{hv[i]}, v{hv[i+4]}")
e("s_nop 1")
for i in range(2): e(f"v_permlane16_swap_b32 v{hv[i]}, v{hv[i+2]}")
e("s_nop 1")
for i in range(2): e(f"v_add_f32 v{hv[i]}, v{hv[i]}, v{hv[i+2]}")
X0, X1 = hv[0], hv[1]
e(f"v_cvt_pk_bf16_f32 v11, v{X0}, v{X1}")
e(f"v_lshlrev_b32 v{X0}, 16, v11")
e(f"v_and_b32 v{X1}, 0xffff0000, v11")
e("v_lshlrev_b32 v11, 16, v8")
e("v_and_b32 v12, 0xffff0000, v8")
e(f"v_add_f32 v{X0}, v{X0}, v11")
e(f"v_add_f32 v{X1}, v{X1}, v12")
e(f"v_cvt_pk_bf16_f32 v11, v{X0}, v{X1}")
e(f"v_lshlrev_b32 v{X0}, 16, v11")
e(f"v_and_b32 v{X1}, 0xffff0000, v11")
KB = -2.0*0.7978845608028654*1.4426950408889634
e(f"s_mov_b32 {sT2}, {f2h(0.044715)}")
e(f"s_mov_b32 {sT3}, {f2h(KB)}")
for x, t in ((X0, 60), (X1, 61)):
    e(f"v_mul_f32 v{t}, v{x}, v{x}")
    e(f"v_mul_f32 v{t}, v{t}, v{x}")
    e(f"v_fma_f32 v{t}, v{t}, {sT2}, v{x}")
    e(f"v_mul_f32 v{t}, {sT3}, v{t}")
    e(f"v_exp_f32 v{t}, v{t}")
    e("s_nop 0")
    e(f"v_add_f32 v{t}, 1.0, v{t}")
    e(f"v_rcp_f32 v{t}, v{t}")
    e("s_nop 0")
    e(f"v_mul_f32 v{x}, v{x}, v{t}")
e(f"v_cvt_pk_bf16_f32 v11, v{X0}, v{X1}")
e(f"ds_write_b32 v14, v11 offset:{L_HL}")
e("v_bfe_u32 v12, v0, 1, 1")
e("v_lshrrev_b32 v13, 4, v0")
e("v_lshl_add_u32 v12, v13, 1, v12")
e("v_lshlrev_b32 v12, 4, v12")
e(f"ds_read_b128 v[{FA_}:{FA_+3}], v12 offset:{L_HL}")
e("s_waitcnt vmcnt(0)")
transpose_set(F2D, FB)
e("s_waitcnt lgkmcnt(0)")
mfma_set(FDA, FA_, FB, True)
e("v_and_b32 v10, 7, v0")
e("v_lshlrev_b32 v10, 5, v10")
e("s_nop 3")
for rp in range(8):
    if rp == 7: e("s_nop 3")
    e(f"v_add_f32_dpp v{16+rp}, v{FDA+4*rp+2}, v{FDA+4*rp} row_shl:8 row_mask:0xf bank_mask:0xf")
e("s_mov_b64 exec, 0xff")
e(f"buffer_store_dwordx4 v[16:19], v10, {srd(SRD_WS)}, {sU4} offen sc1")
e(f"buffer_store_dwordx4 v[20:23], v10, {srd(SRD_WS)}, {sU4} offen offset:16 sc1")
e("s_mov_b64 exec, -1")
stamp(5)
lab("L_f_endb")
f_pub_b()
lab("L_f_end")
stamps_out(6, "s88")
e("s_endpgm")

lab("L_roleW")
e("s_setprio 2")
WI = 16; WB = 80
e("v_mov_b32 v4, 0")
e("v_mov_b32 v5, 1")
e("v_lshlrev_b32 v6, 4, v0")
e(f"s_and_b32 {sU0}, {sJ}, 3")
e(f"s_lshr_b32 {sU1}, {sJ}, 2")
e(f"s_lshl_b32 {sT0}, {sH}, 2")
e(f"s_add_u32 {sT0}, {sT0}, {sU0}")
e(f"s_mul_i32 {sU3}, {sT0}, {128*896}")
e(f"s_lshl_b32 {sT1}, {sU1}, 7")
e(f"s_add_u32 {sU3}, {sU3}, {sT1}")
kv_off()
e(f"s_mov_b32 {sU4}, {sT0}")
e("s_waitcnt lgkmcnt(0)")
mk_srd(SRD_WS, pWS, WS_SIZE)
if TLBPF:
    e(f"s_add_u32 s86, s{pV}, {sU4}")
    e(f"s_addc_u32 s87, s{pV+1}, 0")
    e("v_mov_b32 v12, s86")
    e("v_mov_b32 v13, s87")
    e(f"s_min_u32 {sT0}, {sU3}, {4096*896-131072}")
    e(f"s_add_u32 s86, s{pWO}, {sT0}")
    e(f"s_addc_u32 s87, s{pWO+1}, 0")
    e("v_writelane_b32 v12, s86, 1")
    e("v_writelane_b32 v13, s87, 1")
    e(f"s_add_u32 s86, s86, {127*896}")
    e("s_addc_u32 s87, s87, 0")
    e("v_writelane_b32 v12, s86, 2")
    e("v_writelane_b32 v13, s87, 2")
    e(f"v_writelane_b32 v12, s{pOUT}, 3")
    e(f"v_writelane_b32 v13, s{pOUT+1}, 3")
    e("s_mov_b64 exec, 0xf")
    e("global_load_dword v14, v[12:13], off nt")
    e("s_mov_b64 exec, -1")
e("s_barrier")
for k in range(4): e(f"v_mov_b32 v{8+k}, -1")
e(f"s_lshl_b32 {sT0}, {sH}, 5")
e(f"s_add_u32 {sT0}, {sT0}, {sJ}")
e(f"s_lshl_b32 {sT0}, {sT0}, 11")
e(f"s_add_u32 {sT0}, {sT0}, {W_OP}")
CP = {"sc1": " sc1", "plain": "", "none": None}[CLR]
if CP is not None:
    e(f"buffer_store_dwordx4 v[8:11], v6, {srd(SRD_WS)}, {sT0} offen{CP}")
    e(f"buffer_store_dwordx4 v[8:11], v6, {srd(SRD_WS)}, {sT0} offen offset:1024{CP}")
e("v_lshlrev_b32 v7, 8, v0")
e(f"s_lshl_b32 {sT0}, {sH}, 9")
e(f"s_lshl_b32 {sT1}, {sJ}, 3")
e(f"s_add_u32 {sT0}, {sT0}, {sT1}")
e(f"s_add_u32 {sT0}, {sT0}, {W_ML}")
e("s_mov_b64 exec, 3")
if CP is not None: e(f"buffer_store_dwordx2 v[8:9], v7, {srd(SRD_WS)}, {sT0} offen{CP}")
e("s_mov_b64 exec, -1")
e(f"s_lshl_b32 {sT0}, {sH}, 2")
e(f"s_add_u32 {sT0}, {sT0}, {sU0}")
e(f"s_lshl_b32 {sT0}, {sT0}, 11")
e(f"s_lshl_b32 {sT1}, {sU1}, 8")
e(f"s_add_u32 {sT0}, {sT0}, {sT1}")
e(f"s_add_u32 {sU2}, {sT0}, {W_AP}")
e(f"s_cmp_ge_u32 {sJ}, 28")
e("s_cbranch_scc1 L_w_noap")
e("s_mov_b64 exec, 0xffff")
if CLR != "none": e(f"buffer_store_dwordx4 v[8:11], v6, {srd(SRD_WS)}, {sU2} offen sc1")
e("s_mov_b64 exec, -1")
lab("L_w_noap")
e(f"s_load_dword {sTAG}, s[{pWS}:{pWS+1}], 0")
e("s_waitcnt vmcnt(0) lgkmcnt(0)")
mk_tag()
e(f"v_mov_b32 v7, {sTAG}")
lds_wait(F_CLR, 1, 4, 11)
e(f"s_lshl_b32 {sT0}, {sH}, 5")
e(f"s_add_u32 {sT0}, {sT0}, {sJ}")
e(f"s_lshl_b32 {sT0}, {sT0}, 2")
e(f"s_add_u32 {sT0}, {sT0}, {W_READY}")
e("s_mov_b64 exec, 1")
e(f"buffer_store_dword v7, v4, {srd(SRD_WS)}, {sT0} offen sc1")
e("s_mov_b64 exec, -1")
stamp(1)
e(f"s_cmp_ge_u32 {sJ}, 28")
e("s_cbranch_scc1 L_final")
mk_srd(SRD_A, pWO, 4096*896)
e("v_lshrrev_b32 v2, 3, v0")
e("v_mul_u32_u24 v2, 7168, v2")
e("v_and_b32 v3, 7, v0")
e("v_lshl_add_u32 v2, v3, 4, v2")
e("v_bfe_u32 v10, v0, 1, 1")
e("v_lshrrev_b32 v11, 4, v0")
e("v_lshl_add_u32 v10, v11, 1, v10")
e("v_lshlrev_b32 v10, 4, v10")
e("v_lshlrev_b32 v9, 5, v3")
lds_wait(F_VISS, 4, 4, 11)
stamp(2)
for s in range(2):
    for r in range(8):
        q = WI+32*s+4*r
        e(f"s_add_u32 {sT1}, {sU3}, {(64*s+r)*896}")
        e(f"buffer_load_dwordx4 v[{q}:{q+3}], v2, {srd(SRD_A)}, {sT1} offen nt")
e("s_waitcnt vmcnt(8)")
transpose_set(WI, WB)
e("s_waitcnt vmcnt(0)")
transpose_set(WI+32, WB+32)
stamp(3)
lds_wait(F_ORDY, 4, 4, 11, sleep=0)
stamp(4)
e(f"ds_read_b128 v[16:19], v10 offset:{L_OL}")
e(f"ds_read_b128 v[20:23], v10 offset:{L_OL+128}")
e("s_waitcnt lgkmcnt(0)")
WDA = 32
mfma_set(WDA, 16, WB, True)
mfma_set(WDA, 20, WB+32, False)
e("s_nop 3")
for rp in range(8):
    if rp == 7: e("s_nop 3")
    e(f"v_add_f32_dpp v{64+rp}, v{WDA+4*rp+2}, v{WDA+4*rp} row_shl:8 row_mask:0xf bank_mask:0xf")
e("s_mov_b64 exec, 0xff")
e(f"buffer_store_dwordx4 v[64:67], v9, {srd(SRD_WS)}, {sU2} offen sc1")
e(f"buffer_store_dwordx4 v[68:71], v9, {srd(SRD_WS)}, {sU2} offen offset:16 sc1")
e("s_mov_b64 exec, -1")
stamp(5)
stamps_out(6)
e("s_endpgm")

lab("L_final")
e(f"s_sub_u32 {sT0}, {sJ}, 28")
e(f"s_lshl_b32 {sT0}, {sT0}, 3")
e(f"s_add_u32 {sU0}, {sT0}, {sH}")
e(f"s_cmp_ge_u32 {sU0}, 28")
e("s_cbranch_scc1 L_end")
mk_srd(SRD_A, pX, 896)
mk_srd(SRD_B, pB2, 896)
mk_srd(SRD_C, pOUT, 896)
e("v_and_b32 v2, 3, v0")
e("v_lshlrev_b32 v2, 2, v2")
e("v_bfe_u32 v3, v0, 5, 1")
e("v_lshl_add_u32 v2, v3, 1, v2")
e("v_bfe_u32 v3, v0, 4, 1")
e("v_add_u32 v2, v2, v3")
e(f"s_lshl_b32 {sT0}, {sU0}, 4")
e(f"v_add_u32 v2, {sT0}, v2")
e("v_lshlrev_b32 v2, 1, v2")
e(f"buffer_load_ushort v12, v2, {srd(SRD_A)}, 0 offen")
e(f"buffer_load_ushort v13, v2, {srd(SRD_B)}, 0 offen")
e(f"s_mov_b32 {sT1}, {W_READY}")
lds_wait(F_KISS, 4, 4, 11)
e(f"s_mov_b32 {sCNT}, 0")
lab("L_rdy")
e(f"buffer_load_dwordx4 v[8:11], v6, {srd(SRD_WS)}, {sT1} offen sc1")
e("s_waitcnt vmcnt(0)")
for k in range(4): e(f"v_xor_b32 v{8+k}, v{8+k}, v7")
e("v_or_b32 v8, v8, v9")
e("v_or_b32 v10, v10, v11")
e("v_or_b32 v8, v8, v10")
e("v_cmp_lt_u32 vcc, 7, v8")
e("s_cmp_eq_u64 vcc, 0")
e("s_cbranch_scc1 L_rdy_ok")
e("s_sleep 8")
e(f"s_add_u32 {sCNT}, {sCNT}, 1")
e(f"s_cmp_lt_u32 {sCNT}, {SPIN_LIMIT}")
e("s_cbranch_scc1 L_rdy")
lab("L_rdy_ok")
stamp(2)
e(f"s_cmp_lg_u32 {sU0}, 0")
e("s_cbranch_scc1 L_noep")
e("s_mov_b64 exec, 1")
e(f"buffer_store_dword v7, v4, {srd(SRD_WS)}, 0 offen sc1")
e("s_mov_b64 exec, -1")
lab("L_noep")
e("v_lshrrev_b32 v3, 2, v0")
e("v_lshlrev_b32 v3, 11, v3")
e("v_and_b32 v7, 3, v0")
e("v_lshl_add_u32 v3, v7, 4, v3")
e(f"s_lshl_b32 {sU1}, {sU0}, 6")
e(f"s_add_u32 {sU1}, {sU1}, {W_AP}")
e("v_lshlrev_b32 v13, 16, v13")
e("v_lshlrev_b32 v12, 16, v12")
e("v_lshrrev_b32 v14, 2, v0")
e("v_min_u32 v14, 11, v14")
e("v_lshlrev_b32 v14, 11, v14")
e("v_lshl_add_u32 v14, v7, 4, v14")
e("v_cmp_gt_u32 vcc, 48, v0")
e("s_nop 1")
e("v_cndmask_b32 v15, 0, 1.0, vcc")
lds_wait(F_VISS, 4, 4, 11)
lds_wait(F_SDONE, 4, 4, 11)
stamp(3)
e(f"s_mov_b32 {sCNT}, 0")
lab("L_bpoll")
e(f"s_add_u32 {sT1}, {sU1}, {16*2048*2}")
e(f"buffer_load_dwordx4 v[24:27], v3, {srd(SRD_WS)}, {sT1} offen sc1")
e(f"s_add_u32 {sT1}, {sU1}, {16*2048*3}")
e(f"buffer_load_dwordx4 v[28:31], v14, {srd(SRD_WS)}, {sT1} offen sc1")
e("s_waitcnt vmcnt(0)")
for d in range(4):
    e(f"v_fma_f32 v{104+d}, v{28+d}, v15, v{24+d}")
nan_or_sentinel_check([104, 105, 106, 107], list(range(24, 32)), "L_bgot", "L_bpoll", sCNT, 16, 17)
lab("L_bgot")
def red4(lo):
    for r in (4, 8):
        e("s_nop 1")
        for d in range(4):
            e(f"v_add_f32_dpp v{lo+d}, v{lo+d}, v{lo+d} row_ror:{r} row_mask:0xf bank_mask:0xf")
    e("s_nop 1")
    e(f"v_permlane32_swap_b32 v{lo}, v{lo+2}")
    e(f"v_permlane32_swap_b32 v{lo+1}, v{lo+3}")
    e("s_nop 1")
    e(f"v_add_f32 v{lo}, v{lo}, v{lo+2}")
    e(f"v_add_f32 v{lo+1}, v{lo+1}, v{lo+3}")
    e("s_nop 1")
    e(f"v_permlane16_swap_b32 v{lo}, v{lo+1}")
    e("s_nop 1")
    e(f"v_add_f32 v{lo}, v{lo}, v{lo+1}")
red4(104)
bf16r(104, 104)
e("v_add_f32 v104, v104, v13")
bf16r(104, 104)
stamp(4)
e(f"s_add_u32 {sU2}, {sU1}, {16*2048}")
e(f"s_mov_b32 {sCNT}, 0")
NB = 3 if FPIPE else 1
def issue(b):
    e(f"buffer_load_dwordx4 v[{32+8*b}:{35+8*b}], v3, {srd(SRD_WS)}, {sU1} offen sc1")
    e(f"buffer_load_dwordx4 v[{36+8*b}:{39+8*b}], v3, {srd(SRD_WS)}, {sU2} offen sc1")
for b in range(NB):
    issue(b)
    if b < NB-1: e("s_sleep 2")
lab("L_fpoll")
for b in range(NB):
    e(f"s_waitcnt vmcnt({2*(NB-1)})")
    for d in range(4):
        e(f"v_add_f32 v{100+d}, v{32+8*b+d}, v{36+8*b+d}")
    e("v_add_f32 v16, v100, v101")
    e("v_add_f32 v17, v102, v103")
    e("v_add_f32 v16, v16, v17")
    e("v_cmp_u_f32 vcc, v16, v16")
    e("s_cmp_eq_u64 vcc, 0")
    e("s_cbranch_scc1 L_fgot")
    e(f"v_max3_u32 v16, v{32+8*b}, v{33+8*b}, v{34+8*b}")
    e(f"v_max3_u32 v16, v16, v{35+8*b}, v{36+8*b}")
    e(f"v_max3_u32 v16, v16, v{37+8*b}, v{38+8*b}")
    e(f"v_max_u32 v16, v16, v{39+8*b}")
    e("v_cmp_eq_u32 vcc, -1, v16")
    e("s_cmp_eq_u64 vcc, 0")
    e("s_cbranch_scc1 L_fgot")
    issue(b)
e(f"s_add_u32 {sCNT}, {sCNT}, 1")
e(f"s_cmp_lt_u32 {sCNT}, {SPIN_LIMIT}")
e("s_cbranch_scc1 L_fpoll")
lab("L_fgot")
stamp(5)
red4(100)
bf16r(100, 100)
e("v_add_f32 v100, v100, v12")
bf16r(100, 100)
e("v_add_f32 v100, v100, v104")
e("v_cvt_pk_bf16_f32 v100, v100, v100")
e("s_mov_b32 exec_lo, 0x000f000f")
e("s_mov_b32 exec_hi, 0x000f000f")
e(f"buffer_store_short v100, v2, {srd(SRD_C)}, 0 offen")
e("s_mov_b64 exec, -1")
stamp(6)
stamps_out(7, sCNT)
lab("L_end")
e("s_endpgm")

e(f""".section .rodata,"a"
.p2align 6
.amdhsa_kernel {NAME}_kernel
  .amdhsa_next_free_vgpr 160
  .amdhsa_next_free_sgpr 96
  .amdhsa_accum_offset 160
  .amdhsa_group_segment_fixed_size 0
  .amdhsa_kernarg_size 104
  .amdhsa_user_sgpr_count 2
  .amdhsa_user_sgpr_kernarg_segment_ptr 1
  .amdhsa_system_sgpr_workgroup_id_x 1
  .amdhsa_float_denorm_mode_32 3
.end_amdhsa_kernel""")

txt = "\n".join(x for x in out if x is not None) + "\n"
path = sys.argv[1] if len(sys.argv) > 1 else "cdna_kernels/" + NAME + ".s"
open(path, "w").write(txt)
print("wrote", path, len(txt), "bytes")
```

```python
import sys, os, struct
NAME = "parallel_sum__sliding_block_cached__dense_activation_gelu__decode"
PROFILE = int(sys.argv[2]) if len(sys.argv) > 2 else 0
OPT = dict(kv.split("=") for kv in os.environ.get("GOPT", "").split(",") if kv)
def opt(k, d): return type(d)(OPT.get(k, d))
QDELAY = opt("qdelay", 8)
QSPACE = opt("qspace", 4)
HDELAY = opt("hdelay", 8)
TLBPF = opt("tlbpf", 0)
KWIN = opt("kwin", 16)
VWIN = opt("vwin", 16)
NTRY = 4
KTRIG = opt("ktrig", 6)
FLD = opt("fld", "sc1").replace("_"," ")
FST = opt("fst", "sc1").replace("_"," ")
FNB = opt("fnb", 3)
FSL = opt("fsl", 2)
OPIPE = opt("opipe", 1)
OSL = opt("osl", 2)
HOPS = opt("hops", 0)
CODEPF = opt("codepf", 1)
CODE_CHUNKS = opt("chunks", 13)
W2LATE = opt("w2late", 1)
MLDELAY = opt("mldelay", 12)
KEARLY = opt("kearly", 0)
VGATE = opt("vgate", 0)
OHINT = opt("ohint", 0)
CLR = opt("clr", "sc1")
FPIPE = opt("fpipe", 1)

out = []
def e(s=""): out.append(s)
def lab(s): out.append(s + ":")
_uid = [0]
def uid(p):
    _uid[0] += 1
    return f"L_{p}_{_uid[0]}"
def f2h(x): return "0x%08x" % struct.unpack("<I", struct.pack("<f", x))[0]

F_KISS, F_VISS, F_QRDY, F_SDONE, F_XN, F_CLR, F_ORDY, F_WRDY, F_KHALF, F_QISS, F_MLP, F_VDONE, F_WQA, F_PRDY, F_QLD = 0, 4, 8, 12, 16, 20, 24, 28, 32, 36, 40, 44, 48, 52, 56
L_XN = 256
L_Q = 1280
L_SC = 2304
L_OL = 4352
L_HL = 4608
L_WL = 4736
L_P = 4864
LDS_BYTES = 8192
W_EPOCH = 0
W_READY = 0x1000
W_ML = 0x2000
W_QMB = 0x5000
W_HMB = 0x1D000
W_BOFF = 0x40000
W_OP = 0x90000
W_AP = 0x110000
W_QH = 0x3000
W_HH = 0x3400
W_OF = 0x110000+0x20000
W_PROF = 0x4000000
WS_SIZE = 0x8000000
SPIN_LIMIT = 200000

NWAVES = 11
sH, sJ, sXR, sWV = "s4", "s5", "s6", "s3"
sTAG = "s7"
sT0, sT1, sT2, sT3 = "s8", "s9", "s10", "s11"
sCNT = "s12"
sSELLO, sSELHI = "s13", "s14"
sFAST = "s15"
pX, pK, pV, pWQ, pWO, pW1, pB1 = 16, 18, 20, 22, 24, 28, 30
pW2, pB2, pOUT, pDBG, pWS = 32, 34, 36, 38, 40
SRD_A, SRD_B, SRD_WS, SRD_C = 44, 48, 52, 56
sSTAMP = 60
sX7, sXS, sXW = "s76", "s77", "s78"
sU0, sU1, sU2, sU3, sU4, sU5 = "s80", "s81", "s82", "s83", "s84", "s85"

def srd(n): return f"s[{n}:{n+3}]"

def mk_srd(n, p, size, add_lo=None):
    if add_lo is None:
        e(f"s_mov_b32 s{n}, s{p}")
        e(f"s_and_b32 s{n+1}, s{p+1}, 0xffff")
    else:
        e(f"s_add_u32 s{n}, s{p}, {add_lo}")
        e(f"s_addc_u32 s{n+1}, s{p+1}, 0")
        e(f"s_and_b32 s{n+1}, s{n+1}, 0xffff")
    e(f"s_mov_b32 s{n+2}, {size}")
    e(f"s_mov_b32 s{n+3}, 0x20000")

def stamp(k):
    if PROFILE: e(f"s_memrealtime s[{sSTAMP+2*k}:{sSTAMP+2*k+1}]")

def stamps_out(n, cnt=None):
    if not PROFILE: return
    e("s_waitcnt lgkmcnt(0)")
    if cnt is not None:
        e(f"s_mov_b32 s{sSTAMP+14}, {cnt}"); e(f"s_mov_b32 s{sSTAMP+15}, 0")
        n = 8
    e("s_mov_b64 exec, 1")
    e(f"s_lshl_b32 {sT0}, s2, 4")
    e(f"s_add_u32 {sT0}, {sT0}, {sWV}")
    e(f"s_lshl_b32 {sT0}, {sT0}, 6")
    e(f"s_add_u32 {sT0}, {sT0}, {W_PROF}")
    e(f"v_mov_b32 v1, {sT0}")
    for k in range(n):
        e(f"v_mov_b32 v2, s{sSTAMP+2*k}")
        e(f"v_mov_b32 v3, s{sSTAMP+2*k+1}")
        e(f"buffer_store_dwordx2 v[2:3], v1, {srd(SRD_WS)}, 0 offen offset:{8*k}")
        e("s_nop 1")
    e("s_waitcnt vmcnt(0)")

def zero_stamps():
    if PROFILE:
        for k in range(1, 8):
            e(f"s_mov_b64 s[{sSTAMP+2*k}:{sSTAMP+2*k+1}], 0")

def lds_wait(flag, val, vz, vt, sleep=1):
    L = uid("lw"); D = uid("lwd")
    e(f"s_mov_b32 {sCNT}, 0")
    lab(L)
    e(f"ds_read_b32 v{vt}, v{vz} offset:{flag}")
    e("s_waitcnt lgkmcnt(0)")
    e(f"v_readfirstlane_b32 {sT0}, v{vt}")
    e(f"s_cmp_ge_u32 {sT0}, {val}")
    e(f"s_cbranch_scc1 {D}")
    if sleep: e(f"s_sleep {sleep}")
    e(f"s_add_u32 {sCNT}, {sCNT}, 1")
    e(f"s_cmp_lt_u32 {sCNT}, {SPIN_LIMIT*4}")
    e(f"s_cbranch_scc1 {L}")
    lab(D)

def lds_signal(flag, vz, vone):
    e("s_mov_b64 exec, 1")
    e(f"ds_add_u32 v{vz}, v{vone} offset:{flag}")
    e("s_mov_b64 exec, -1")

def bf16r(dst, src):
    e(f"v_cvt_pk_bf16_f32 v{dst}, v{src}, v{src}")
    e(f"v_lshlrev_b32 v{dst}, 16, v{dst}")

def allreduce(op, a, t):
    for r in (8, 4, 2, 1):
        e("s_nop 1")
        e(f"{op}_dpp v{a}, v{a}, v{a} row_ror:{r} row_mask:0xf bank_mask:0xf")
    e(f"v_mov_b32 v{t}, v{a}")
    e("s_nop 1")
    e(f"v_permlane16_swap_b32 v{a}, v{t}")
    e("s_nop 1")
    e(f"{op} v{a}, v{a}, v{t}")
    e(f"v_mov_b32 v{t}, v{a}")
    e("s_nop 1")
    e(f"v_permlane32_swap_b32 v{a}, v{t}")
    e("s_nop 1")
    e(f"{op} v{a}, v{a}, v{t}")

def common_scalars():
    e(f"s_lshr_b32 {sT0}, {sJ}, 2")
    e(f"s_mul_i32 {sT1}, {sH}, 5")
    e(f"s_add_u32 {sT0}, {sT0}, {sT1}")
    e(f"s_and_b32 {sT1}, {sJ}, 3")
    e(f"s_lshl_b32 {sT1}, {sT1}, 2")
    e(f"s_add_u32 {sT0}, {sT0}, {sT1}")
    e(f"s_and_b32 {sXR}, {sT0}, 15")
    e(f"s_and_b32 {sX7}, {sXR}, 7")
    e(f"s_lshr_b32 {sT0}, {sXR}, 2")
    e(f"s_lshl_b32 {sT0}, {sT0}, 3")
    e(f"s_or_b32 {sX7}, {sX7}, {sT0}")
    e(f"s_lshr_b32 {sT0}, {sXR}, 3")
    e(f"s_lshl_b32 {sT0}, {sT0}, 6")
    e(f"s_or_b32 {sX7}, {sX7}, {sT0}")
    e(f"s_and_b32 {sXS}, {sXR}, 3")
    e(f"s_add_u32 {sT0}, {sJ}, {sH}")
    e(f"s_and_b32 {sXW}, {sT0}, 3")

def kv_off():
    e(f"s_lshl_b32 {sT0}, {sH}, 25")
    e(f"s_lshl_b32 {sT1}, {sJ}, 16")
    e(f"s_add_u32 {sT0}, {sT0}, {sT1}")
    e(f"s_add_u32 {sT0}, {sT0}, 0x1E00000")
def kv_srd(n, p):
    kv_off()
    mk_srd(n, p, 65536, add_lo=sT0)

def transpose_set(src, dst, waits=None):
    for kp in range(4):
        if waits is not None:
            e(f"s_waitcnt vmcnt({waits[kp]})")
        a = src+8*kp; b = a+4
        for d in range(4):
            e(f"v_perm_b32 v{dst+4*(2*d)+kp}, v{b+d}, v{a+d}, {sSELLO}")
            e(f"v_perm_b32 v{dst+4*(2*d+1)+kp}, v{b+d}, v{a+d}, {sSELHI}")

def mfma_set(D, A, B, first):
    for rp in range(8):
        c = "0" if first else f"v[{D+4*rp}:{D+4*rp+3}]"
        e(f"v_mfma_f32_16x16x32_bf16 v[{D+4*rp}:{D+4*rp+3}], v[{A}:{A+3}], v[{B+4*rp}:{B+4*rp+3}], {c}")

def mk_tag():
    e(f"s_add_u32 {sTAG}, {sTAG}, 8")
    e(f"s_andn2_b32 {sTAG}, {sTAG}, 7")

GPOS = [0, 1, 2, 4, 5, 6, 8, 9]
def tile_out_granules(D, G, vtag):
    e("s_nop 3")
    for rp in range(8):
        if rp == 7: e("s_nop 3")
        e(f"v_add_f32_dpp v{G+GPOS[rp]}, v{D+4*rp+2}, v{D+4*rp} row_shl:8 row_mask:0xf bank_mask:0xf")
    for k in (3, 7, 10, 11):
        e(f"v_mov_b32 v{G+k}, v{vtag}")

def publish_granules(G, vaddr, soff, slotB):
    e("s_mov_b64 exec, 0xff")
    if slotB:
        e(f"s_add_u32 {sT3}, {soff}, {W_BOFF}")
        for k in range(3):
            e(f"buffer_store_dwordx4 v[{G+4*k}:{G+4*k+3}], v{vaddr}, {srd(SRD_WS)}, {sT3} offen offset:{128*k} sc1")
    else:
        for k in range(3):
            e(f"buffer_store_dwordx4 v[{G+4*k}:{G+4*k+3}], v{vaddr}, {srd(SRD_WS)}, {soff} offen offset:{128*k}")
    e("s_mov_b64 exec, -1")

def nan_or_sentinel_check(accs, regs, okl, retry_l, cnt, tmp1, tmp2):
    e(f"v_add_f32 v{tmp1}, v{accs[0]}, v{accs[1]}")
    for a in accs[2:]:
        e(f"v_add_f32 v{tmp1}, v{tmp1}, v{a}")
    e(f"v_cmp_u_f32 vcc, v{tmp1}, v{tmp1}")
    e("s_cmp_eq_u64 vcc, 0")
    e(f"s_cbranch_scc1 {okl}")
    e(f"v_max_u32 v{tmp1}, v{regs[0]}, v{regs[1]}")
    rest = regs[2:]
    for i in range(0, len(rest)-1, 2):
        e(f"v_max3_u32 v{tmp1}, v{tmp1}, v{rest[i]}, v{rest[i+1]}")
    if len(rest) % 2: e(f"v_max_u32 v{tmp1}, v{tmp1}, v{rest[-1]}")
    e(f"v_cmp_eq_u32 vcc, -1, v{tmp1}")
    e("s_cmp_eq_u64 vcc, 0")
    e(f"s_cbranch_scc1 {okl}")
    e(f"s_add_u32 {cnt}, {cnt}, 1")
    e(f"s_cmp_lt_u32 {cnt}, {SPIN_LIMIT}")
    e(f"s_cbranch_scc1 {retry_l}")

e(f"""; Fused decode kernel: LN -> (GQA sliding-window attention + Wo) + (GELU FFN) + residual
; @launch grid=(256,1,1) block=({NWAVES*64},1,1) lds={LDS_BYTES}
.amdgcn_target "amdgcn-amd-amdhsa--gfx950"
.text
.globl {NAME}_kernel
.p2align 8
.type {NAME}_kernel,@function
{NAME}_kernel:""")
e("s_cmp_ge_u32 s2, 256")
e("s_cbranch_scc1 L_end")
e("v_lshrrev_b32 v1, 6, v0")
e("v_and_b32 v0, 63, v0")
e(f"v_readfirstlane_b32 {sWV}, v1")
e(f"s_cmp_eq_u32 {sWV}, 10")
e("s_cbranch_scc1 L_winit")
def kernarg_loads():
    e("s_load_dwordx16 s[16:31], s[0:1], 0")
    e("s_load_dwordx8 s[32:39], s[0:1], 64")
    e("s_load_dwordx2 s[40:41], s[0:1], 96")
kernarg_loads()
stamp(0)
e("s_barrier")
zero_stamps()
e(f"s_and_b32 {sH}, s2, 7")
e(f"s_lshr_b32 {sJ}, s2, 3")
e(f"s_mov_b32 {sSELLO}, 0x05040100")
e(f"s_mov_b32 {sSELHI}, 0x07060302")
e(f"s_cmp_lg_u32 {sWV}, 0")
e("s_cbranch_scc1 L_others")

lab("L_roleQ")
e("s_setprio 3")
XD = 8; FX = 12; TD = 24; TB = 88; TDA = 120; TA = 152
e("v_mov_b32 v3, 0")
e("v_lshlrev_b32 v4, 4, v0")
e("v_lshrrev_b32 v5, 3, v0")
e("v_min_u32 v6, 5, v5")
e("v_and_b32 v7, 7, v0")
e("v_lshlrev_b32 v7, 4, v7")
e("v_lshl_add_u32 v5, v5, 16, v7")
e("v_lshl_add_u32 v6, v6, 16, v7")
e(f"s_lshr_b32 {sU4}, {sJ}, 3")
e(f"s_mul_i32 {sU2}, {sU4}, {112*8192}")
e(f"s_lshl_b32 {sT1}, {sH}, 10")
e(f"s_add_u32 {sU2}, {sU2}, {sT1}")
e(f"s_and_b32 {sT1}, {sJ}, 7")
e(f"s_lshl_b32 {sT1}, {sT1}, 7")
e(f"s_add_u32 {sU2}, {sU2}, {sT1}")
e("s_waitcnt lgkmcnt(0)")
mk_srd(SRD_A, pX, 896)
mk_srd(SRD_B, pWQ, 448*8192)
e(f"buffer_load_dwordx4 v[{XD}:{XD+3}], v4, {srd(SRD_A)}, 0 offen")
for s in range(2):
    for r in range(8):
        q = TD+32*s+4*r
        e(f"s_add_u32 {sT1}, {sU2}, {(64*s+r)*8192}")
        e(f"buffer_load_dwordx4 v[{q}:{q+3}], v{5+s}, {srd(SRD_B)}, {sT1} offen nt")
e("v_mov_b32 v2, 1")
lds_signal(F_QLD, 3, 2)
e(f"s_load_dword {sTAG}, s[{pWS}:{pWS+1}], 0")
mk_srd(SRD_WS, pWS, WS_SIZE)
stamp(1)
e(f"s_getreg_b32 {sU0}, hwreg(HW_REG_XCC_ID, 0, 3)")
e("s_waitcnt vmcnt(16)")
stamp(2)
for k in range(4):
    e(f"v_lshlrev_b32 v{FX+2*k}, 16, v{XD+k}")
    e(f"v_and_b32 v{FX+2*k+1}, 0xffff0000, v{XD+k}")
e(f"v_add_f32 v2, v{FX}, v{FX+1}")
for k in range(2, 8):
    e(f"v_add_f32 v2, v2, v{FX+k}")
allreduce("v_add_f32", 2, 3)
e(f"v_mul_f32 v2, {f2h(1.0/448)}, v2")
e(f"v_sub_f32 v6, v{FX}, v2")
e("v_mul_f32 v7, v6, v6")
for k in range(1, 8):
    e(f"v_sub_f32 v6, v{FX+k}, v2")
    e("v_fmac_f32 v7, v6, v6")
e("v_cmp_gt_u32 vcc, 56, v0")
e("s_nop 1")
e("v_cndmask_b32 v7, 0, v7, vcc")
allreduce("v_add_f32", 7, 3)
e(f"v_mul_f32 v7, {f2h(1.0/448)}, v7")
bf16r(2, 2)
bf16r(7, 7)
e("v_add_f32 v7, 0x3727c5ac, v7")
bf16r(7, 7)
e("v_sqrt_f32 v7, v7")
e("s_nop 0")
bf16r(7, 7)
e("v_rcp_f32 v7, v7")
for k in range(4):
    e(f"v_sub_f32 v{FX+2*k}, v{FX+2*k}, v2")
    e(f"v_sub_f32 v{FX+2*k+1}, v{FX+2*k+1}, v2")
    e(f"v_cvt_pk_bf16_f32 v6, v{FX+2*k}, v{FX+2*k+1}")
    e(f"v_lshlrev_b32 v{FX+2*k}, 16, v6")
    e(f"v_and_b32 v{FX+2*k+1}, 0xffff0000, v6")
    e(f"v_mul_f32 v{FX+2*k}, v{FX+2*k}, v7")
    e(f"v_mul_f32 v{FX+2*k+1}, v{FX+2*k+1}, v7")
    e(f"v_cvt_pk_bf16_f32 v{XD+k}, v{FX+2*k}, v{FX+2*k+1}")
    e(f"v_cndmask_b32 v{XD+k}, 0, v{XD+k}, vcc")
e(f"ds_write_b128 v4, v[{XD}:{XD+3}] offset:{L_XN}")
e("v_mov_b32 v3, 0")
e("v_mov_b32 v6, 1")
lds_signal(F_XN, 3, 6)
e("v_bfe_u32 v2, v0, 1, 1")
e("v_lshrrev_b32 v7, 4, v0")
e("v_lshl_add_u32 v2, v7, 1, v2")
e("v_lshlrev_b32 v2, 4, v2")
e(f"s_mul_i32 {sT0}, {sU4}, 224")
e(f"v_add_u32 v2, {sT0}, v2")
e(f"ds_read_b128 v[{TA}:{TA+3}], v2 offset:{L_XN}")
e(f"ds_read_b128 v[{TA+4}:{TA+7}], v2 offset:{L_XN+128}")
e("v_cmp_gt_u32 vcc, 48, v0")
e("s_waitcnt lgkmcnt(0)")
for k in range(4):
    e(f"v_cndmask_b32 v{TA+4+k}, 0, v{TA+4+k}, vcc")
stamp(3)
e("s_waitcnt vmcnt(8)")
e("v_mov_b32 v6, 1")
lds_signal(F_WQA, 3, 6)
transpose_set(TD, TB)
e("s_nop 1")
mfma_set(TDA, TA, TB, True)
transpose_set(TD+32, TB, waits=[6, 4, 2, 0])
e("s_nop 1")
mfma_set(TDA, TA+4, TB, False)
mk_tag()
e(f"s_or_b32 {sU1}, {sTAG}, {sU0}")
e(f"v_mov_b32 v9, {sU1}")
e(f"s_mul_i32 {sT0}, {sH}, 12288")
e(f"s_add_u32 {sU3}, {sT0}, {W_QMB}")
e(f"s_mul_i32 {sT1}, {sJ}, 384")
e(f"s_add_u32 {sU2}, {sU3}, {sT1}")
G = 12
tile_out_granules(TDA, G, 9)
publish_granules(G, 4, sU2, False)
stamp(4)
e("v_lshrrev_b32 v2, 3, v0")
e("v_mul_u32_u24 v2, 384, v2")
e("v_and_b32 v7, 7, v0")
e("v_lshl_add_u32 v2, v7, 4, v2")
e(f"v_mov_b32 v10, {sTAG}")
e(f"v_mov_b32 v11, {sU1}")
e(f"s_mov_b32 {sU5}, 0")
e(f"s_mov_b32 {sU0}, 0")
GD = 24
lds_wait(F_KHALF, 4, 3, 7)
stamp(5)
lab("L_qpoll")
e(f"s_cmp_ge_u32 {sU5}, {NTRY}")
e(f"s_cselect_b32 {sT2}, {sU5}, 0")
e(f"s_and_b32 {sT2}, {sT2}, 1")
e(f"s_mul_i32 {sT2}, {sT2}, {W_BOFF}")
e(f"s_add_u32 {sT0}, {sT2}, {sU3}")
for rq in range(4):
    e(f"s_add_u32 {sT1}, {sT0}, {3072*rq}")
    for k in range(3):
        r = GD+12*rq+4*k
        e(f"buffer_load_dwordx4 v[{r}:{r+3}], v2, {srd(SRD_WS)}, {sT1} offen offset:{128*k} sc1")
e(f"s_cmp_lg_u32 {sU5}, 0")
e("s_cbranch_scc1 L_q_nosig")
e("v_mov_b32 v6, 1")
lds_signal(F_QISS, 3, 6)
lab("L_q_nosig")
e("s_waitcnt vmcnt(0)")
e(f"v_xor_b32 v6, v{GD+3}, v10")
for i in range(1, 12):
    e(f"v_xor_b32 v7, v{GD+4*i+3}, v10")
    e("v_or_b32 v6, v6, v7")
e("v_cmp_lt_u32 vcc, 7, v6")
e("s_cmp_eq_u64 vcc, 0")
e("s_cbranch_scc1 L_qgot")
e(f"s_add_u32 {sU5}, {sU5}, 1")
e(f"s_cmp_lg_u32 {sU5}, {NTRY}")
e("s_cbranch_scc1 L_q_nob")
def q_pub_b():
    publish_granules(G, 4, sU2, True)
    e(f"s_mov_b32 {sU0}, 1")
q_pub_b()
lab("L_q_nob")
e(f"s_cmp_lt_u32 {sU5}, {SPIN_LIMIT}")
e("s_cbranch_scc1 L_qpoll")
lab("L_qgot")
e(f"v_xor_b32 v5, v{GD+3}, v11")
for rq in range(1, 4):
    e(f"v_xor_b32 v6, v{GD+12*rq+3}, v11")
    e("v_or_b32 v5, v5, v6")
for i in range(8):
    p = GPOS[i]
    e(f"v_add_f32 v{GD+p}, v{GD+p}, v{GD+12+p}")
    e(f"v_add_f32 v{GD+24+p}, v{GD+24+p}, v{GD+36+p}")
for i in range(8):
    p = GPOS[i]
    e(f"v_add_f32 v{GD+p}, v{GD+p}, v{GD+24+p}")
for k in range(4):
    e(f"v_cvt_pk_bf16_f32 v{GD+12+k}, v{GD+GPOS[2*k]}, v{GD+GPOS[2*k+1]}")
e(f"ds_write_b128 v4, v[{GD+12}:{GD+15}] offset:{L_Q}")
e("v_cmp_ne_u32 vcc, 0, v5")
e("s_cmp_eq_u64 vcc, 0")
e(f"s_cselect_b32 {sT0}, 2, 1")
e(f"v_mov_b32 v6, {sT0}")
e("s_mov_b64 exec, 1")
e(f"ds_write_b32 v3, v6 offset:{F_QRDY}")
e("s_mov_b64 exec, -1")
stamp(6)
e(f"s_cmp_lg_u32 {sU0}, 0")
e("s_cbranch_scc1 L_q_bdone2")
q_pub_b()
lab("L_q_bdone2")
stamps_out(7, sU5)
e("s_endpgm")

lab("L_others")
e(f"s_cmp_eq_u32 {sWV}, 9")
e("s_cbranch_scc1 L_roleF")
common_scalars()
e(f"s_cmp_ge_u32 {sWV}, 5")
e("s_cbranch_scc1 L_roleV")
lab("L_roleK")
KD = 16; QF = 80; KA = 96
e(f"s_sub_u32 {sU0}, {sWV}, 1")
e(f"s_and_b32 {sT0}, {sX7}, 7")
e("v_and_b32 v2, 7, v0")
e(f"v_xor_b32 v2, {sT0}, v2")
e("v_lshlrev_b32 v2, 9, v2")
e("v_lshrrev_b32 v3, 3, v0")
e("v_lshl_or_b32 v2, v3, 4, v2")
e("v_mov_b32 v4, 0")
e("v_mov_b32 v5, 1")
e("v_and_b32 v6, 1, v0")
e("v_lshlrev_b32 v6, 9, v6")
e("v_bfe_u32 v7, v0, 1, 1")
e("v_lshrrev_b32 v8, 4, v0")
e("v_lshl_add_u32 v7, v8, 1, v7")
e("v_lshl_add_u32 v6, v7, 4, v6")
e("v_bfe_u32 v9, v0, 1, 1")
e("v_lshlrev_b32 v9, 10, v9")
e("v_and_b32 v10, 1, v0")
e("v_lshl_or_b32 v9, v10, 9, v9")
e("v_bfe_u32 v10, v0, 4, 1")
e("v_lshl_or_b32 v9, v10, 4, v9")
e(f"s_lshl_b32 {sT0}, {sU0}, 7")
e(f"v_add_u32 v9, {sT0}, v9")
e(f"s_and_b32 {sU1}, {sX7}, 0x78")
e(f"s_lshl_b32 {sU2}, {sU0}, 5")
kv_off()
e(f"s_mov_b32 {sU3}, {sT0}")
e("s_waitcnt lgkmcnt(0)")
mk_srd(SRD_A, pK, 65536, add_lo=sU3)
mk_srd(SRD_WS, pWS, WS_SIZE)
stamp(1)
for rgp in range(4):
    e(f"s_add_u32 {sT2}, {sU2}, {8*rgp}")
    e(f"s_xor_b32 {sT2}, {sT2}, {sU1}")
    e(f"s_lshl_b32 {sT2}, {sT2}, 9")
    for u in range(4):
        e(f"s_xor_b32 {sT1}, {sXS}, {u}")
        e(f"s_lshl_b32 {sT1}, {sT1}, 7")
        e(f"s_or_b32 {sT1}, {sT1}, {sT2}")
        r = KD+16*rgp+4*u
        if 4*rgp+u == KEARLY:
            e(f"s_mov_b32 {sT3}, {sT1}")
            lds_wait(F_WQA, 1, 4, 11)
            e(f"s_mov_b32 {sT1}, {sT3}")
        if 4*rgp+u >= KWIN: e(f"s_waitcnt vmcnt({KWIN-1})")
        e(f"buffer_load_dwordx4 v[{r}:{r+3}], v2, {srd(SRD_A)}, {sT1} offen nt")
lds_signal(F_KISS, 4, 5)
e(f"s_load_dword {sTAG}, s[{pWS}:{pWS+1}], 0")
e(f"s_waitcnt vmcnt({KTRIG})")
lds_signal(F_KHALF, 4, 5)
stamp(2)
if PROFILE:
    e("s_waitcnt vmcnt(0)")
    e(f"s_memrealtime s[{sSTAMP+2}:{sSTAMP+3}]")
lds_wait(F_QRDY, 1, 4, 11)
e(f"s_mov_b32 {sFAST}, {sT0}")
for u in range(4):
    e(f"s_xor_b32 {sT1}, {sXS}, {u}")
    e(f"s_lshl_b32 {sT1}, {sT1}, 7")
    e(f"s_add_u32 {sT1}, {sT1}, {L_Q}")
    e(f"v_add_u32 v11, {sT1}, v6")
    e(f"ds_read_b128 v[{QF+4*u}:{QF+4*u+3}], v11")
e("s_waitcnt vmcnt(0) lgkmcnt(0)")
for u in range(4):
    for rgp in range(4):
        r = KD+16*rgp+4*u
        c = "0" if u == 0 else f"v[{KA+4*rgp}:{KA+4*rgp+3}]"
        e(f"v_mfma_f32_16x16x32_bf16 v[{KA+4*rgp}:{KA+4*rgp+3}], v[{r}:{r+3}], v[{QF+4*u}:{QF+4*u+3}], {c}")
e("s_nop 7")
e("s_mov_b32 exec_lo, 0x00030003")
e("s_mov_b32 exec_hi, 0x000C000C")
for rgp in range(4):
    e(f"ds_write_b128 v9, v[{KA+4*rgp}:{KA+4*rgp+3}] offset:{L_SC+32*rgp}")
e("s_mov_b64 exec, -1")
lds_signal(F_SDONE, 4, 5)
stamp(3)
def reduce32(op, a, t):
    for r in (8, 4, 2, 1):
        e("s_nop 1")
        e(f"{op}_dpp v{a}, v{a}, v{a} row_ror:{r} row_mask:0xf bank_mask:0xf")
    e(f"v_mov_b32 v{t}, v{a}")
    e("s_nop 1")
    e(f"v_permlane16_swap_b32 v{a}, v{t}")
    e("s_nop 1")
    e(f"{op} v{a}, v{a}, v{t}")
e(f"s_cmp_lg_u32 {sU0}, 0")
e("s_cbranch_scc1 L_k_nosoft")
e("v_lshrrev_b32 v6, 5, v0")
e("v_and_b32 v7, 31, v0")
e("v_lshlrev_b32 v8, 9, v6")
e("v_lshl_add_u32 v8, v7, 4, v8")
e("v_lshlrev_b32 v9, 8, v6")
e("v_lshl_add_u32 v16, v7, 3, v9")
C_EXP = 0.0625*1.4426950408889634
e(f"s_mov_b32 {sT2}, {f2h(C_EXP)}")
e(f"s_lshl_b32 {sT1}, {sH}, 9")
e(f"s_lshl_b32 {sT3}, {sJ}, 3")
e(f"s_add_u32 {sT1}, {sT1}, {sT3}")
e(f"s_add_u32 {sU1}, {sT1}, {W_ML}")
lds_wait(F_SDONE, 4, 4, 11, sleep=0)
e(f"ds_read_b128 v[20:23], v8 offset:{L_SC}")
e(f"ds_read_b128 v[24:27], v8 offset:{L_SC+1024}")
e("s_waitcnt lgkmcnt(0)")
for k in range(4): e(f"v_add_f32 v{20+k}, v{20+k}, v{24+k}")
e("v_cvt_pk_bf16_f32 v24, v20, v21")
e("v_cvt_pk_bf16_f32 v25, v22, v23")
e("v_lshlrev_b32 v20, 16, v24")
e("v_and_b32 v21, 0xffff0000, v24")
e("v_lshlrev_b32 v22, 16, v25")
e("v_and_b32 v23, 0xffff0000, v25")
e("v_max3_f32 v10, v20, v21, v22")
e("v_max_f32 v10, v10, v23")
reduce32("v_max_f32", 10, 11)
for k in range(4): e(f"v_sub_f32 v{20+k}, v{20+k}, v10")
for k in range(4): e(f"v_mul_f32 v{20+k}, {sT2}, v{20+k}")
for k in range(4): e(f"v_exp_f32 v{20+k}, v{20+k}")
e("s_nop 0")
e("v_cvt_pk_bf16_f32 v24, v20, v21")
e("v_cvt_pk_bf16_f32 v25, v22, v23")
e(f"ds_write_b64 v16, v[24:25] offset:{L_P}")
lds_signal(F_PRDY, 4, 5)
e("v_add_f32 v11, v20, v21")
e("v_add_f32 v12, v22, v23")
e("v_add_f32 v11, v11, v12")
reduce32("v_add_f32", 11, 12)
e(f"v_mul_f32 v10, {sT2}, v10")
e("s_mov_b32 exec_lo, 1")
e("s_mov_b32 exec_hi, 1")
e(f"s_cmp_eq_u32 {sFAST}, 2")
e("s_cbranch_scc1 L_k_mlfast")
e(f"buffer_store_dwordx2 v[10:11], v9, {srd(SRD_WS)}, {sU1} offen sc1")
e("s_branch L_k_mldone")
lab("L_k_mlfast")
e(f"buffer_store_dwordx2 v[10:11], v9, {srd(SRD_WS)}, {sU1} offen")
lab("L_k_mldone")
e("s_mov_b64 exec, -1")
if PROFILE: e(f"s_memrealtime s[{sSTAMP+4}:{sSTAMP+5}]")
lab("L_k_nosoft")
e(f"s_cmp_ge_u32 {sJ}, 28")
e("s_cbranch_scc1 L_k_end")
e(f"s_and_b32 {sU1}, {sJ}, 3")
mk_tag()
e(f"v_mov_b32 v12, {sTAG}")
e("v_and_b32 v13, 31, v0")
e("v_lshlrev_b32 v13, 2, v13")
e(f"s_lshl_b32 {sT0}, {sH}, 7")
e(f"s_add_u32 {sU2}, {sT0}, {W_READY}")
e("v_lshlrev_b32 v14, 1, v13")
e(f"s_lshr_b32 {sT0}, {sU1}, 1")
e(f"s_lshl_b32 {sT1}, {sH}, 1")
e(f"s_add_u32 {sT0}, {sT0}, {sT1}")
e(f"s_lshl_b32 {sT0}, {sT0}, 8")
e(f"s_add_u32 {sU4}, {sT0}, {W_ML}")
e("v_lshrrev_b32 v15, 3, v0")
e("v_lshlrev_b32 v16, 11, v15")
e("v_and_b32 v17, 7, v0")
e("v_lshl_add_u32 v16, v17, 4, v16")
e(f"s_lshl_b32 {sT0}, {sH}, 16")
e(f"s_lshl_b32 {sT1}, {sU1}, 9")
e(f"s_add_u32 {sT0}, {sT0}, {sT1}")
e(f"s_lshl_b32 {sT1}, {sU0}, 7")
e(f"s_add_u32 {sT0}, {sT0}, {sT1}")
e(f"s_add_u32 {sU5}, {sT0}, {W_OP}")
e("v_lshlrev_b32 v15, 2, v15")
e("v_lshlrev_b32 v18, 2, v17")
e("v_bfe_u32 v19, v0, 5, 1")
e("v_lshl_add_u32 v18, v19, 1, v18")
e("v_bfe_u32 v19, v0, 4, 1")
e("v_add_u32 v18, v18, v19")
e("v_lshlrev_b32 v18, 1, v18")
e(f"s_lshl_b32 {sT0}, {sU0}, 6")
e(f"v_add_u32 v18, {sT0}, v18")
e(f"s_mov_b32 {sCNT}, 0")
lab("L_k_rdy")
e(f"buffer_load_dword v20, v13, {srd(SRD_WS)}, {sU2} offen sc1")
e("s_waitcnt vmcnt(0)")
e("v_xor_b32 v20, v20, v12")
e("v_cmp_lt_u32 vcc, 7, v20")
e("s_cmp_eq_u64 vcc, 0")
e("s_cbranch_scc1 L_k_rdy_ok")
e("s_sleep 4")
e(f"s_add_u32 {sCNT}, {sCNT}, 1")
e(f"s_cmp_lt_u32 {sCNT}, {SPIN_LIMIT}")
e("s_cbranch_scc1 L_k_rdy")
lab("L_k_rdy_ok")
if OPIPE:
    lds_wait(F_VISS, 4, 4, 11)
    e(f"s_mov_b32 {sCNT}, 0")
    e(f"buffer_load_dwordx2 v[20:21], v14, {srd(SRD_WS)}, {sU4} offen sc1")
    e("s_sleep 12")
    e(f"buffer_load_dwordx2 v[48:49], v14, {srd(SRD_WS)}, {sU4} offen sc1")
    lab("L_mlpoll")
    e("s_waitcnt vmcnt(1)")
    e("v_max_u32 v22, v20, v21")
    e("v_cmp_eq_u32 vcc, -1, v22")
    e("s_cmp_eq_u64 vcc, 0")
    e("s_cbranch_scc1 L_mlgot")
    e(f"buffer_load_dwordx2 v[20:21], v14, {srd(SRD_WS)}, {sU4} offen sc1")
    e("s_waitcnt vmcnt(1)")
    e("v_max_u32 v22, v48, v49")
    e("v_cmp_eq_u32 vcc, -1, v22")
    e("s_cmp_eq_u64 vcc, 0")
    e("s_cbranch_scc1 L_mlgot2")
    e(f"buffer_load_dwordx2 v[48:49], v14, {srd(SRD_WS)}, {sU4} offen sc1")
    e(f"s_add_u32 {sCNT}, {sCNT}, 1")
    e(f"s_cmp_lt_u32 {sCNT}, {SPIN_LIMIT}")
    e("s_cbranch_scc1 L_mlpoll")
    lab("L_mlgot2")
    e("s_waitcnt vmcnt(0)")
    e("v_mov_b32 v20, v48")
    e("v_mov_b32 v21, v49")
    lab("L_mlgot")
    e("s_waitcnt vmcnt(0)")
    stamp(4)
    e("v_mov_b32 v22, v20")
    reduce32("v_max_f32", 22, 23)
    e("v_sub_f32 v20, v20, v22")
    e("v_exp_f32 v20, v20")
    e("s_nop 0")
    e("v_mul_f32 v21, v20, v21")
    reduce32("v_add_f32", 21, 23)
    e("v_rcp_f32 v21, v21")
    e("s_nop 0")
    e("v_mul_f32 v20, v20, v21")
    for u in range(4):
        e(f"v_add_u32 v23, {32*u}, v15")
        e(f"ds_bpermute_b32 v{24+u}, v23, v20")
    lds_wait(F_VDONE, 4, 4, 11, sleep=0)
    e(f"s_mov_b32 {sCNT}, 0")
    OGS = [32, 48]
    def o_issue(bi):
        for u in range(4):
            e(f"s_add_u32 {sT1}, {sU5}, {8*2048*u}")
            e(f"buffer_load_dwordx4 v[{OGS[bi]+4*u}:{OGS[bi]+4*u+3}], v16, {srd(SRD_WS)}, {sT1} offen sc1")
    o_issue(0)
    e(f"s_sleep {OSL}")
    o_issue(1)
    lab("L_opoll")
    for bi in range(2):
        OG = OGS[bi]
        for u in range(4):
            e(f"s_waitcnt vmcnt({4+3-u})")
            for d in range(4):
                if u == 0: e(f"v_mul_f32 v{28+d}, v24, v{OG+d}")
                else: e(f"v_fmac_f32 v{28+d}, v{24+u}, v{OG+4*u+d}")
        e("v_add_f32 v22, v28, v29")
        e("v_add_f32 v22, v22, v30")
        e("v_add_f32 v22, v22, v31")
        e("v_cmp_u_f32 vcc, v22, v22")
        e("s_cmp_eq_u64 vcc, 0")
        e("s_cbranch_scc1 L_ogot")
        e(f"v_max_u32 v22, v{OG}, v{OG+1}")
        for i in range(2, 16, 2):
            e(f"v_max3_u32 v22, v22, v{OG+i}, v{OG+i+1}")
        e("v_cmp_eq_u32 vcc, -1, v22")
        e("s_cmp_eq_u64 vcc, 0")
        e("s_cbranch_scc1 L_ogot")
        o_issue(bi)
    e(f"s_add_u32 {sCNT}, {sCNT}, 1")
    e(f"s_cmp_lt_u32 {sCNT}, {SPIN_LIMIT}")
    e("s_cbranch_scc1 L_opoll")
else:
    lds_wait(F_VDONE, 4, 4, 11, sleep=0)
    e(f"s_mov_b32 {sCNT}, 0")
    OG = 32
    lab("L_opoll")
    e(f"buffer_load_dwordx2 v[20:21], v14, {srd(SRD_WS)}, {sU4} offen sc1")
    for u in range(4):
        e(f"s_add_u32 {sT1}, {sU5}, {8*2048*u}")
        e(f"buffer_load_dwordx4 v[{OG+4*u}:{OG+4*u+3}], v16, {srd(SRD_WS)}, {sT1} offen sc1")
    e("s_waitcnt vmcnt(4)")
    e("v_max_u32 v22, v20, v21")
    e("v_cmp_eq_u32 vcc, -1, v22")
    e("s_cmp_eq_u64 vcc, 0")
    e("s_cbranch_scc1 L_mlgot")
    e("s_waitcnt vmcnt(0)")
    e(f"s_add_u32 {sCNT}, {sCNT}, 1")
    e(f"s_cmp_lt_u32 {sCNT}, {SPIN_LIMIT}")
    e("s_cbranch_scc1 L_opoll")
    lab("L_mlgot")
    stamp(4)
    e("v_mov_b32 v22, v20")
    reduce32("v_max_f32", 22, 23)
    e("v_sub_f32 v20, v20, v22")
    e("v_exp_f32 v20, v20")
    e("s_nop 0")
    e("v_mul_f32 v21, v20, v21")
    reduce32("v_add_f32", 21, 23)
    e("v_rcp_f32 v21, v21")
    e("s_nop 0")
    e("v_mul_f32 v20, v20, v21")
    for u in range(4):
        e(f"v_add_u32 v23, {32*u}, v15")
        e(f"ds_bpermute_b32 v{24+u}, v23, v20")
    e("s_waitcnt vmcnt(0) lgkmcnt(0)")
    for u in range(4):
        for d in range(4):
            if u == 0: e(f"v_mul_f32 v{28+d}, v24, v{OG+d}")
            else: e(f"v_fmac_f32 v{28+d}, v{24+u}, v{OG+4*u+d}")
    nan_or_sentinel_check([28, 29, 30, 31], list(range(OG, OG+16)), "L_ogot", "L_opoll", sCNT, 22, 23)
lab("L_ogot")
stamp(5)
e("v_permlane32_swap_b32 v28, v30")
e("v_permlane32_swap_b32 v29, v31")
e("s_nop 1")
e("v_add_f32 v28, v28, v30")
e("v_add_f32 v29, v29, v31")
e("s_nop 1")
e("v_permlane16_swap_b32 v28, v29")
e("s_nop 1")
e("v_add_f32 v28, v28, v29")
e("s_nop 1")
e("v_add_f32_dpp v28, v28, v28 row_ror:8 row_mask:0xf bank_mask:0xf")
e("v_cvt_pk_bf16_f32 v28, v28, v28")
e(f"ds_write_b16 v18, v28 offset:{L_OL}")
lds_signal(F_ORDY, 4, 5)
stamp(6)
lab("L_k_end")
stamps_out(7, sCNT)
e("s_endpgm")

lab("L_roleV")
VD = 16; BF = 80; DA = 112; AF = 144; SCR = 80
e(f"s_sub_u32 {sU0}, {sWV}, 5")
e(f"s_xor_b32 {sU3}, {sU0}, {sXW}")
e(f"s_and_b32 {sT0}, {sX7}, 0x38")
e("v_and_b32 v2, 0x38, v0")
e(f"v_xor_b32 v2, {sT0}, v2")
e("v_lshlrev_b32 v2, 9, v2")
e("v_and_b32 v3, 7, v0")
e("v_lshl_or_b32 v2, v3, 4, v2")
e(f"s_lshl_b32 {sT0}, {sU3}, 7")
e(f"v_add_u32 v2, {sT0}, v2")
e("v_mov_b32 v4, 0")
e("v_mov_b32 v5, 1")
e("v_and_b32 v6, 1, v0")
e("v_lshlrev_b32 v6, 9, v6")
e("v_bfe_u32 v7, v0, 1, 1")
e("v_lshrrev_b32 v8, 4, v0")
e("v_lshl_add_u32 v7, v8, 1, v7")
e("v_lshl_add_u32 v6, v7, 5, v6")
e("v_and_b32 v9, 7, v0")
e("v_lshlrev_b32 v9, 5, v9")
e(f"s_lshl_b32 {sT0}, {sU3}, 8")
e(f"v_add_u32 v9, {sT0}, v9")
e(f"s_lshl_b32 {sT0}, {sH}, 5")
e(f"s_add_u32 {sT0}, {sT0}, {sJ}")
e(f"s_lshl_b32 {sT0}, {sT0}, 11")
e(f"s_add_u32 {sU2}, {sT0}, {W_OP}")
e(f"s_and_b32 {sU1}, {sX7}, 0x47")
kv_off()
e(f"s_mov_b32 {sU4}, {sT0}")
e("s_waitcnt lgkmcnt(0)")
mk_srd(SRD_A, pV, 65536, add_lo=sU4)
mk_srd(SRD_WS, pWS, WS_SIZE)
e(f"s_load_dword {sTAG}, s[{pWS}:{pWS+1}], 0")
e(f"s_lshl_b32 {sT0}, {sH}, 2")
e(f"s_add_u32 {sT0}, {sT0}, {sU3}")
e(f"s_lshl_b32 {sT0}, {sT0}, 7")
e(f"s_lshl_b32 {sT1}, {sJ}, 2")
e(f"s_add_u32 {sT0}, {sT0}, {sT1}")
e(f"s_add_u32 {sU5}, {sT0}, {W_OF}")
lds_wait(F_QISS, 1, 4, 11)
stamp(1)
for s in range(2):
    if s == 1 and VGATE: lds_wait(F_QRDY, 1, 4, 11)
    for r in range(8):
        e(f"s_xor_b32 {sT1}, {sU1}, {r | (s << 6)}")
        e(f"s_lshl_b32 {sT1}, {sT1}, 9")
        q = VD+32*s+4*r
        if 8*s+r >= VWIN: e(f"s_waitcnt vmcnt({VWIN-1})")
        e(f"buffer_load_dwordx4 v[{q}:{q+3}], v2, {srd(SRD_A)}, {sT1} offen nt")
lds_signal(F_VISS, 4, 5)
stamp(2)
BF1 = 112; DA = 16
mk_tag()
e(f"v_mov_b32 v13, {sTAG}")
e("v_and_b32 v10, 1, v0")
e("v_lshlrev_b32 v10, 8, v10")
e("v_bfe_u32 v11, v0, 1, 1")
e("v_lshrrev_b32 v14, 4, v0")
e("v_lshl_add_u32 v11, v14, 1, v11")
e("v_lshl_add_u32 v10, v11, 4, v10")
e("s_waitcnt vmcnt(8)")
transpose_set(VD, BF)
e(f"ds_read_b32 v11, v4 offset:{F_PRDY}")
e(f"ds_read_b32 v12, v4 offset:{F_QRDY}")
e(f"ds_read_b128 v[{AF}:{AF+3}], v10 offset:{L_P}")
e(f"ds_read_b128 v[{AF+4}:{AF+7}], v10 offset:{L_P+128}")
e("s_waitcnt lgkmcnt(0)")
e(f"v_readfirstlane_b32 {sU1}, v11")
e(f"v_readfirstlane_b32 {sFAST}, v12")
e(f"s_cmp_eq_u32 {sU1}, 0")
e("s_cbranch_scc1 L_v_late")
stamp(3)
mfma_set(DA, AF, BF, True)
transpose_set(VD+32, BF1, waits=[6, 4, 2, 0])
stamp(5)
e("s_branch L_v_m1")
lab("L_v_late")
transpose_set(VD+32, BF1, waits=[6, 4, 2, 0])
lds_wait(F_PRDY, 1, 4, 11, sleep=0)
e(f"ds_read_b32 v12, v4 offset:{F_QRDY}")
e(f"ds_read_b128 v[{AF}:{AF+3}], v10 offset:{L_P}")
e(f"ds_read_b128 v[{AF+4}:{AF+7}], v10 offset:{L_P+128}")
e("s_waitcnt lgkmcnt(0)")
e(f"v_readfirstlane_b32 {sFAST}, v12")
stamp(3)
mfma_set(DA, AF, BF, True)
stamp(5)
lab("L_v_m1")
e("s_nop 1")
mfma_set(DA, AF+4, BF1, False)
e("s_nop 3")
OO = 80
for rp in range(8):
    if rp == 7: e("s_nop 3")
    for hd in range(2):
        e(f"v_add_f32_dpp v{OO+8*hd+rp}, v{DA+4*rp+2+hd}, v{DA+4*rp+hd} row_shl:8 row_mask:0xf bank_mask:0xf")
e("s_mov_b64 exec, 0xff")
e(f"s_cmp_eq_u32 {sFAST}, 2")
e("s_cbranch_scc1 L_v_ofast")
for hd in range(2):
    for q in range(2):
        e(f"buffer_store_dwordx4 v[{OO+8*hd+4*q}:{OO+8*hd+4*q+3}], v9, {srd(SRD_WS)}, {sU2} offen offset:{1024*hd+16*q} sc1")
e("s_branch L_v_odone")
lab("L_v_ofast")
for hd in range(2):
    for q in range(2):
        e(f"buffer_store_dwordx4 v[{OO+8*hd+4*q}:{OO+8*hd+4*q+3}], v9, {srd(SRD_WS)}, {sU2} offen offset:{1024*hd+16*q}")
lab("L_v_odone")
if OHINT:
    e("s_mov_b64 exec, 1")
    e(f"s_cmp_eq_u32 {sFAST}, 2")
    e("s_cbranch_scc1 L_v_ffast")
    e(f"buffer_store_dword v13, v4, {srd(SRD_WS)}, {sU5} offen sc1")
    e("s_branch L_v_fdone")
    lab("L_v_ffast")
    e(f"buffer_store_dword v13, v4, {srd(SRD_WS)}, {sU5} offen")
    lab("L_v_fdone")
e("s_mov_b64 exec, -1")
lds_signal(F_VDONE, 4, 5)
stamp(6)
stamps_out(7)
e("s_endpgm")

lab("L_roleF")
FD = 16; FB = 48; FDA = 80; FA_ = 112; FG = 116; F2D = 128
e(f"s_lshr_b32 {sT0}, {sJ}, 3")
e(f"s_lshl_b32 {sT0}, {sT0}, 3")
e(f"s_add_u32 {sU0}, {sT0}, {sH}")
e(f"s_and_b32 {sU1}, {sJ}, 7")
e(f"s_mul_i32 {sT0}, {sJ}, 37")
e(f"s_lshr_b32 {sT0}, {sT0}, 8")
e(f"s_mul_i32 {sT1}, {sT0}, 7")
e(f"s_sub_u32 {sU3}, {sJ}, {sT1}")
e(f"s_lshl_b32 {sT0}, {sT0}, 3")
e(f"s_add_u32 {sU2}, {sT0}, {sH}")
e("v_mov_b32 v4, 0")
e("v_mov_b32 v5, 1")
e("v_lshlrev_b32 v6, 4, v0")
e("v_lshrrev_b32 v2, 3, v0")
e("v_min_u32 v3, 6, v2")
e("v_mul_u32_u24 v3, 28672, v3")
e("v_and_b32 v7, 7, v0")
e("v_lshl_add_u32 v3, v7, 4, v3")
e("v_mul_u32_u24 v2, 7168, v2")
e("v_lshl_add_u32 v2, v7, 4, v2")
e("s_waitcnt lgkmcnt(0)")
mk_srd(SRD_WS, pWS, WS_SIZE)
mk_srd(SRD_A, pW1, 448*3584)
mk_srd(SRD_B, pW2, 1792*896)
mk_srd(SRD_C, pB1, 3584)
e(f"s_add_u32 {sT0}, {sU2}, 32")
e(f"s_lshl_b32 {sT0}, {sT0}, 11")
e(f"s_lshl_b32 {sT1}, {sU3}, 8")
e(f"s_add_u32 {sT0}, {sT0}, {sT1}")
e(f"s_add_u32 {sU4}, {sT0}, {W_AP}")
e("s_setprio 1")
e(f"s_cmp_ge_u32 {sU2}, 28")
e("s_cbranch_scc1 L_f_noclr")
for k in range(4): e(f"v_mov_b32 v{8+k}, -1")
e("s_mov_b64 exec, 0xffff")
if CLR != "none": e(f"buffer_store_dwordx4 v[8:11], v6, {srd(SRD_WS)}, {sU4} offen sc1")
e("s_mov_b64 exec, -1")
lab("L_f_noclr")
e(f"s_mov_b32 {sU5}, 0")
e(f"s_cmp_ge_u32 {sU0}, 28")
e("s_cbranch_scc1 L_f_now1")
e(f"s_mul_i32 {sT0}, {sU1}, {56*3584}")
e(f"s_lshl_b32 {sT1}, {sU0}, 7")
e(f"s_add_u32 {sT0}, {sT0}, {sT1}")
for r in range(8):
    e(f"s_add_u32 {sT1}, {sT0}, {r*3584}")
    e(f"buffer_load_dwordx4 v[{FD+4*r}:{FD+4*r+3}], v3, {srd(SRD_A)}, {sT1} offen nt")
lab("L_f_now1")
e(f"s_load_dword {sTAG}, s[{pWS}:{pWS+1}], 0")
stamp(1)
def w2_loads():
    e(f"s_mul_i32 {sT0}, {sU2}, {64*896}")
    e(f"s_lshl_b32 {sT1}, {sU3}, 7")
    e(f"s_add_u32 {sT0}, {sT0}, {sT1}")
    for r in range(8):
        e(f"s_add_u32 {sT1}, {sT0}, {r*896}")
        e(f"buffer_load_dwordx4 v[{F2D+4*r}:{F2D+4*r+3}], v2, {srd(SRD_B)}, {sT1} offen nt")
    e("v_and_b32 v12, 7, v0")
    e("v_lshlrev_b32 v12, 4, v12")
    e("v_lshrrev_b32 v13, 4, v0")
    e("v_lshl_add_u32 v14, v13, 2, v12")
    e(f"s_lshl_b32 {sT0}, {sU2}, 7")
    e(f"v_add_u32 v15, {sT0}, v14")
    e(f"buffer_load_dword v8, v15, {srd(SRD_C)}, 0 offen")
e(f"s_cmp_ge_u32 {sU0}, 28")
e("s_cbranch_scc1 L_f_stage2")
lds_wait(F_XN, 1, 4, 11)
e("v_bfe_u32 v12, v0, 1, 1")
e("v_lshrrev_b32 v13, 4, v0")
e("v_lshl_add_u32 v12, v13, 1, v12")
e("v_cmp_gt_u32 vcc, 7, v12")
e("v_lshlrev_b32 v12, 4, v12")
e(f"s_mul_i32 {sT0}, {sU1}, 112")
e(f"v_add_u32 v12, {sT0}, v12")
e(f"ds_read_b128 v[{FA_}:{FA_+3}], v12 offset:{L_XN}")
e("s_waitcnt vmcnt(0) lgkmcnt(0)")
lds_signal(F_CLR, 4, 5)
for k in range(4): e(f"v_cndmask_b32 v{FA_+k}, 0, v{FA_+k}, vcc")
transpose_set(FD, FB)
e("s_nop 1")
mfma_set(FDA, FA_, FB, True)
mk_tag()
e(f"v_mov_b32 v9, {sTAG}")
e(f"s_mul_i32 {sT0}, {sU0}, 3072")
e(f"s_mul_i32 {sT1}, {sU1}, 384")
e(f"s_add_u32 {sT0}, {sT0}, {sT1}")
e(f"s_add_u32 {sU5}, {sT0}, {W_HMB}")
tile_out_granules(FDA, FG, 9)
publish_granules(FG, 6, sU5, False)
e(f"s_mov_b32 s86, {sU5}")
e("s_mov_b32 s87, 0")
stamp(2)
e("s_branch L_f_stage2b")
lab("L_f_stage2")
e("s_mov_b32 s87, 1")
e("s_waitcnt vmcnt(0) lgkmcnt(0)")
lds_signal(F_CLR, 4, 5)
mk_tag()
def f_pub_b():
    L = uid("fb")
    e("s_cmp_lg_u32 s87, 0")
    e(f"s_cbranch_scc1 {L}")
    publish_granules(FG, 6, "s86", True)
    e("s_mov_b32 s87, 1")
    lab(L)
lab("L_f_stage2b")
e(f"s_cmp_ge_u32 {sU2}, 28")
e("s_cbranch_scc1 L_f_endb")
e("v_and_b32 v12, 7, v0")
e("v_lshlrev_b32 v12, 4, v12")
e("v_lshrrev_b32 v13, 3, v0")
e("v_mul_u32_u24 v13, 384, v13")
e("v_add_u32 v13, v13, v12")
e(f"s_mul_i32 {sT0}, {sU2}, 3072")
e(f"s_add_u32 {sU5}, {sT0}, {W_HMB}")
e(f"v_mov_b32 v10, {sTAG}")
lds_wait(F_KHALF, 4, 4, 11)
e(f"s_mov_b32 {sCNT}, 0")
e(f"s_mov_b32 s88, 0")
HG = 16
lab("L_hpoll")
e(f"s_cmp_ge_u32 s88, {NTRY}")
e(f"s_cselect_b32 {sT2}, s88, 0")
e(f"s_and_b32 {sT2}, {sT2}, 1")
e(f"s_mul_i32 {sT2}, {sT2}, {W_BOFF}")
e(f"s_add_u32 {sT0}, {sT2}, {sU5}")
for k in range(3):
    e(f"buffer_load_dwordx4 v[{HG+4*k}:{HG+4*k+3}], v13, {srd(SRD_WS)}, {sT0} offen offset:{128*k} sc1")
if not W2LATE:
    e("s_cmp_lg_u32 s88, 0")
    e("s_cbranch_scc1 L_h_w2done")
    e("v_mov_b32 v28, v13")
    w2_loads()
    e("v_mov_b32 v13, v28")
    e("s_waitcnt vmcnt(9)")
    e("s_branch L_h_chk")
    lab("L_h_w2done")
e("s_waitcnt vmcnt(0)")
lab("L_h_chk")
e(f"v_xor_b32 v11, v{HG+3}, v10")
e(f"v_xor_b32 v28, v{HG+7}, v10")
e("v_or_b32 v11, v11, v28")
e(f"v_xor_b32 v28, v{HG+11}, v10")
e("v_or_b32 v11, v11, v28")
e("v_cmp_lt_u32 vcc, 7, v11")
e("s_cmp_eq_u64 vcc, 0")
e("s_cbranch_scc1 L_hgot")
e("s_add_u32 s88, s88, 1")
e(f"s_cmp_lg_u32 s88, {NTRY}")
e("s_cbranch_scc1 L_h_nob")
f_pub_b()
lab("L_h_nob")
e(f"s_cmp_lt_u32 s88, {SPIN_LIMIT}")
e("s_cbranch_scc1 L_hpoll")
lab("L_hgot")
stamp(4)
e("s_waitcnt vmcnt(0)")
if W2LATE:
    e("v_and_b32 v12, 7, v0")
    e("v_lshlrev_b32 v12, 4, v12")
    e("v_lshrrev_b32 v13, 4, v0")
    e("v_lshl_add_u32 v14, v13, 2, v12")
    e(f"s_lshl_b32 {sT0}, {sU2}, 7")
    e(f"v_add_u32 v15, {sT0}, v14")
    e(f"buffer_load_dword v8, v15, {srd(SRD_C)}, 0 offen")
    lds_wait(F_VISS, 4, 4, 11)
    e(f"s_mul_i32 {sT0}, {sU2}, {64*896}")
    e(f"s_lshl_b32 {sT1}, {sU3}, 7")
    e(f"s_add_u32 {sT0}, {sT0}, {sT1}")
    for r in range(8):
        e(f"s_add_u32 {sT1}, {sT0}, {r*896}")
        e(f"buffer_load_dwordx4 v[{F2D+4*r}:{F2D+4*r+3}], v2, {srd(SRD_B)}, {sT1} offen nt")
    e("s_waitcnt vmcnt(8)")
hv = [HG+p for p in GPOS]
e("s_nop 1")
for i in range(8):
    e(f"v_add_f32_dpp v{hv[i]}, v{hv[i]}, v{hv[i]} row_ror:8 row_mask:0xf bank_mask:0xf")
e("s_nop 1")
for i in range(4): e(f"v_permlane32_swap_b32 v{hv[i]}, v{hv[i+4]}")
e("s_nop 1")
for i in range(4): e(f"v_add_f32 v{hv[i]}, v{hv[i]}, v{hv[i+4]}")
e("s_nop 1")
for i in range(2): e(f"v_permlane16_swap_b32 v{hv[i]}, v{hv[i+2]}")
e("s_nop 1")
for i in range(2): e(f"v_add_f32 v{hv[i]}, v{hv[i]}, v{hv[i+2]}")
X0, X1 = hv[0], hv[1]
e(f"v_cvt_pk_bf16_f32 v11, v{X0}, v{X1}")
e(f"v_lshlrev_b32 v{X0}, 16, v11")
e(f"v_and_b32 v{X1}, 0xffff0000, v11")
e("v_lshlrev_b32 v11, 16, v8")
e("v_and_b32 v12, 0xffff0000, v8")
e(f"v_add_f32 v{X0}, v{X0}, v11")
e(f"v_add_f32 v{X1}, v{X1}, v12")
e(f"v_cvt_pk_bf16_f32 v11, v{X0}, v{X1}")
e(f"v_lshlrev_b32 v{X0}, 16, v11")
e(f"v_and_b32 v{X1}, 0xffff0000, v11")
KB = -2.0*0.7978845608028654*1.4426950408889634
e(f"s_mov_b32 {sT2}, {f2h(0.044715)}")
e(f"s_mov_b32 {sT3}, {f2h(KB)}")
for x, t in ((X0, 60), (X1, 61)):
    e(f"v_mul_f32 v{t}, v{x}, v{x}")
    e(f"v_mul_f32 v{t}, v{t}, v{x}")
    e(f"v_fma_f32 v{t}, v{t}, {sT2}, v{x}")
    e(f"v_mul_f32 v{t}, {sT3}, v{t}")
    e(f"v_exp_f32 v{t}, v{t}")
    e("s_nop 0")
    e(f"v_add_f32 v{t}, 1.0, v{t}")
    e(f"v_rcp_f32 v{t}, v{t}")
    e("s_nop 0")
    e(f"v_mul_f32 v{x}, v{x}, v{t}")
e(f"v_cvt_pk_bf16_f32 v11, v{X0}, v{X1}")
e(f"ds_write_b32 v14, v11 offset:{L_HL}")
e("v_bfe_u32 v12, v0, 1, 1")
e("v_lshrrev_b32 v13, 4, v0")
e("v_lshl_add_u32 v12, v13, 1, v12")
e("v_lshlrev_b32 v12, 4, v12")
e(f"ds_read_b128 v[{FA_}:{FA_+3}], v12 offset:{L_HL}")
e("s_waitcnt vmcnt(0)")
transpose_set(F2D, FB)
e("s_waitcnt lgkmcnt(0)")
mfma_set(FDA, FA_, FB, True)
e("v_and_b32 v10, 7, v0")
e("v_lshlrev_b32 v10, 5, v10")
e("s_nop 3")
for rp in range(8):
    if rp == 7: e("s_nop 3")
    e(f"v_add_f32_dpp v{16+rp}, v{FDA+4*rp+2}, v{FDA+4*rp} row_shl:8 row_mask:0xf bank_mask:0xf")
e("s_mov_b64 exec, 0xff")
e(f"buffer_store_dwordx4 v[16:19], v10, {srd(SRD_WS)}, {sU4} offen sc1")
e(f"buffer_store_dwordx4 v[20:23], v10, {srd(SRD_WS)}, {sU4} offen offset:16 sc1")
e("s_mov_b64 exec, -1")
stamp(5)
lab("L_f_endb")
f_pub_b()
lab("L_f_end")
stamps_out(6, "s88")
e("s_endpgm")

lab("L_winit")
e("v_lshlrev_b32 v2, 2, v0")
e("v_mov_b32 v3, 0")
e("ds_write_b32 v2, v3")
e("s_waitcnt lgkmcnt(0)")
e("s_barrier")
kernarg_loads()
stamp(0)
zero_stamps()
e(f"s_and_b32 {sH}, s2, 7")
e(f"s_lshr_b32 {sJ}, s2, 3")
e(f"s_mov_b32 {sSELLO}, 0x05040100")
e(f"s_mov_b32 {sSELHI}, 0x07060302")
lab("L_roleW")
e("s_setprio 2")
WI = 16; WB = 80
e("v_mov_b32 v4, 0")
e("v_mov_b32 v5, 1")
e("v_lshlrev_b32 v6, 4, v0")
e(f"s_and_b32 {sU0}, {sJ}, 3")
e(f"s_lshr_b32 {sU1}, {sJ}, 2")
e(f"s_lshl_b32 {sT0}, {sH}, 2")
e(f"s_add_u32 {sT0}, {sT0}, {sU0}")
e(f"s_mul_i32 {sU3}, {sT0}, {128*896}")
e(f"s_lshl_b32 {sT1}, {sU1}, 7")
e(f"s_add_u32 {sU3}, {sU3}, {sT1}")
kv_off()
e(f"s_mov_b32 {sU4}, {sT0}")
e("s_waitcnt lgkmcnt(0)")
mk_srd(SRD_WS, pWS, WS_SIZE)
lds_wait(F_QLD, 1, 4, 11, sleep=0)
if TLBPF:
    e(f"s_add_u32 s86, s{pV}, {sU4}")
    e(f"s_addc_u32 s87, s{pV+1}, 0")
    e("v_mov_b32 v12, s86")
    e("v_mov_b32 v13, s87")
    e(f"s_min_u32 {sT0}, {sU3}, {4096*896-131072}")
    e(f"s_add_u32 s86, s{pWO}, {sT0}")
    e(f"s_addc_u32 s87, s{pWO+1}, 0")
    e("v_writelane_b32 v12, s86, 1")
    e("v_writelane_b32 v13, s87, 1")
    e(f"s_add_u32 s86, s86, {127*896}")
    e("s_addc_u32 s87, s87, 0")
    e("v_writelane_b32 v12, s86, 2")
    e("v_writelane_b32 v13, s87, 2")
    e(f"v_writelane_b32 v12, s{pOUT}, 3")
    e(f"v_writelane_b32 v13, s{pOUT+1}, 3")
    e(f"s_add_u32 s86, s{pK}, {sU4}")
    e(f"s_addc_u32 s87, s{pK+1}, 0")
    e("v_writelane_b32 v12, s86, 4")
    e("v_writelane_b32 v13, s87, 4")
    e(f"v_writelane_b32 v12, s{pW2}, 5")
    e(f"v_writelane_b32 v13, s{pW2+1}, 5")
    e("s_mov_b64 exec, 0x3f")
    e("global_load_dword v14, v[12:13], off nt")
    e("s_mov_b64 exec, -1")
if CODEPF:
    e("s_getpc_b64 s[86:87]")
    lab("L_pc_here")
    e(f"s_sub_u32 s86, s86, L_pc_here-{NAME}_kernel")
    e("s_subb_u32 s87, s87, 0")
    e(f"s_cmp_ge_u32 {sJ}, {CODE_CHUNKS}")
    e(f"s_cselect_b32 {sT0}, {CODE_CHUNKS}, 0")
    e(f"s_sub_u32 {sT0}, {sJ}, {sT0}")
    e(f"s_cmp_ge_u32 {sT0}, {CODE_CHUNKS}")
    e(f"s_cselect_b32 {sT0}, 0, {sT0}")
    e(f"s_lshl_b32 {sT0}, {sT0}, 10")
    e(f"v_add_u32 v15, {sT0}, v6")
    e("global_load_dwordx4 v[16:19], v15, s[86:87]")
for k in range(4): e(f"v_mov_b32 v{8+k}, -1")
e(f"s_lshl_b32 {sT0}, {sH}, 5")
e(f"s_add_u32 {sT0}, {sT0}, {sJ}")
e(f"s_lshl_b32 {sT0}, {sT0}, 11")
e(f"s_add_u32 {sT0}, {sT0}, {W_OP}")
CP = {"sc1": " sc1", "plain": "", "none": None}[CLR]
if CP is not None:
    e(f"buffer_store_dwordx4 v[8:11], v6, {srd(SRD_WS)}, {sT0} offen{CP}")
    e(f"buffer_store_dwordx4 v[8:11], v6, {srd(SRD_WS)}, {sT0} offen offset:1024{CP}")
e("v_lshlrev_b32 v7, 8, v0")
e(f"s_lshl_b32 {sT0}, {sH}, 9")
e(f"s_lshl_b32 {sT1}, {sJ}, 3")
e(f"s_add_u32 {sT0}, {sT0}, {sT1}")
e(f"s_add_u32 {sT0}, {sT0}, {W_ML}")
e("s_mov_b64 exec, 3")
if CP is not None: e(f"buffer_store_dwordx2 v[8:9], v7, {srd(SRD_WS)}, {sT0} offen{CP}")
e("s_mov_b64 exec, -1")
e(f"s_lshl_b32 {sT0}, {sH}, 2")
e(f"s_add_u32 {sT0}, {sT0}, {sU0}")
e(f"s_lshl_b32 {sT0}, {sT0}, 11")
e(f"s_lshl_b32 {sT1}, {sU1}, 8")
e(f"s_add_u32 {sT0}, {sT0}, {sT1}")
e(f"s_add_u32 {sU2}, {sT0}, {W_AP}")
e(f"s_cmp_ge_u32 {sJ}, 28")
e("s_cbranch_scc1 L_w_noap")
e("s_mov_b64 exec, 0xffff")
if CLR != "none": e(f"buffer_store_dwordx4 v[8:11], v6, {srd(SRD_WS)}, {sU2} offen sc1")
e("s_mov_b64 exec, -1")
lab("L_w_noap")
e(f"s_load_dword {sTAG}, s[{pWS}:{pWS+1}], 0")
e("s_waitcnt vmcnt(0) lgkmcnt(0)")
mk_tag()
e(f"v_mov_b32 v7, {sTAG}")
lds_wait(F_CLR, 1, 4, 11)
e(f"s_lshl_b32 {sT0}, {sH}, 5")
e(f"s_add_u32 {sT0}, {sT0}, {sJ}")
e(f"s_lshl_b32 {sT0}, {sT0}, 2")
e(f"s_add_u32 {sT0}, {sT0}, {W_READY}")
e("s_mov_b64 exec, 1")
e(f"buffer_store_dword v7, v4, {srd(SRD_WS)}, {sT0} offen sc1")
e("s_mov_b64 exec, -1")
stamp(1)
e(f"s_cmp_ge_u32 {sJ}, 28")
e("s_cbranch_scc1 L_final")
mk_srd(SRD_A, pWO, 4096*896)
e("v_lshrrev_b32 v2, 3, v0")
e("v_mul_u32_u24 v2, 7168, v2")
e("v_and_b32 v3, 7, v0")
e("v_lshl_add_u32 v2, v3, 4, v2")
e("v_bfe_u32 v10, v0, 1, 1")
e("v_lshrrev_b32 v11, 4, v0")
e("v_lshl_add_u32 v10, v11, 1, v10")
e("v_lshlrev_b32 v10, 4, v10")
e("v_lshlrev_b32 v9, 5, v3")
lds_wait(F_VISS, 4, 4, 11)
stamp(2)
for s in range(2):
    for r in range(8):
        q = WI+32*s+4*r
        e(f"s_add_u32 {sT1}, {sU3}, {(64*s+r)*896}")
        e(f"buffer_load_dwordx4 v[{q}:{q+3}], v2, {srd(SRD_A)}, {sT1} offen nt")
e("s_waitcnt vmcnt(8)")
transpose_set(WI, WB)
e("s_waitcnt vmcnt(0)")
transpose_set(WI+32, WB+32)
stamp(3)
lds_wait(F_ORDY, 4, 4, 11, sleep=0)
stamp(4)
e(f"ds_read_b128 v[16:19], v10 offset:{L_OL}")
e(f"ds_read_b128 v[20:23], v10 offset:{L_OL+128}")
e("s_waitcnt lgkmcnt(0)")
WDA = 32
mfma_set(WDA, 16, WB, True)
mfma_set(WDA, 20, WB+32, False)
e("s_nop 3")
for rp in range(8):
    if rp == 7: e("s_nop 3")
    e(f"v_add_f32_dpp v{64+rp}, v{WDA+4*rp+2}, v{WDA+4*rp} row_shl:8 row_mask:0xf bank_mask:0xf")
e("s_mov_b64 exec, 0xff")
e(f"buffer_store_dwordx4 v[64:67], v9, {srd(SRD_WS)}, {sU2} offen {FST}")
e(f"buffer_store_dwordx4 v[68:71], v9, {srd(SRD_WS)}, {sU2} offen offset:16 {FST}")
e("s_mov_b64 exec, -1")
stamp(5)
stamps_out(6)
e("s_endpgm")

lab("L_final")
e(f"s_sub_u32 {sT0}, {sJ}, 28")
e(f"s_lshl_b32 {sT0}, {sT0}, 3")
e(f"s_add_u32 {sU0}, {sT0}, {sH}")
e(f"s_cmp_ge_u32 {sU0}, 28")
e("s_cbranch_scc1 L_end")
mk_srd(SRD_A, pX, 896)
mk_srd(SRD_B, pB2, 896)
mk_srd(SRD_C, pOUT, 896)
e("v_and_b32 v2, 3, v0")
e("v_lshlrev_b32 v2, 2, v2")
e("v_bfe_u32 v3, v0, 5, 1")
e("v_lshl_add_u32 v2, v3, 1, v2")
e("v_bfe_u32 v3, v0, 4, 1")
e("v_add_u32 v2, v2, v3")
e(f"s_lshl_b32 {sT0}, {sU0}, 4")
e(f"v_add_u32 v2, {sT0}, v2")
e("v_lshlrev_b32 v2, 1, v2")
e(f"buffer_load_ushort v12, v2, {srd(SRD_A)}, 0 offen")
e(f"buffer_load_ushort v13, v2, {srd(SRD_B)}, 0 offen")
e(f"s_mov_b32 {sT1}, {W_READY}")
lds_wait(F_KISS, 4, 4, 11)
e(f"s_mov_b32 {sCNT}, 0")
lab("L_rdy")
e(f"buffer_load_dwordx4 v[8:11], v6, {srd(SRD_WS)}, {sT1} offen sc1")
e("s_waitcnt vmcnt(0)")
for k in range(4): e(f"v_xor_b32 v{8+k}, v{8+k}, v7")
e("v_or_b32 v8, v8, v9")
e("v_or_b32 v10, v10, v11")
e("v_or_b32 v8, v8, v10")
e("v_cmp_lt_u32 vcc, 7, v8")
e("s_cmp_eq_u64 vcc, 0")
e("s_cbranch_scc1 L_rdy_ok")
e("s_sleep 8")
e(f"s_add_u32 {sCNT}, {sCNT}, 1")
e(f"s_cmp_lt_u32 {sCNT}, {SPIN_LIMIT}")
e("s_cbranch_scc1 L_rdy")
lab("L_rdy_ok")
stamp(2)
e(f"s_cmp_lg_u32 {sU0}, 0")
e("s_cbranch_scc1 L_noep")
e("s_mov_b64 exec, 1")
e(f"buffer_store_dword v7, v4, {srd(SRD_WS)}, 0 offen sc1")
e("s_mov_b64 exec, -1")
lab("L_noep")
e("v_lshrrev_b32 v3, 2, v0")
e("v_lshlrev_b32 v3, 11, v3")
e("v_and_b32 v7, 3, v0")
e("v_lshl_add_u32 v3, v7, 4, v3")
e(f"s_lshl_b32 {sU1}, {sU0}, 6")
e(f"s_add_u32 {sU1}, {sU1}, {W_AP}")
e("v_lshlrev_b32 v13, 16, v13")
e("v_lshlrev_b32 v12, 16, v12")
e("v_lshrrev_b32 v14, 2, v0")
e("v_min_u32 v14, 11, v14")
e("v_lshlrev_b32 v14, 11, v14")
e("v_lshl_add_u32 v14, v7, 4, v14")
e("v_cmp_gt_u32 vcc, 48, v0")
e("s_nop 1")
e("v_cndmask_b32 v15, 0, 1.0, vcc")
lds_wait(F_VISS, 4, 4, 11)
lds_wait(F_SDONE, 4, 4, 11)
stamp(3)
e(f"s_mov_b32 {sCNT}, 0")
lab("L_bpoll")
e(f"s_add_u32 {sT1}, {sU1}, {16*2048*2}")
e(f"buffer_load_dwordx4 v[24:27], v3, {srd(SRD_WS)}, {sT1} offen sc1")
e(f"s_add_u32 {sT1}, {sU1}, {16*2048*3}")
e(f"buffer_load_dwordx4 v[28:31], v14, {srd(SRD_WS)}, {sT1} offen sc1")
e("s_waitcnt vmcnt(0)")
for d in range(4):
    e(f"v_fma_f32 v{104+d}, v{28+d}, v15, v{24+d}")
nan_or_sentinel_check([104, 105, 106, 107], list(range(24, 32)), "L_bgot", "L_bpoll", sCNT, 16, 17)
lab("L_bgot")
def red4(lo):
    for r in (4, 8):
        e("s_nop 1")
        for d in range(4):
            e(f"v_add_f32_dpp v{lo+d}, v{lo+d}, v{lo+d} row_ror:{r} row_mask:0xf bank_mask:0xf")
    e("s_nop 1")
    e(f"v_permlane32_swap_b32 v{lo}, v{lo+2}")
    e(f"v_permlane32_swap_b32 v{lo+1}, v{lo+3}")
    e("s_nop 1")
    e(f"v_add_f32 v{lo}, v{lo}, v{lo+2}")
    e(f"v_add_f32 v{lo+1}, v{lo+1}, v{lo+3}")
    e("s_nop 1")
    e(f"v_permlane16_swap_b32 v{lo}, v{lo+1}")
    e("s_nop 1")
    e(f"v_add_f32 v{lo}, v{lo}, v{lo+1}")
red4(104)
bf16r(104, 104)
e("v_add_f32 v104, v104, v13")
bf16r(104, 104)
stamp(4)
e(f"s_add_u32 {sU2}, {sU1}, {16*2048}")
e(f"s_mov_b32 {sCNT}, 0")
NB = FNB
def issue(b):
    e(f"buffer_load_dwordx4 v[{32+8*b}:{35+8*b}], v3, {srd(SRD_WS)}, {sU1} offen {FLD}")
    e(f"buffer_load_dwordx4 v[{36+8*b}:{39+8*b}], v3, {srd(SRD_WS)}, {sU2} offen {FLD}")
for b in range(NB):
    issue(b)
    if b < NB-1: e(f"s_sleep {FSL}")
lab("L_fpoll")
for b in range(NB):
    e(f"s_waitcnt vmcnt({2*(NB-1)})")
    for d in range(4):
        e(f"v_add_f32 v{100+d}, v{32+8*b+d}, v{36+8*b+d}")
    e("v_add_f32 v16, v100, v101")
    e("v_add_f32 v17, v102, v103")
    e("v_add_f32 v16, v16, v17")
    e("v_cmp_u_f32 vcc, v16, v16")
    e("s_cmp_eq_u64 vcc, 0")
    e("s_cbranch_scc1 L_fgot")
    e(f"v_max3_u32 v16, v{32+8*b}, v{33+8*b}, v{34+8*b}")
    e(f"v_max3_u32 v16, v16, v{35+8*b}, v{36+8*b}")
    e(f"v_max3_u32 v16, v16, v{37+8*b}, v{38+8*b}")
    e(f"v_max_u32 v16, v16, v{39+8*b}")
    e("v_cmp_eq_u32 vcc, -1, v16")
    e("s_cmp_eq_u64 vcc, 0")
    e("s_cbranch_scc1 L_fgot")
    issue(b)
e(f"s_add_u32 {sCNT}, {sCNT}, 1")
e(f"s_cmp_lt_u32 {sCNT}, {SPIN_LIMIT}")
e("s_cbranch_scc1 L_fpoll")
lab("L_fgot")
stamp(5)
red4(100)
bf16r(100, 100)
e("v_add_f32 v100, v100, v12")
bf16r(100, 100)
e("v_add_f32 v100, v100, v104")
e("v_cvt_pk_bf16_f32 v100, v100, v100")
if HOPS:
    e("s_branch L_hop0")
    for i in range(HOPS):
        e(".p2align 8")
        lab(f"L_hop{i}")
        e(f"s_branch L_hop{i+1}")
    e(".p2align 8")
    lab(f"L_hop{HOPS}")
e("s_mov_b32 exec_lo, 0x000f000f")
e("s_mov_b32 exec_hi, 0x000f000f")
e(f"buffer_store_short v100, v2, {srd(SRD_C)}, 0 offen")
e("s_mov_b64 exec, -1")
stamp(6)
stamps_out(7, sCNT)
lab("L_end")
e("s_endpgm")
lab("L_code_end")

e(f""".section .rodata,"a"
.p2align 6
.amdhsa_kernel {NAME}_kernel
  .amdhsa_next_free_vgpr 160
  .amdhsa_next_free_sgpr 96
  .amdhsa_accum_offset 160
  .amdhsa_group_segment_fixed_size 0
  .amdhsa_kernarg_size 104
  .amdhsa_user_sgpr_count 2
  .amdhsa_user_sgpr_kernarg_segment_ptr 1
  .amdhsa_system_sgpr_workgroup_id_x 1
  .amdhsa_float_denorm_mode_32 3
.end_amdhsa_kernel""")

txt = "\n".join(x for x in out if x is not None) + "\n"
path = sys.argv[1] if len(sys.argv) > 1 else "cdna_kernels/" + NAME + ".s"
open(path, "w").write(txt)
print("wrote", path, len(txt), "bytes")
```

```python
import sys, os, struct
NAME = "parallel_sum__sliding_block_cached__dense_activation_gelu__decode"
PROFILE = int(sys.argv[2]) if len(sys.argv) > 2 else 0
OPT = dict(kv.split("=") for kv in os.environ.get("GOPT", "").split(",") if kv)
def opt(k, d): return type(d)(OPT.get(k, d))
QDELAY = opt("qdelay", 8)
QSPACE = opt("qspace", 4)
HDELAY = opt("hdelay", 8)
TLBPF = opt("tlbpf", 0)
KWIN = opt("kwin", 6)
VWIN = opt("vwin", 6)
SHARE = opt("share", 1)
WWIN = opt("wwin", 8)
MLEARLY = opt("mlearly", 1)
MLD = opt("mld", 8)
EARLYPF = opt("earlypf", 1)
NTRY = 4
KTRIG = opt("ktrig", 5)
FLD = opt("fld", "sc1").replace("_"," ")
FST = opt("fst", "sc1").replace("_"," ")
FNB = opt("fnb", 3)
FSL = opt("fsl", 2)
OPIPE = opt("opipe", 1)
OSL = opt("osl", 2)
HOPS = opt("hops", 0)
WINL = opt("winl", 1)
WQAF = opt("wqaf", 0)
PRESO = opt("preso", 1)
CODEPF = opt("codepf", 1)
CODE_CHUNKS = opt("chunks", 13)
W2LATE = opt("w2late", 1)
MLDELAY = opt("mldelay", 12)
KEARLY = opt("kearly", 0)
VGATE = opt("vgate", 0)
OHINT = opt("ohint", 0)
CLR = opt("clr", "sc1")
FPIPE = opt("fpipe", 1)

out = []
def e(s=""): out.append(s)
def lab(s): out.append(s + ":")
_uid = [0]
def uid(p):
    _uid[0] += 1
    return f"L_{p}_{_uid[0]}"
def f2h(x): return "0x%08x" % struct.unpack("<I", struct.pack("<f", x))[0]

F_KISS, F_VISS, F_QRDY, F_SDONE, F_XN, F_CLR, F_ORDY, F_WRDY, F_KHALF, F_QISS, F_MLP, F_VDONE, F_WQA, F_PRDY, F_QLD = 0, 4, 8, 12, 16, 20, 24, 28, 32, 36, 40, 44, 48, 52, 56
L_XN = 256
L_Q = 1280
L_SC = 2304
L_OL = 4352
L_HL = 4608
L_WL = 4736
L_P = 4864
LDS_BYTES = 8192
W_EPOCH = 0
W_READY = 0x1000
W_ML = 0x2000
W_QMB = 0x5000
W_HMB = 0x1D000
W_BOFF = 0x40000
W_OP = 0x90000
W_AP = 0x110000
W_QH = 0x3000
W_HH = 0x3400
W_OF = 0x110000+0x20000
W_PROF = 0x4000000
WS_SIZE = 0x8000000
SPIN_LIMIT = 200000

NWAVES = 11
sH, sJ, sXR, sWV = "s4", "s5", "s6", "s3"
sTAG = "s7"
sT0, sT1, sT2, sT3 = "s8", "s9", "s10", "s11"
sCNT = "s12"
sSELLO, sSELHI = "s13", "s14"
sFAST = "s15"
pX, pK, pV, pWQ, pWO, pW1, pB1 = 16, 18, 20, 22, 24, 28, 30
pW2, pB2, pOUT, pDBG, pWS = 32, 34, 36, 38, 40
SRD_A, SRD_B, SRD_WS, SRD_C = 44, 48, 52, 56
sSTAMP = 60
sX7, sXS, sXW = "s76", "s77", "s78"
sU0, sU1, sU2, sU3, sU4, sU5 = "s80", "s81", "s82", "s83", "s84", "s85"

def srd(n): return f"s[{n}:{n+3}]"

def mk_srd(n, p, size, add_lo=None):
    if add_lo is None:
        e(f"s_mov_b32 s{n}, s{p}")
        e(f"s_and_b32 s{n+1}, s{p+1}, 0xffff")
    else:
        e(f"s_add_u32 s{n}, s{p}, {add_lo}")
        e(f"s_addc_u32 s{n+1}, s{p+1}, 0")
        e(f"s_and_b32 s{n+1}, s{n+1}, 0xffff")
    e(f"s_mov_b32 s{n+2}, {size}")
    e(f"s_mov_b32 s{n+3}, 0x20000")

def stamp(k):
    if PROFILE: e(f"s_memrealtime s[{sSTAMP+2*k}:{sSTAMP+2*k+1}]")

def stamps_out(n, cnt=None):
    if not PROFILE: return
    e("s_waitcnt lgkmcnt(0)")
    if cnt is not None:
        e(f"s_mov_b32 s{sSTAMP+14}, {cnt}"); e(f"s_mov_b32 s{sSTAMP+15}, 0")
        n = 8
    e("s_mov_b64 exec, 1")
    e(f"s_lshl_b32 {sT0}, s2, 4")
    e(f"s_add_u32 {sT0}, {sT0}, {sWV}")
    e(f"s_lshl_b32 {sT0}, {sT0}, 6")
    e(f"s_add_u32 {sT0}, {sT0}, {W_PROF}")
    e(f"v_mov_b32 v1, {sT0}")
    for k in range(n):
        e(f"v_mov_b32 v2, s{sSTAMP+2*k}")
        e(f"v_mov_b32 v3, s{sSTAMP+2*k+1}")
        e(f"buffer_store_dwordx2 v[2:3], v1, {srd(SRD_WS)}, 0 offen offset:{8*k}")
        e("s_nop 1")
    e("s_waitcnt vmcnt(0)")

def zero_stamps():
    if PROFILE:
        for k in range(1, 8):
            e(f"s_mov_b64 s[{sSTAMP+2*k}:{sSTAMP+2*k+1}], 0")

def lds_wait(flag, val, vz, vt, sleep=1):
    L = uid("lw"); D = uid("lwd")
    e(f"s_mov_b32 {sCNT}, 0")
    lab(L)
    e(f"ds_read_b32 v{vt}, v{vz} offset:{flag}")
    e("s_waitcnt lgkmcnt(0)")
    e(f"v_readfirstlane_b32 {sT0}, v{vt}")
    e(f"s_cmp_ge_u32 {sT0}, {val}")
    e(f"s_cbranch_scc1 {D}")
    if sleep: e(f"s_sleep {sleep}")
    e(f"s_add_u32 {sCNT}, {sCNT}, 1")
    e(f"s_cmp_lt_u32 {sCNT}, {SPIN_LIMIT*4}")
    e(f"s_cbranch_scc1 {L}")
    lab(D)

def lds_signal(flag, vz, vone):
    e("s_mov_b64 exec, 1")
    e(f"ds_add_u32 v{vz}, v{vone} offset:{flag}")
    e("s_mov_b64 exec, -1")

def bf16r(dst, src):
    e(f"v_cvt_pk_bf16_f32 v{dst}, v{src}, v{src}")
    e(f"v_lshlrev_b32 v{dst}, 16, v{dst}")

def allreduce(op, a, t):
    for r in (8, 4, 2, 1):
        e("s_nop 1")
        e(f"{op}_dpp v{a}, v{a}, v{a} row_ror:{r} row_mask:0xf bank_mask:0xf")
    e(f"v_mov_b32 v{t}, v{a}")
    e("s_nop 1")
    e(f"v_permlane16_swap_b32 v{a}, v{t}")
    e("s_nop 1")
    e(f"{op} v{a}, v{a}, v{t}")
    e(f"v_mov_b32 v{t}, v{a}")
    e("s_nop 1")
    e(f"v_permlane32_swap_b32 v{a}, v{t}")
    e("s_nop 1")
    e(f"{op} v{a}, v{a}, v{t}")

def common_scalars():
    e(f"s_lshr_b32 {sT0}, {sJ}, 2")
    e(f"s_mul_i32 {sT1}, {sH}, 5")
    e(f"s_add_u32 {sT0}, {sT0}, {sT1}")
    e(f"s_and_b32 {sT1}, {sJ}, 3")
    e(f"s_lshl_b32 {sT1}, {sT1}, 2")
    e(f"s_add_u32 {sT0}, {sT0}, {sT1}")
    e(f"s_and_b32 {sXR}, {sT0}, 15")
    e(f"s_and_b32 {sX7}, {sXR}, 7")
    e(f"s_lshr_b32 {sT0}, {sXR}, 2")
    e(f"s_lshl_b32 {sT0}, {sT0}, 3")
    e(f"s_or_b32 {sX7}, {sX7}, {sT0}")
    e(f"s_lshr_b32 {sT0}, {sXR}, 3")
    e(f"s_lshl_b32 {sT0}, {sT0}, 6")
    e(f"s_or_b32 {sX7}, {sX7}, {sT0}")
    e(f"s_and_b32 {sXS}, {sXR}, 3")
    e(f"s_add_u32 {sT0}, {sJ}, {sH}")
    e(f"s_and_b32 {sXW}, {sT0}, 3")

def kv_off():
    e(f"s_lshl_b32 {sT0}, {sH}, 25")
    e(f"s_lshl_b32 {sT1}, {sJ}, 16")
    e(f"s_add_u32 {sT0}, {sT0}, {sT1}")
    e(f"s_add_u32 {sT0}, {sT0}, 0x1E00000")
def kv_srd(n, p):
    kv_off()
    mk_srd(n, p, 65536, add_lo=sT0)

def transpose_set(src, dst, waits=None):
    for kp in range(4):
        if waits is not None:
            e(f"s_waitcnt vmcnt({waits[kp]})")
        a = src+8*kp; b = a+4
        for d in range(4):
            e(f"v_perm_b32 v{dst+4*(2*d)+kp}, v{b+d}, v{a+d}, {sSELLO}")
            e(f"v_perm_b32 v{dst+4*(2*d+1)+kp}, v{b+d}, v{a+d}, {sSELHI}")

def mfma_set(D, A, B, first):
    for rp in range(8):
        c = "0" if first else f"v[{D+4*rp}:{D+4*rp+3}]"
        e(f"v_mfma_f32_16x16x32_bf16 v[{D+4*rp}:{D+4*rp+3}], v[{A}:{A+3}], v[{B+4*rp}:{B+4*rp+3}], {c}")

def mk_tag():
    e(f"s_add_u32 {sTAG}, {sTAG}, 8")
    e(f"s_andn2_b32 {sTAG}, {sTAG}, 7")

GPOS = [0, 1, 2, 4, 5, 6, 8, 9]
def tile_out_granules(D, G, vtag):
    e("s_nop 3")
    for rp in range(8):
        if rp == 7: e("s_nop 3")
        e(f"v_add_f32_dpp v{G+GPOS[rp]}, v{D+4*rp+2}, v{D+4*rp} row_shl:8 row_mask:0xf bank_mask:0xf")
    for k in (3, 7, 10, 11):
        e(f"v_mov_b32 v{G+k}, v{vtag}")

def publish_granules(G, vaddr, soff, slotB):
    e("s_mov_b64 exec, 0xff")
    if slotB:
        e(f"s_add_u32 {sT3}, {soff}, {W_BOFF}")
        for k in range(3):
            e(f"buffer_store_dwordx4 v[{G+4*k}:{G+4*k+3}], v{vaddr}, {srd(SRD_WS)}, {sT3} offen offset:{128*k} sc1")
    else:
        for k in range(3):
            e(f"buffer_store_dwordx4 v[{G+4*k}:{G+4*k+3}], v{vaddr}, {srd(SRD_WS)}, {soff} offen offset:{128*k}")
    e("s_mov_b64 exec, -1")

def nan_or_sentinel_check(accs, regs, okl, retry_l, cnt, tmp1, tmp2):
    e(f"v_add_f32 v{tmp1}, v{accs[0]}, v{accs[1]}")
    for a in accs[2:]:
        e(f"v_add_f32 v{tmp1}, v{tmp1}, v{a}")
    e(f"v_cmp_u_f32 vcc, v{tmp1}, v{tmp1}")
    e("s_cmp_eq_u64 vcc, 0")
    e(f"s_cbranch_scc1 {okl}")
    e(f"v_max_u32 v{tmp1}, v{regs[0]}, v{regs[1]}")
    rest = regs[2:]
    for i in range(0, len(rest)-1, 2):
        e(f"v_max3_u32 v{tmp1}, v{tmp1}, v{rest[i]}, v{rest[i+1]}")
    if len(rest) % 2: e(f"v_max_u32 v{tmp1}, v{tmp1}, v{rest[-1]}")
    e(f"v_cmp_eq_u32 vcc, -1, v{tmp1}")
    e("s_cmp_eq_u64 vcc, 0")
    e(f"s_cbranch_scc1 {okl}")
    e(f"s_add_u32 {cnt}, {cnt}, 1")
    e(f"s_cmp_lt_u32 {cnt}, {SPIN_LIMIT}")
    e(f"s_cbranch_scc1 {retry_l}")

e(f"""; Fused decode kernel: LN -> (GQA sliding-window attention + Wo) + (GELU FFN) + residual
; @launch grid=(256,1,1) block=({NWAVES*64},1,1) lds={LDS_BYTES}
.amdgcn_target "amdgcn-amd-amdhsa--gfx950"
.text
.globl {NAME}_kernel
.p2align 8
.type {NAME}_kernel,@function
{NAME}_kernel:""")
e("s_cmp_ge_u32 s2, 256")
e("s_cbranch_scc1 L_end")
e("v_lshrrev_b32 v1, 6, v0")
e("v_and_b32 v0, 63, v0")
e(f"v_readfirstlane_b32 {sWV}, v1")
if WINL:
    e(f"s_cmp_lg_u32 {sWV}, 10")
    e("s_cbranch_scc1 L_noinit")
    if EARLYPF:
        e("s_getpc_b64 s[86:87]")
        lab("L_pc_here")
        e(f"s_sub_u32 s86, s86, L_pc_here-{NAME}_kernel")
        e("s_subb_u32 s87, s87, 0")
        e(f"s_lshr_b32 {sT0}, s2, 3")
        for _ in range(2):
            e(f"s_cmp_ge_u32 {sT0}, {CODE_CHUNKS}")
            e(f"s_cselect_b32 {sT1}, {CODE_CHUNKS}, 0")
            e(f"s_sub_u32 {sT0}, {sT0}, {sT1}")
        e(f"s_lshl_b32 {sT0}, {sT0}, 10")
        e("v_lshlrev_b32 v2, 4, v0")
        e(f"v_add_u32 v2, {sT0}, v2")
        e("global_load_dwordx4 v[16:19], v2, s[86:87]")
    e("v_lshlrev_b32 v2, 2, v0")
    e("v_mov_b32 v3, 0")
    e("ds_write_b32 v2, v3")
    e("s_waitcnt lgkmcnt(0)")
    lab("L_noinit")
else:
    e(f"s_cmp_eq_u32 {sWV}, 10")
    e("s_cbranch_scc1 L_winit")
def kernarg_loads():
    e("s_load_dwordx16 s[16:31], s[0:1], 0")
    e("s_load_dwordx8 s[32:39], s[0:1], 64")
    e("s_load_dwordx2 s[40:41], s[0:1], 96")
kernarg_loads()
stamp(0)
e("s_barrier")
zero_stamps()
e(f"s_and_b32 {sH}, s2, 7")
e(f"s_lshr_b32 {sJ}, s2, 3")
e(f"s_mov_b32 {sSELLO}, 0x05040100")
e(f"s_mov_b32 {sSELHI}, 0x07060302")
e(f"s_cmp_lg_u32 {sWV}, 0")
e("s_cbranch_scc1 L_others")

lab("L_roleQ")
e("s_setprio 3")
XD = 8; FX = 12; TD = 24; TB = 88; TDA = 120; TA = 152
e("v_mov_b32 v3, 0")
e("v_lshlrev_b32 v4, 4, v0")
e("v_lshrrev_b32 v5, 3, v0")
e("v_min_u32 v6, 5, v5")
e("v_and_b32 v7, 7, v0")
e("v_lshlrev_b32 v7, 4, v7")
e("v_lshl_add_u32 v5, v5, 16, v7")
e("v_lshl_add_u32 v6, v6, 16, v7")
e(f"s_lshr_b32 {sU4}, {sJ}, 3")
e(f"s_mul_i32 {sU2}, {sU4}, {112*8192}")
e(f"s_lshl_b32 {sT1}, {sH}, 10")
e(f"s_add_u32 {sU2}, {sU2}, {sT1}")
e(f"s_and_b32 {sT1}, {sJ}, 7")
e(f"s_lshl_b32 {sT1}, {sT1}, 7")
e(f"s_add_u32 {sU2}, {sU2}, {sT1}")
e("s_waitcnt lgkmcnt(0)")
mk_srd(SRD_A, pX, 896)
mk_srd(SRD_B, pWQ, 448*8192)
e(f"buffer_load_dwordx4 v[{XD}:{XD+3}], v4, {srd(SRD_A)}, 0 offen")
for s in range(2):
    for r in range(8):
        q = TD+32*s+4*r
        e(f"s_add_u32 {sT1}, {sU2}, {(64*s+r)*8192}")
        e(f"buffer_load_dwordx4 v[{q}:{q+3}], v{5+s}, {srd(SRD_B)}, {sT1} offen nt")
e("v_mov_b32 v2, 1")
lds_signal(F_QLD, 3, 2)
e(f"s_load_dword {sTAG}, s[{pWS}:{pWS+1}], 0")
mk_srd(SRD_WS, pWS, WS_SIZE)
stamp(1)
e(f"s_getreg_b32 {sU0}, hwreg(HW_REG_XCC_ID, 0, 3)")
e("s_waitcnt vmcnt(16)")
stamp(2)
for k in range(4):
    e(f"v_lshlrev_b32 v{FX+2*k}, 16, v{XD+k}")
    e(f"v_and_b32 v{FX+2*k+1}, 0xffff0000, v{XD+k}")
e(f"v_add_f32 v2, v{FX}, v{FX+1}")
for k in range(2, 8):
    e(f"v_add_f32 v2, v2, v{FX+k}")
allreduce("v_add_f32", 2, 3)
e(f"v_mul_f32 v2, {f2h(1.0/448)}, v2")
e(f"v_sub_f32 v6, v{FX}, v2")
e("v_mul_f32 v7, v6, v6")
for k in range(1, 8):
    e(f"v_sub_f32 v6, v{FX+k}, v2")
    e("v_fmac_f32 v7, v6, v6")
e("v_cmp_gt_u32 vcc, 56, v0")
e("s_nop 1")
e("v_cndmask_b32 v7, 0, v7, vcc")
allreduce("v_add_f32", 7, 3)
e(f"v_mul_f32 v7, {f2h(1.0/448)}, v7")
bf16r(2, 2)
bf16r(7, 7)
e("v_add_f32 v7, 0x3727c5ac, v7")
bf16r(7, 7)
e("v_sqrt_f32 v7, v7")
e("s_nop 0")
bf16r(7, 7)
e("v_rcp_f32 v7, v7")
for k in range(4):
    e(f"v_sub_f32 v{FX+2*k}, v{FX+2*k}, v2")
    e(f"v_sub_f32 v{FX+2*k+1}, v{FX+2*k+1}, v2")
    e(f"v_cvt_pk_bf16_f32 v6, v{FX+2*k}, v{FX+2*k+1}")
    e(f"v_lshlrev_b32 v{FX+2*k}, 16, v6")
    e(f"v_and_b32 v{FX+2*k+1}, 0xffff0000, v6")
    e(f"v_mul_f32 v{FX+2*k}, v{FX+2*k}, v7")
    e(f"v_mul_f32 v{FX+2*k+1}, v{FX+2*k+1}, v7")
    e(f"v_cvt_pk_bf16_f32 v{XD+k}, v{FX+2*k}, v{FX+2*k+1}")
    e(f"v_cndmask_b32 v{XD+k}, 0, v{XD+k}, vcc")
e(f"ds_write_b128 v4, v[{XD}:{XD+3}] offset:{L_XN}")
e("v_mov_b32 v3, 0")
e("v_mov_b32 v6, 1")
lds_signal(F_XN, 3, 6)
e("v_bfe_u32 v2, v0, 1, 1")
e("v_lshrrev_b32 v7, 4, v0")
e("v_lshl_add_u32 v2, v7, 1, v2")
e("v_lshlrev_b32 v2, 4, v2")
e(f"s_mul_i32 {sT0}, {sU4}, 224")
e(f"v_add_u32 v2, {sT0}, v2")
e(f"ds_read_b128 v[{TA}:{TA+3}], v2 offset:{L_XN}")
e(f"ds_read_b128 v[{TA+4}:{TA+7}], v2 offset:{L_XN+128}")
e("v_cmp_gt_u32 vcc, 48, v0")
e("s_waitcnt lgkmcnt(0)")
for k in range(4):
    e(f"v_cndmask_b32 v{TA+4+k}, 0, v{TA+4+k}, vcc")
stamp(3)
e("s_waitcnt vmcnt(8)")
if not WQAF:
    e("v_mov_b32 v6, 1")
    lds_signal(F_WQA, 3, 6)
transpose_set(TD, TB)
e("s_nop 1")
mfma_set(TDA, TA, TB, True)
transpose_set(TD+32, TB, waits=[6, 4, 2, 0])
e("s_nop 1")
mfma_set(TDA, TA+4, TB, False)
mk_tag()
e(f"s_or_b32 {sU1}, {sTAG}, {sU0}")
e(f"v_mov_b32 v9, {sU1}")
e(f"s_mul_i32 {sT0}, {sH}, 12288")
e(f"s_add_u32 {sU3}, {sT0}, {W_QMB}")
e(f"s_mul_i32 {sT1}, {sJ}, 384")
e(f"s_add_u32 {sU2}, {sU3}, {sT1}")
G = 12
tile_out_granules(TDA, G, 9)
publish_granules(G, 4, sU2, False)
stamp(4)
e("v_lshrrev_b32 v2, 3, v0")
e("v_mul_u32_u24 v2, 384, v2")
e("v_and_b32 v7, 7, v0")
e("v_lshl_add_u32 v2, v7, 4, v2")
e(f"v_mov_b32 v10, {sTAG}")
e(f"v_mov_b32 v11, {sU1}")
e(f"s_mov_b32 {sU5}, 0")
e(f"s_mov_b32 {sU0}, 0")
GD = 24
lds_wait(F_KHALF, 4, 3, 7)
stamp(5)
lab("L_qpoll")
e(f"s_cmp_ge_u32 {sU5}, {NTRY}")
e(f"s_cselect_b32 {sT2}, {sU5}, 0")
e(f"s_and_b32 {sT2}, {sT2}, 1")
e(f"s_mul_i32 {sT2}, {sT2}, {W_BOFF}")
e(f"s_add_u32 {sT0}, {sT2}, {sU3}")
for rq in range(4):
    e(f"s_add_u32 {sT1}, {sT0}, {3072*rq}")
    for k in range(3):
        r = GD+12*rq+4*k
        e(f"buffer_load_dwordx4 v[{r}:{r+3}], v2, {srd(SRD_WS)}, {sT1} offen offset:{128*k} sc1")
e(f"s_cmp_lg_u32 {sU5}, 0")
e("s_cbranch_scc1 L_q_nosig")
e("v_mov_b32 v6, 1")
lds_signal(F_QISS, 3, 6)
lab("L_q_nosig")
e("s_waitcnt vmcnt(0)")
e(f"v_xor_b32 v6, v{GD+3}, v10")
for i in range(1, 12):
    e(f"v_xor_b32 v7, v{GD+4*i+3}, v10")
    e("v_or_b32 v6, v6, v7")
e("v_cmp_lt_u32 vcc, 7, v6")
e("s_cmp_eq_u64 vcc, 0")
e("s_cbranch_scc1 L_qgot")
e(f"s_add_u32 {sU5}, {sU5}, 1")
e(f"s_cmp_lg_u32 {sU5}, {NTRY}")
e("s_cbranch_scc1 L_q_nob")
def q_pub_b():
    publish_granules(G, 4, sU2, True)
    e(f"s_mov_b32 {sU0}, 1")
q_pub_b()
lab("L_q_nob")
e(f"s_cmp_lt_u32 {sU5}, {SPIN_LIMIT}")
e("s_cbranch_scc1 L_qpoll")
lab("L_qgot")
e(f"v_xor_b32 v5, v{GD+3}, v11")
for rq in range(1, 4):
    e(f"v_xor_b32 v6, v{GD+12*rq+3}, v11")
    e("v_or_b32 v5, v5, v6")
for i in range(8):
    p = GPOS[i]
    e(f"v_add_f32 v{GD+p}, v{GD+p}, v{GD+12+p}")
    e(f"v_add_f32 v{GD+24+p}, v{GD+24+p}, v{GD+36+p}")
for i in range(8):
    p = GPOS[i]
    e(f"v_add_f32 v{GD+p}, v{GD+p}, v{GD+24+p}")
for k in range(4):
    e(f"v_cvt_pk_bf16_f32 v{GD+12+k}, v{GD+GPOS[2*k]}, v{GD+GPOS[2*k+1]}")
e(f"ds_write_b128 v4, v[{GD+12}:{GD+15}] offset:{L_Q}")
e("v_cmp_ne_u32 vcc, 0, v5")
e("s_cmp_eq_u64 vcc, 0")
e(f"s_cselect_b32 {sT0}, 2, 1")
e(f"v_mov_b32 v6, {sT0}")
e("s_mov_b64 exec, 1")
e(f"ds_write_b32 v3, v6 offset:{F_QRDY}")
e("s_mov_b64 exec, -1")
stamp(6)
e(f"s_cmp_lg_u32 {sU0}, 0")
e("s_cbranch_scc1 L_q_bdone2")
q_pub_b()
lab("L_q_bdone2")
stamps_out(7, sU5)
e("s_endpgm")

lab("L_others")
if WINL:
    e(f"s_cmp_eq_u32 {sWV}, 10")
    e("s_cbranch_scc1 L_roleW")
e(f"s_cmp_eq_u32 {sWV}, 9")
e("s_cbranch_scc1 L_roleF")
common_scalars()
e(f"s_cmp_ge_u32 {sWV}, 5")
e("s_cbranch_scc1 L_roleV")
lab("L_roleK")
KD = 16; QF = 80; KA = 96
e(f"s_sub_u32 {sU0}, {sWV}, 1")
e(f"s_and_b32 {sT0}, {sX7}, 7")
e("v_and_b32 v2, 7, v0")
e(f"v_xor_b32 v2, {sT0}, v2")
e("v_lshlrev_b32 v2, 9, v2")
e("v_lshrrev_b32 v3, 3, v0")
e("v_lshl_or_b32 v2, v3, 4, v2")
e("v_mov_b32 v4, 0")
e("v_mov_b32 v5, 1")
e("v_and_b32 v6, 1, v0")
e("v_lshlrev_b32 v6, 9, v6")
e("v_bfe_u32 v7, v0, 1, 1")
e("v_lshrrev_b32 v8, 4, v0")
e("v_lshl_add_u32 v7, v8, 1, v7")
e("v_lshl_add_u32 v6, v7, 4, v6")
e("v_bfe_u32 v9, v0, 1, 1")
e("v_lshlrev_b32 v9, 10, v9")
e("v_and_b32 v10, 1, v0")
e("v_lshl_or_b32 v9, v10, 9, v9")
e("v_bfe_u32 v10, v0, 4, 1")
e("v_lshl_or_b32 v9, v10, 4, v9")
e(f"s_lshl_b32 {sT0}, {sU0}, 7")
e(f"v_add_u32 v9, {sT0}, v9")
e(f"s_and_b32 {sU1}, {sX7}, 0x78")
e(f"s_lshl_b32 {sU2}, {sU0}, 5")
kv_off()
e(f"s_mov_b32 {sU3}, {sT0}")
e("s_waitcnt lgkmcnt(0)")
mk_srd(SRD_A, pK, 65536, add_lo=sU3)
mk_srd(SRD_WS, pWS, WS_SIZE)
stamp(1)
if PRESO:
    for rgp in range(4):
        e(f"s_add_u32 {sT2}, {sU2}, {8*rgp}")
        e(f"s_xor_b32 {sT2}, {sT2}, {sU1}")
        e(f"s_lshl_b32 {sT2}, {sT2}, 9")
        for u in range(4):
            e(f"s_xor_b32 {sT1}, {sXS}, {u}")
            e(f"s_lshl_b32 {sT1}, {sT1}, 7")
            e(f"s_or_b32 s{16+4*rgp+u}, {sT1}, {sT2}")
    lds_wait(F_WQA, 1, 4, 11)
    if SHARE: lab("L_issue16")
    for i in range(16):
        r = KD+4*i
        if i >= KWIN: e(f"s_waitcnt vmcnt({KWIN-1})")
        e(f"buffer_load_dwordx4 v[{r}:{r+3}], v2, {srd(SRD_A)}, s{16+i} offen nt")
    if SHARE:
        e(f"s_cmp_ge_u32 {sWV}, 9")
        e("s_cbranch_scc1 L_w_issued")
        e(f"s_cmp_ge_u32 {sWV}, 5")
        e("s_cbranch_scc1 L_v_issued")
else:
    for rgp in range(4):
        e(f"s_add_u32 {sT2}, {sU2}, {8*rgp}")
        e(f"s_xor_b32 {sT2}, {sT2}, {sU1}")
        e(f"s_lshl_b32 {sT2}, {sT2}, 9")
        for u in range(4):
            e(f"s_xor_b32 {sT1}, {sXS}, {u}")
            e(f"s_lshl_b32 {sT1}, {sT1}, 7")
            e(f"s_or_b32 {sT1}, {sT1}, {sT2}")
            r = KD+16*rgp+4*u
            if 4*rgp+u == KEARLY:
                e(f"s_mov_b32 {sT3}, {sT1}")
                lds_wait(F_WQA, 1, 4, 11)
                e(f"s_mov_b32 {sT1}, {sT3}")
            if 4*rgp+u >= KWIN: e(f"s_waitcnt vmcnt({KWIN-1})")
            e(f"buffer_load_dwordx4 v[{r}:{r+3}], v2, {srd(SRD_A)}, {sT1} offen nt")
lds_signal(F_KISS, 4, 5)
e(f"s_load_dword {sTAG}, s[{pWS}:{pWS+1}], 0")
e(f"s_waitcnt vmcnt({KTRIG})")
lds_signal(F_KHALF, 4, 5)
stamp(2)
if PROFILE:
    e("s_waitcnt vmcnt(0)")
    e(f"s_memrealtime s[{sSTAMP+2}:{sSTAMP+3}]")
lds_wait(F_QRDY, 1, 4, 11)
e(f"s_mov_b32 {sFAST}, {sT0}")
for u in range(4):
    e(f"s_xor_b32 {sT1}, {sXS}, {u}")
    e(f"s_lshl_b32 {sT1}, {sT1}, 7")
    e(f"s_add_u32 {sT1}, {sT1}, {L_Q}")
    e(f"v_add_u32 v11, {sT1}, v6")
    e(f"ds_read_b128 v[{QF+4*u}:{QF+4*u+3}], v11")
e("s_waitcnt vmcnt(0) lgkmcnt(0)")
for u in range(4):
    for rgp in range(4):
        r = KD+16*rgp+4*u
        c = "0" if u == 0 else f"v[{KA+4*rgp}:{KA+4*rgp+3}]"
        e(f"v_mfma_f32_16x16x32_bf16 v[{KA+4*rgp}:{KA+4*rgp+3}], v[{r}:{r+3}], v[{QF+4*u}:{QF+4*u+3}], {c}")
e("s_nop 7")
e("s_mov_b32 exec_lo, 0x00030003")
e("s_mov_b32 exec_hi, 0x000C000C")
for rgp in range(4):
    e(f"ds_write_b128 v9, v[{KA+4*rgp}:{KA+4*rgp+3}] offset:{L_SC+32*rgp}")
e("s_mov_b64 exec, -1")
lds_signal(F_SDONE, 4, 5)
stamp(3)
def reduce32(op, a, t):
    for r in (8, 4, 2, 1):
        e("s_nop 1")
        e(f"{op}_dpp v{a}, v{a}, v{a} row_ror:{r} row_mask:0xf bank_mask:0xf")
    e(f"v_mov_b32 v{t}, v{a}")
    e("s_nop 1")
    e(f"v_permlane16_swap_b32 v{a}, v{t}")
    e("s_nop 1")
    e(f"{op} v{a}, v{a}, v{t}")
e(f"s_cmp_lg_u32 {sU0}, 0")
e("s_cbranch_scc1 L_k_nosoft")
e("v_lshrrev_b32 v6, 5, v0")
e("v_and_b32 v7, 31, v0")
e("v_lshlrev_b32 v8, 9, v6")
e("v_lshl_add_u32 v8, v7, 4, v8")
e("v_lshlrev_b32 v9, 8, v6")
e("v_lshl_add_u32 v16, v7, 3, v9")
C_EXP = 0.0625*1.4426950408889634
e(f"s_mov_b32 {sT2}, {f2h(C_EXP)}")
e(f"s_lshl_b32 {sT1}, {sH}, 9")
e(f"s_lshl_b32 {sT3}, {sJ}, 3")
e(f"s_add_u32 {sT1}, {sT1}, {sT3}")
e(f"s_add_u32 {sU1}, {sT1}, {W_ML}")
lds_wait(F_SDONE, 4, 4, 11, sleep=0)
e(f"ds_read_b128 v[20:23], v8 offset:{L_SC}")
e(f"ds_read_b128 v[24:27], v8 offset:{L_SC+1024}")
e("s_waitcnt lgkmcnt(0)")
for k in range(4): e(f"v_add_f32 v{20+k}, v{20+k}, v{24+k}")
e("v_cvt_pk_bf16_f32 v24, v20, v21")
e("v_cvt_pk_bf16_f32 v25, v22, v23")
e("v_lshlrev_b32 v20, 16, v24")
e("v_and_b32 v21, 0xffff0000, v24")
e("v_lshlrev_b32 v22, 16, v25")
e("v_and_b32 v23, 0xffff0000, v25")
e("v_max3_f32 v10, v20, v21, v22")
e("v_max_f32 v10, v10, v23")
reduce32("v_max_f32", 10, 11)
for k in range(4): e(f"v_sub_f32 v{20+k}, v{20+k}, v10")
for k in range(4): e(f"v_mul_f32 v{20+k}, {sT2}, v{20+k}")
for k in range(4): e(f"v_exp_f32 v{20+k}, v{20+k}")
e("s_nop 0")
e("v_cvt_pk_bf16_f32 v24, v20, v21")
e("v_cvt_pk_bf16_f32 v25, v22, v23")
e(f"ds_write_b64 v16, v[24:25] offset:{L_P}")
lds_signal(F_PRDY, 4, 5)
e("v_add_f32 v11, v20, v21")
e("v_add_f32 v12, v22, v23")
e("v_add_f32 v11, v11, v12")
reduce32("v_add_f32", 11, 12)
e(f"v_mul_f32 v10, {sT2}, v10")
e("s_mov_b32 exec_lo, 1")
e("s_mov_b32 exec_hi, 1")
e(f"s_cmp_eq_u32 {sFAST}, 2")
e("s_cbranch_scc1 L_k_mlfast")
e(f"buffer_store_dwordx2 v[10:11], v9, {srd(SRD_WS)}, {sU1} offen sc1")
e("s_branch L_k_mldone")
lab("L_k_mlfast")
e(f"buffer_store_dwordx2 v[10:11], v9, {srd(SRD_WS)}, {sU1} offen")
lab("L_k_mldone")
e("s_mov_b64 exec, -1")
if PROFILE: e(f"s_memrealtime s[{sSTAMP+4}:{sSTAMP+5}]")
lab("L_k_nosoft")
e(f"s_cmp_ge_u32 {sJ}, 28")
e("s_cbranch_scc1 L_k_end")
e(f"s_and_b32 {sU1}, {sJ}, 3")
mk_tag()
e(f"v_mov_b32 v12, {sTAG}")
e("v_and_b32 v13, 31, v0")
e("v_lshlrev_b32 v13, 2, v13")
e(f"s_lshl_b32 {sT0}, {sH}, 7")
e(f"s_add_u32 {sU2}, {sT0}, {W_READY}")
e("v_lshlrev_b32 v14, 1, v13")
e(f"s_lshr_b32 {sT0}, {sU1}, 1")
e(f"s_lshl_b32 {sT1}, {sH}, 1")
e(f"s_add_u32 {sT0}, {sT0}, {sT1}")
e(f"s_lshl_b32 {sT0}, {sT0}, 8")
e(f"s_add_u32 {sU4}, {sT0}, {W_ML}")
e("v_lshrrev_b32 v15, 3, v0")
e("v_lshlrev_b32 v16, 11, v15")
e("v_and_b32 v17, 7, v0")
e("v_lshl_add_u32 v16, v17, 4, v16")
e(f"s_lshl_b32 {sT0}, {sH}, 16")
e(f"s_lshl_b32 {sT1}, {sU1}, 9")
e(f"s_add_u32 {sT0}, {sT0}, {sT1}")
e(f"s_lshl_b32 {sT1}, {sU0}, 7")
e(f"s_add_u32 {sT0}, {sT0}, {sT1}")
e(f"s_add_u32 {sU5}, {sT0}, {W_OP}")
e("v_lshlrev_b32 v15, 2, v15")
e("v_lshlrev_b32 v18, 2, v17")
e("v_bfe_u32 v19, v0, 5, 1")
e("v_lshl_add_u32 v18, v19, 1, v18")
e("v_bfe_u32 v19, v0, 4, 1")
e("v_add_u32 v18, v18, v19")
e("v_lshlrev_b32 v18, 1, v18")
e(f"s_lshl_b32 {sT0}, {sU0}, 6")
e(f"v_add_u32 v18, {sT0}, v18")
e(f"s_mov_b32 {sCNT}, 0")
lab("L_k_rdy")
e(f"buffer_load_dword v20, v13, {srd(SRD_WS)}, {sU2} offen sc1")
e("s_waitcnt vmcnt(0)")
e("v_xor_b32 v20, v20, v12")
e("v_cmp_lt_u32 vcc, 7, v20")
e("s_cmp_eq_u64 vcc, 0")
e("s_cbranch_scc1 L_k_rdy_ok")
e("s_sleep 4")
e(f"s_add_u32 {sCNT}, {sCNT}, 1")
e(f"s_cmp_lt_u32 {sCNT}, {SPIN_LIMIT}")
e("s_cbranch_scc1 L_k_rdy")
lab("L_k_rdy_ok")
if OPIPE:
    if MLEARLY:
        lds_wait(F_PRDY, 1, 4, 11)
        e(f"s_sleep {MLD}")
    else:
        lds_wait(F_VISS, 4, 4, 11)
    e(f"s_mov_b32 {sCNT}, 0")
    e(f"buffer_load_dwordx2 v[20:21], v14, {srd(SRD_WS)}, {sU4} offen sc1")
    e("s_sleep 12")
    e(f"buffer_load_dwordx2 v[48:49], v14, {srd(SRD_WS)}, {sU4} offen sc1")
    lab("L_mlpoll")
    e("s_waitcnt vmcnt(1)")
    e("v_max_u32 v22, v20, v21")
    e("v_cmp_eq_u32 vcc, -1, v22")
    e("s_cmp_eq_u64 vcc, 0")
    e("s_cbranch_scc1 L_mlgot")
    e(f"buffer_load_dwordx2 v[20:21], v14, {srd(SRD_WS)}, {sU4} offen sc1")
    e("s_waitcnt vmcnt(1)")
    e("v_max_u32 v22, v48, v49")
    e("v_cmp_eq_u32 vcc, -1, v22")
    e("s_cmp_eq_u64 vcc, 0")
    e("s_cbranch_scc1 L_mlgot2")
    e(f"buffer_load_dwordx2 v[48:49], v14, {srd(SRD_WS)}, {sU4} offen sc1")
    e(f"s_add_u32 {sCNT}, {sCNT}, 1")
    e(f"s_cmp_lt_u32 {sCNT}, {SPIN_LIMIT}")
    e("s_cbranch_scc1 L_mlpoll")
    lab("L_mlgot2")
    e("s_waitcnt vmcnt(0)")
    e("v_mov_b32 v20, v48")
    e("v_mov_b32 v21, v49")
    lab("L_mlgot")
    e("s_waitcnt vmcnt(0)")
    stamp(4)
    e("v_mov_b32 v22, v20")
    reduce32("v_max_f32", 22, 23)
    e("v_sub_f32 v20, v20, v22")
    e("v_exp_f32 v20, v20")
    e("s_nop 0")
    e("v_mul_f32 v21, v20, v21")
    reduce32("v_add_f32", 21, 23)
    e("v_rcp_f32 v21, v21")
    e("s_nop 0")
    e("v_mul_f32 v20, v20, v21")
    for u in range(4):
        e(f"v_add_u32 v23, {32*u}, v15")
        e(f"ds_bpermute_b32 v{24+u}, v23, v20")
    lds_wait(F_VDONE, 4, 4, 11, sleep=0)
    e(f"s_mov_b32 {sCNT}, 0")
    OGS = [32, 48]
    def o_issue(bi):
        for u in range(4):
            e(f"s_add_u32 {sT1}, {sU5}, {8*2048*u}")
            e(f"buffer_load_dwordx4 v[{OGS[bi]+4*u}:{OGS[bi]+4*u+3}], v16, {srd(SRD_WS)}, {sT1} offen sc1")
    o_issue(0)
    e(f"s_sleep {OSL}")
    o_issue(1)
    lab("L_opoll")
    for bi in range(2):
        OG = OGS[bi]
        for u in range(4):
            e(f"s_waitcnt vmcnt({4+3-u})")
            for d in range(4):
                if u == 0: e(f"v_mul_f32 v{28+d}, v24, v{OG+d}")
                else: e(f"v_fmac_f32 v{28+d}, v{24+u}, v{OG+4*u+d}")
        e("v_add_f32 v22, v28, v29")
        e("v_add_f32 v22, v22, v30")
        e("v_add_f32 v22, v22, v31")
        e("v_cmp_u_f32 vcc, v22, v22")
        e("s_cmp_eq_u64 vcc, 0")
        e("s_cbranch_scc1 L_ogot")
        e(f"v_max_u32 v22, v{OG}, v{OG+1}")
        for i in range(2, 16, 2):
            e(f"v_max3_u32 v22, v22, v{OG+i}, v{OG+i+1}")
        e("v_cmp_eq_u32 vcc, -1, v22")
        e("s_cmp_eq_u64 vcc, 0")
        e("s_cbranch_scc1 L_ogot")
        o_issue(bi)
    e(f"s_add_u32 {sCNT}, {sCNT}, 1")
    e(f"s_cmp_lt_u32 {sCNT}, {SPIN_LIMIT}")
    e("s_cbranch_scc1 L_opoll")
else:
    lds_wait(F_VDONE, 4, 4, 11, sleep=0)
    e(f"s_mov_b32 {sCNT}, 0")
    OG = 32
    lab("L_opoll")
    e(f"buffer_load_dwordx2 v[20:21], v14, {srd(SRD_WS)}, {sU4} offen sc1")
    for u in range(4):
        e(f"s_add_u32 {sT1}, {sU5}, {8*2048*u}")
        e(f"buffer_load_dwordx4 v[{OG+4*u}:{OG+4*u+3}], v16, {srd(SRD_WS)}, {sT1} offen sc1")
    e("s_waitcnt vmcnt(4)")
    e("v_max_u32 v22, v20, v21")
    e("v_cmp_eq_u32 vcc, -1, v22")
    e("s_cmp_eq_u64 vcc, 0")
    e("s_cbranch_scc1 L_mlgot")
    e("s_waitcnt vmcnt(0)")
    e(f"s_add_u32 {sCNT}, {sCNT}, 1")
    e(f"s_cmp_lt_u32 {sCNT}, {SPIN_LIMIT}")
    e("s_cbranch_scc1 L_opoll")
    lab("L_mlgot")
    stamp(4)
    e("v_mov_b32 v22, v20")
    reduce32("v_max_f32", 22, 23)
    e("v_sub_f32 v20, v20, v22")
    e("v_exp_f32 v20, v20")
    e("s_nop 0")
    e("v_mul_f32 v21, v20, v21")
    reduce32("v_add_f32", 21, 23)
    e("v_rcp_f32 v21, v21")
    e("s_nop 0")
    e("v_mul_f32 v20, v20, v21")
    for u in range(4):
        e(f"v_add_u32 v23, {32*u}, v15")
        e(f"ds_bpermute_b32 v{24+u}, v23, v20")
    e("s_waitcnt vmcnt(0) lgkmcnt(0)")
    for u in range(4):
        for d in range(4):
            if u == 0: e(f"v_mul_f32 v{28+d}, v24, v{OG+d}")
            else: e(f"v_fmac_f32 v{28+d}, v{24+u}, v{OG+4*u+d}")
    nan_or_sentinel_check([28, 29, 30, 31], list(range(OG, OG+16)), "L_ogot", "L_opoll", sCNT, 22, 23)
lab("L_ogot")
stamp(5)
e("v_permlane32_swap_b32 v28, v30")
e("v_permlane32_swap_b32 v29, v31")
e("s_nop 1")
e("v_add_f32 v28, v28, v30")
e("v_add_f32 v29, v29, v31")
e("s_nop 1")
e("v_permlane16_swap_b32 v28, v29")
e("s_nop 1")
e("v_add_f32 v28, v28, v29")
e("s_nop 1")
e("v_add_f32_dpp v28, v28, v28 row_ror:8 row_mask:0xf bank_mask:0xf")
e("v_cvt_pk_bf16_f32 v28, v28, v28")
e(f"ds_write_b16 v18, v28 offset:{L_OL}")
lds_signal(F_ORDY, 4, 5)
stamp(6)
lab("L_k_end")
stamps_out(7, sCNT)
e("s_endpgm")

lab("L_roleV")
VD = 16; BF = 80; DA = 112; AF = 144; SCR = 80
e(f"s_sub_u32 {sU0}, {sWV}, 5")
e(f"s_xor_b32 {sU3}, {sU0}, {sXW}")
e(f"s_and_b32 {sT0}, {sX7}, 0x38")
e("v_and_b32 v2, 0x38, v0")
e(f"v_xor_b32 v2, {sT0}, v2")
e("v_lshlrev_b32 v2, 9, v2")
e("v_and_b32 v3, 7, v0")
e("v_lshl_or_b32 v2, v3, 4, v2")
e(f"s_lshl_b32 {sT0}, {sU3}, 7")
e(f"v_add_u32 v2, {sT0}, v2")
e("v_mov_b32 v4, 0")
e("v_mov_b32 v5, 1")
e("v_and_b32 v6, 1, v0")
e("v_lshlrev_b32 v6, 9, v6")
e("v_bfe_u32 v7, v0, 1, 1")
e("v_lshrrev_b32 v8, 4, v0")
e("v_lshl_add_u32 v7, v8, 1, v7")
e("v_lshl_add_u32 v6, v7, 5, v6")
e("v_and_b32 v9, 7, v0")
e("v_lshlrev_b32 v9, 5, v9")
e(f"s_lshl_b32 {sT0}, {sU3}, 8")
e(f"v_add_u32 v9, {sT0}, v9")
e(f"s_lshl_b32 {sT0}, {sH}, 5")
e(f"s_add_u32 {sT0}, {sT0}, {sJ}")
e(f"s_lshl_b32 {sT0}, {sT0}, 11")
e(f"s_add_u32 {sU2}, {sT0}, {W_OP}")
e(f"s_and_b32 {sU1}, {sX7}, 0x47")
kv_off()
e(f"s_mov_b32 {sU4}, {sT0}")
e("s_waitcnt lgkmcnt(0)")
mk_srd(SRD_A, pV, 65536, add_lo=sU4)
mk_srd(SRD_WS, pWS, WS_SIZE)
e(f"s_load_dword {sTAG}, s[{pWS}:{pWS+1}], 0")
e(f"s_lshl_b32 {sT0}, {sH}, 2")
e(f"s_add_u32 {sT0}, {sT0}, {sU3}")
e(f"s_lshl_b32 {sT0}, {sT0}, 7")
e(f"s_lshl_b32 {sT1}, {sJ}, 2")
e(f"s_add_u32 {sT0}, {sT0}, {sT1}")
e(f"s_add_u32 {sU5}, {sT0}, {W_OF}")
if PRESO:
    for s in range(2):
        for r in range(8):
            e(f"s_xor_b32 {sT1}, {sU1}, {r | (s << 6)}")
            e(f"s_lshl_b32 s{16+8*s+r}, {sT1}, 9")
    lds_wait(F_QISS, 1, 4, 11)
    stamp(1)
    if SHARE:
        assert KWIN == VWIN
        e("s_branch L_issue16")
        lab("L_v_issued")
    else:
        for i in range(16):
            q = VD+4*i
            if i >= VWIN: e(f"s_waitcnt vmcnt({VWIN-1})")
            e(f"buffer_load_dwordx4 v[{q}:{q+3}], v2, {srd(SRD_A)}, s{16+i} offen nt")
else:
    lds_wait(F_QISS, 1, 4, 11)
    stamp(1)
    for s in range(2):
        if s == 1 and VGATE: lds_wait(F_QRDY, 1, 4, 11)
        for r in range(8):
            e(f"s_xor_b32 {sT1}, {sU1}, {r | (s << 6)}")
            e(f"s_lshl_b32 {sT1}, {sT1}, 9")
            q = VD+32*s+4*r
            if 8*s+r >= VWIN: e(f"s_waitcnt vmcnt({VWIN-1})")
            e(f"buffer_load_dwordx4 v[{q}:{q+3}], v2, {srd(SRD_A)}, {sT1} offen nt")
lds_signal(F_VISS, 4, 5)
stamp(2)
BF1 = 112; DA = 16
mk_tag()
e(f"v_mov_b32 v13, {sTAG}")
e("v_and_b32 v10, 1, v0")
e("v_lshlrev_b32 v10, 8, v10")
e("v_bfe_u32 v11, v0, 1, 1")
e("v_lshrrev_b32 v14, 4, v0")
e("v_lshl_add_u32 v11, v14, 1, v11")
e("v_lshl_add_u32 v10, v11, 4, v10")
e("s_waitcnt vmcnt(8)")
transpose_set(VD, BF)
e(f"ds_read_b32 v11, v4 offset:{F_PRDY}")
e(f"ds_read_b32 v12, v4 offset:{F_QRDY}")
e(f"ds_read_b128 v[{AF}:{AF+3}], v10 offset:{L_P}")
e(f"ds_read_b128 v[{AF+4}:{AF+7}], v10 offset:{L_P+128}")
e("s_waitcnt lgkmcnt(0)")
e(f"v_readfirstlane_b32 {sU1}, v11")
e(f"v_readfirstlane_b32 {sFAST}, v12")
e(f"s_cmp_eq_u32 {sU1}, 0")
e("s_cbranch_scc1 L_v_late")
stamp(3)
mfma_set(DA, AF, BF, True)
transpose_set(VD+32, BF1, waits=[6, 4, 2, 0])
stamp(5)
e("s_branch L_v_m1")
lab("L_v_late")
transpose_set(VD+32, BF1, waits=[6, 4, 2, 0])
lds_wait(F_PRDY, 1, 4, 11, sleep=0)
e(f"ds_read_b32 v12, v4 offset:{F_QRDY}")
e(f"ds_read_b128 v[{AF}:{AF+3}], v10 offset:{L_P}")
e(f"ds_read_b128 v[{AF+4}:{AF+7}], v10 offset:{L_P+128}")
e("s_waitcnt lgkmcnt(0)")
e(f"v_readfirstlane_b32 {sFAST}, v12")
stamp(3)
mfma_set(DA, AF, BF, True)
stamp(5)
lab("L_v_m1")
e("s_nop 1")
mfma_set(DA, AF+4, BF1, False)
e("s_nop 3")
OO = 80
for rp in range(8):
    if rp == 7: e("s_nop 3")
    for hd in range(2):
        e(f"v_add_f32_dpp v{OO+8*hd+rp}, v{DA+4*rp+2+hd}, v{DA+4*rp+hd} row_shl:8 row_mask:0xf bank_mask:0xf")
e("s_mov_b64 exec, 0xff")
e(f"s_cmp_eq_u32 {sFAST}, 2")
e("s_cbranch_scc1 L_v_ofast")
for hd in range(2):
    for q in range(2):
        e(f"buffer_store_dwordx4 v[{OO+8*hd+4*q}:{OO+8*hd+4*q+3}], v9, {srd(SRD_WS)}, {sU2} offen offset:{1024*hd+16*q} sc1")
e("s_branch L_v_odone")
lab("L_v_ofast")
for hd in range(2):
    for q in range(2):
        e(f"buffer_store_dwordx4 v[{OO+8*hd+4*q}:{OO+8*hd+4*q+3}], v9, {srd(SRD_WS)}, {sU2} offen offset:{1024*hd+16*q}")
lab("L_v_odone")
if OHINT:
    e("s_mov_b64 exec, 1")
    e(f"s_cmp_eq_u32 {sFAST}, 2")
    e("s_cbranch_scc1 L_v_ffast")
    e(f"buffer_store_dword v13, v4, {srd(SRD_WS)}, {sU5} offen sc1")
    e("s_branch L_v_fdone")
    lab("L_v_ffast")
    e(f"buffer_store_dword v13, v4, {srd(SRD_WS)}, {sU5} offen")
    lab("L_v_fdone")
e("s_mov_b64 exec, -1")
lds_signal(F_VDONE, 4, 5)
stamp(6)
stamps_out(7)
e("s_endpgm")

lab("L_roleF")
FD = 16; FB = 48; FDA = 80; FA_ = 112; FG = 116; F2D = 128
e(f"s_lshr_b32 {sT0}, {sJ}, 3")
e(f"s_lshl_b32 {sT0}, {sT0}, 3")
e(f"s_add_u32 {sU0}, {sT0}, {sH}")
e(f"s_and_b32 {sU1}, {sJ}, 7")
e(f"s_mul_i32 {sT0}, {sJ}, 37")
e(f"s_lshr_b32 {sT0}, {sT0}, 8")
e(f"s_mul_i32 {sT1}, {sT0}, 7")
e(f"s_sub_u32 {sU3}, {sJ}, {sT1}")
e(f"s_lshl_b32 {sT0}, {sT0}, 3")
e(f"s_add_u32 {sU2}, {sT0}, {sH}")
e("v_mov_b32 v4, 0")
e("v_mov_b32 v5, 1")
e("v_lshlrev_b32 v6, 4, v0")
e("v_lshrrev_b32 v2, 3, v0")
e("v_min_u32 v3, 6, v2")
e("v_mul_u32_u24 v3, 28672, v3")
e("v_and_b32 v7, 7, v0")
e("v_lshl_add_u32 v3, v7, 4, v3")
e("v_mul_u32_u24 v2, 7168, v2")
e("v_lshl_add_u32 v2, v7, 4, v2")
e("s_waitcnt lgkmcnt(0)")
mk_srd(SRD_WS, pWS, WS_SIZE)
mk_srd(SRD_A, pW1, 448*3584)
mk_srd(SRD_B, pW2, 1792*896)
mk_srd(SRD_C, pB1, 3584)
e(f"s_add_u32 {sT0}, {sU2}, 32")
e(f"s_lshl_b32 {sT0}, {sT0}, 11")
e(f"s_lshl_b32 {sT1}, {sU3}, 8")
e(f"s_add_u32 {sT0}, {sT0}, {sT1}")
e(f"s_add_u32 {sU4}, {sT0}, {W_AP}")
e("s_setprio 1")
e(f"s_mov_b32 {sU5}, 0")
e(f"s_cmp_ge_u32 {sU0}, 28")
e("s_cbranch_scc1 L_f_now1")
e(f"s_mul_i32 {sT0}, {sU1}, {56*3584}")
e(f"s_lshl_b32 {sT1}, {sU0}, 7")
e(f"s_add_u32 {sT0}, {sT0}, {sT1}")
for r in range(8):
    e(f"s_add_u32 {sT1}, {sT0}, {r*3584}")
    e(f"buffer_load_dwordx4 v[{FD+4*r}:{FD+4*r+3}], v3, {srd(SRD_A)}, {sT1} offen nt")
lab("L_f_now1")
e(f"s_load_dword {sTAG}, s[{pWS}:{pWS+1}], 0")
if WQAF:
    e(f"s_cmp_lt_u32 {sU0}, 28")
    e("s_cbranch_scc1 L_f_wq1")
    e(f"buffer_load_dword v12, v4, {srd(SRD_C)}, 0 offen")
    e("s_waitcnt vmcnt(0)")
    e("s_branch L_f_wq2")
    lab("L_f_wq1")
    e("s_waitcnt vmcnt(WQAN)".replace("WQAN", str(opt("wqan", 3))))
    lab("L_f_wq2")
    lds_signal(F_WQA, 4, 5)
e(f"s_cmp_ge_u32 {sU2}, 28")
e("s_cbranch_scc1 L_f_noclr")
for k in range(4): e(f"v_mov_b32 v{8+k}, -1")
e("s_mov_b64 exec, 0xffff")
if CLR != "none": e(f"buffer_store_dwordx4 v[8:11], v6, {srd(SRD_WS)}, {sU4} offen sc1")
e("s_mov_b64 exec, -1")
lab("L_f_noclr")
stamp(1)
def w2_loads():
    e(f"s_mul_i32 {sT0}, {sU2}, {64*896}")
    e(f"s_lshl_b32 {sT1}, {sU3}, 7")
    e(f"s_add_u32 {sT0}, {sT0}, {sT1}")
    for r in range(8):
        e(f"s_add_u32 {sT1}, {sT0}, {r*896}")
        e(f"buffer_load_dwordx4 v[{F2D+4*r}:{F2D+4*r+3}], v2, {srd(SRD_B)}, {sT1} offen nt")
    e("v_and_b32 v12, 7, v0")
    e("v_lshlrev_b32 v12, 4, v12")
    e("v_lshrrev_b32 v13, 4, v0")
    e("v_lshl_add_u32 v14, v13, 2, v12")
    e(f"s_lshl_b32 {sT0}, {sU2}, 7")
    e(f"v_add_u32 v15, {sT0}, v14")
    e(f"buffer_load_dword v8, v15, {srd(SRD_C)}, 0 offen")
e(f"s_cmp_ge_u32 {sU0}, 28")
e("s_cbranch_scc1 L_f_stage2")
lds_wait(F_XN, 1, 4, 11)
e("v_bfe_u32 v12, v0, 1, 1")
e("v_lshrrev_b32 v13, 4, v0")
e("v_lshl_add_u32 v12, v13, 1, v12")
e("v_cmp_gt_u32 vcc, 7, v12")
e("v_lshlrev_b32 v12, 4, v12")
e(f"s_mul_i32 {sT0}, {sU1}, 112")
e(f"v_add_u32 v12, {sT0}, v12")
e(f"ds_read_b128 v[{FA_}:{FA_+3}], v12 offset:{L_XN}")
e(f"s_cmp_ge_u32 {sU2}, 28")
e("s_cbranch_scc1 L_f_w0")
e("s_waitcnt vmcnt(1) lgkmcnt(0)")
e("s_branch L_f_w1")
lab("L_f_w0")
e("s_waitcnt vmcnt(0) lgkmcnt(0)")
lab("L_f_w1")
for k in range(4): e(f"v_cndmask_b32 v{FA_+k}, 0, v{FA_+k}, vcc")
transpose_set(FD, FB)
e("s_nop 1")
mfma_set(FDA, FA_, FB, True)
mk_tag()
e(f"v_mov_b32 v9, {sTAG}")
e(f"s_mul_i32 {sT0}, {sU0}, 3072")
e(f"s_mul_i32 {sT1}, {sU1}, 384")
e(f"s_add_u32 {sT0}, {sT0}, {sT1}")
e(f"s_add_u32 {sU5}, {sT0}, {W_HMB}")
tile_out_granules(FDA, FG, 9)
publish_granules(FG, 6, sU5, False)
e(f"s_mov_b32 s86, {sU5}")
e("s_mov_b32 s87, 0")
stamp(2)
e("s_waitcnt vmcnt(0)")
lds_signal(F_CLR, 4, 5)
e("s_branch L_f_stage2b")
lab("L_f_stage2")
e("s_mov_b32 s87, 1")
e("s_waitcnt vmcnt(0) lgkmcnt(0)")
lds_signal(F_CLR, 4, 5)
mk_tag()
def f_pub_b():
    L = uid("fb")
    e("s_cmp_lg_u32 s87, 0")
    e(f"s_cbranch_scc1 {L}")
    publish_granules(FG, 6, "s86", True)
    e("s_mov_b32 s87, 1")
    lab(L)
lab("L_f_stage2b")
e(f"s_cmp_ge_u32 {sU2}, 28")
e("s_cbranch_scc1 L_f_endb")
e("v_and_b32 v12, 7, v0")
e("v_lshlrev_b32 v12, 4, v12")
e("v_lshrrev_b32 v13, 3, v0")
e("v_mul_u32_u24 v13, 384, v13")
e("v_add_u32 v13, v13, v12")
e(f"s_mul_i32 {sT0}, {sU2}, 3072")
e(f"s_add_u32 {sU5}, {sT0}, {W_HMB}")
e(f"v_mov_b32 v10, {sTAG}")
lds_wait(F_KHALF, 4, 4, 11)
e(f"s_mov_b32 {sCNT}, 0")
e(f"s_mov_b32 s88, 0")
HG = 16
lab("L_hpoll")
e(f"s_cmp_ge_u32 s88, {NTRY}")
e(f"s_cselect_b32 {sT2}, s88, 0")
e(f"s_and_b32 {sT2}, {sT2}, 1")
e(f"s_mul_i32 {sT2}, {sT2}, {W_BOFF}")
e(f"s_add_u32 {sT0}, {sT2}, {sU5}")
for k in range(3):
    e(f"buffer_load_dwordx4 v[{HG+4*k}:{HG+4*k+3}], v13, {srd(SRD_WS)}, {sT0} offen offset:{128*k} sc1")
if not W2LATE:
    e("s_cmp_lg_u32 s88, 0")
    e("s_cbranch_scc1 L_h_w2done")
    e("v_mov_b32 v28, v13")
    w2_loads()
    e("v_mov_b32 v13, v28")
    e("s_waitcnt vmcnt(9)")
    e("s_branch L_h_chk")
    lab("L_h_w2done")
e("s_waitcnt vmcnt(0)")
lab("L_h_chk")
e(f"v_xor_b32 v11, v{HG+3}, v10")
e(f"v_xor_b32 v28, v{HG+7}, v10")
e("v_or_b32 v11, v11, v28")
e(f"v_xor_b32 v28, v{HG+11}, v10")
e("v_or_b32 v11, v11, v28")
e("v_cmp_lt_u32 vcc, 7, v11")
e("s_cmp_eq_u64 vcc, 0")
e("s_cbranch_scc1 L_hgot")
e("s_add_u32 s88, s88, 1")
e(f"s_cmp_lg_u32 s88, {NTRY}")
e("s_cbranch_scc1 L_h_nob")
f_pub_b()
lab("L_h_nob")
e(f"s_cmp_lt_u32 s88, {SPIN_LIMIT}")
e("s_cbranch_scc1 L_hpoll")
lab("L_hgot")
stamp(4)
e("s_waitcnt vmcnt(0)")
if W2LATE:
    e("v_and_b32 v12, 7, v0")
    e("v_lshlrev_b32 v12, 4, v12")
    e("v_lshrrev_b32 v13, 4, v0")
    e("v_lshl_add_u32 v14, v13, 2, v12")
    e(f"s_lshl_b32 {sT0}, {sU2}, 7")
    e(f"v_add_u32 v15, {sT0}, v14")
    e(f"buffer_load_dword v8, v15, {srd(SRD_C)}, 0 offen")
    lds_wait(F_VISS, 4, 4, 11)
    e(f"s_mul_i32 {sT0}, {sU2}, {64*896}")
    e(f"s_lshl_b32 {sT1}, {sU3}, 7")
    e(f"s_add_u32 {sT0}, {sT0}, {sT1}")
    for r in range(8):
        e(f"s_add_u32 {sT1}, {sT0}, {r*896}")
        e(f"buffer_load_dwordx4 v[{F2D+4*r}:{F2D+4*r+3}], v2, {srd(SRD_B)}, {sT1} offen nt")
    e("s_waitcnt vmcnt(8)")
hv = [HG+p for p in GPOS]
e("s_nop 1")
for i in range(8):
    e(f"v_add_f32_dpp v{hv[i]}, v{hv[i]}, v{hv[i]} row_ror:8 row_mask:0xf bank_mask:0xf")
e("s_nop 1")
for i in range(4): e(f"v_permlane32_swap_b32 v{hv[i]}, v{hv[i+4]}")
e("s_nop 1")
for i in range(4): e(f"v_add_f32 v{hv[i]}, v{hv[i]}, v{hv[i+4]}")
e("s_nop 1")
for i in range(2): e(f"v_permlane16_swap_b32 v{hv[i]}, v{hv[i+2]}")
e("s_nop 1")
for i in range(2): e(f"v_add_f32 v{hv[i]}, v{hv[i]}, v{hv[i+2]}")
X0, X1 = hv[0], hv[1]
e(f"v_cvt_pk_bf16_f32 v11, v{X0}, v{X1}")
e(f"v_lshlrev_b32 v{X0}, 16, v11")
e(f"v_and_b32 v{X1}, 0xffff0000, v11")
e("v_lshlrev_b32 v11, 16, v8")
e("v_and_b32 v12, 0xffff0000, v8")
e(f"v_add_f32 v{X0}, v{X0}, v11")
e(f"v_add_f32 v{X1}, v{X1}, v12")
e(f"v_cvt_pk_bf16_f32 v11, v{X0}, v{X1}")
e(f"v_lshlrev_b32 v{X0}, 16, v11")
e(f"v_and_b32 v{X1}, 0xffff0000, v11")
KB = -2.0*0.7978845608028654*1.4426950408889634
e(f"s_mov_b32 {sT2}, {f2h(0.044715)}")
e(f"s_mov_b32 {sT3}, {f2h(KB)}")
for x, t in ((X0, 60), (X1, 61)):
    e(f"v_mul_f32 v{t}, v{x}, v{x}")
    e(f"v_mul_f32 v{t}, v{t}, v{x}")
    e(f"v_fma_f32 v{t}, v{t}, {sT2}, v{x}")
    e(f"v_mul_f32 v{t}, {sT3}, v{t}")
    e(f"v_exp_f32 v{t}, v{t}")
    e("s_nop 0")
    e(f"v_add_f32 v{t}, 1.0, v{t}")
    e(f"v_rcp_f32 v{t}, v{t}")
    e("s_nop 0")
    e(f"v_mul_f32 v{x}, v{x}, v{t}")
e(f"v_cvt_pk_bf16_f32 v11, v{X0}, v{X1}")
e(f"ds_write_b32 v14, v11 offset:{L_HL}")
e("v_bfe_u32 v12, v0, 1, 1")
e("v_lshrrev_b32 v13, 4, v0")
e("v_lshl_add_u32 v12, v13, 1, v12")
e("v_lshlrev_b32 v12, 4, v12")
e(f"ds_read_b128 v[{FA_}:{FA_+3}], v12 offset:{L_HL}")
e("s_waitcnt vmcnt(0)")
transpose_set(F2D, FB)
e("s_waitcnt lgkmcnt(0)")
mfma_set(FDA, FA_, FB, True)
e("v_and_b32 v10, 7, v0")
e("v_lshlrev_b32 v10, 5, v10")
e("s_nop 3")
for rp in range(8):
    if rp == 7: e("s_nop 3")
    e(f"v_add_f32_dpp v{16+rp}, v{FDA+4*rp+2}, v{FDA+4*rp} row_shl:8 row_mask:0xf bank_mask:0xf")
e("s_mov_b64 exec, 0xff")
e(f"buffer_store_dwordx4 v[16:19], v10, {srd(SRD_WS)}, {sU4} offen sc1")
e(f"buffer_store_dwordx4 v[20:23], v10, {srd(SRD_WS)}, {sU4} offen offset:16 sc1")
e("s_mov_b64 exec, -1")
stamp(5)
lab("L_f_endb")
f_pub_b()
lab("L_f_end")
stamps_out(6, "s88")
e("s_endpgm")

if not WINL:
    lab("L_winit")
    e("v_lshlrev_b32 v2, 2, v0")
    e("v_mov_b32 v3, 0")
    e("ds_write_b32 v2, v3")
    e("s_waitcnt lgkmcnt(0)")
    e("s_barrier")
    kernarg_loads()
    stamp(0)
    zero_stamps()
    e(f"s_and_b32 {sH}, s2, 7")
    e(f"s_lshr_b32 {sJ}, s2, 3")
    e(f"s_mov_b32 {sSELLO}, 0x05040100")
    e(f"s_mov_b32 {sSELHI}, 0x07060302")
lab("L_roleW")
e("s_setprio 2")
WI = 16; WB = 80
e("v_mov_b32 v4, 0")
e("v_mov_b32 v5, 1")
e("v_lshlrev_b32 v6, 4, v0")
e(f"s_and_b32 {sU0}, {sJ}, 3")
e(f"s_lshr_b32 {sU1}, {sJ}, 2")
e(f"s_lshl_b32 {sT0}, {sH}, 2")
e(f"s_add_u32 {sT0}, {sT0}, {sU0}")
e(f"s_mul_i32 {sU3}, {sT0}, {128*896}")
e(f"s_lshl_b32 {sT1}, {sU1}, 7")
e(f"s_add_u32 {sU3}, {sU3}, {sT1}")
kv_off()
e(f"s_mov_b32 {sU4}, {sT0}")
e("s_waitcnt lgkmcnt(0)")
mk_srd(SRD_WS, pWS, WS_SIZE)
lds_wait(F_QLD, 1, 4, 11, sleep=0)
if TLBPF:
    e(f"s_add_u32 s86, s{pV}, {sU4}")
    e(f"s_addc_u32 s87, s{pV+1}, 0")
    e("v_mov_b32 v12, s86")
    e("v_mov_b32 v13, s87")
    e(f"s_min_u32 {sT0}, {sU3}, {4096*896-131072}")
    e(f"s_add_u32 s86, s{pWO}, {sT0}")
    e(f"s_addc_u32 s87, s{pWO+1}, 0")
    e("v_writelane_b32 v12, s86, 1")
    e("v_writelane_b32 v13, s87, 1")
    e(f"s_add_u32 s86, s86, {127*896}")
    e("s_addc_u32 s87, s87, 0")
    e("v_writelane_b32 v12, s86, 2")
    e("v_writelane_b32 v13, s87, 2")
    e(f"v_writelane_b32 v12, s{pOUT}, 3")
    e(f"v_writelane_b32 v13, s{pOUT+1}, 3")
    e(f"s_add_u32 s86, s{pK}, {sU4}")
    e(f"s_addc_u32 s87, s{pK+1}, 0")
    e("v_writelane_b32 v12, s86, 4")
    e("v_writelane_b32 v13, s87, 4")
    e(f"v_writelane_b32 v12, s{pW2}, 5")
    e(f"v_writelane_b32 v13, s{pW2+1}, 5")
    e("s_mov_b64 exec, 0x3f")
    e("global_load_dword v14, v[12:13], off nt")
    e("s_mov_b64 exec, -1")
if CODEPF and not EARLYPF:
    e("s_getpc_b64 s[86:87]")
    lab("L_pc_here")
    e(f"s_sub_u32 s86, s86, L_pc_here-{NAME}_kernel")
    e("s_subb_u32 s87, s87, 0")
    e(f"s_cmp_ge_u32 {sJ}, {CODE_CHUNKS}")
    e(f"s_cselect_b32 {sT0}, {CODE_CHUNKS}, 0")
    e(f"s_sub_u32 {sT0}, {sJ}, {sT0}")
    e(f"s_cmp_ge_u32 {sT0}, {CODE_CHUNKS}")
    e(f"s_cselect_b32 {sT0}, 0, {sT0}")
    e(f"s_lshl_b32 {sT0}, {sT0}, 10")
    e(f"v_add_u32 v15, {sT0}, v6")
    e("global_load_dwordx4 v[16:19], v15, s[86:87]")
for k in range(4): e(f"v_mov_b32 v{8+k}, -1")
e(f"s_lshl_b32 {sT0}, {sH}, 5")
e(f"s_add_u32 {sT0}, {sT0}, {sJ}")
e(f"s_lshl_b32 {sT0}, {sT0}, 11")
e(f"s_add_u32 {sT0}, {sT0}, {W_OP}")
CP = {"sc1": " sc1", "plain": "", "none": None}[CLR]
if CP is not None:
    e(f"buffer_store_dwordx4 v[8:11], v6, {srd(SRD_WS)}, {sT0} offen{CP}")
    e(f"buffer_store_dwordx4 v[8:11], v6, {srd(SRD_WS)}, {sT0} offen offset:1024{CP}")
e("v_lshlrev_b32 v7, 8, v0")
e(f"s_lshl_b32 {sT0}, {sH}, 9")
e(f"s_lshl_b32 {sT1}, {sJ}, 3")
e(f"s_add_u32 {sT0}, {sT0}, {sT1}")
e(f"s_add_u32 {sT0}, {sT0}, {W_ML}")
e("s_mov_b64 exec, 3")
if CP is not None: e(f"buffer_store_dwordx2 v[8:9], v7, {srd(SRD_WS)}, {sT0} offen{CP}")
e("s_mov_b64 exec, -1")
e(f"s_lshl_b32 {sT0}, {sH}, 2")
e(f"s_add_u32 {sT0}, {sT0}, {sU0}")
e(f"s_lshl_b32 {sT0}, {sT0}, 11")
e(f"s_lshl_b32 {sT1}, {sU1}, 8")
e(f"s_add_u32 {sT0}, {sT0}, {sT1}")
e(f"s_add_u32 {sU2}, {sT0}, {W_AP}")
e(f"s_cmp_ge_u32 {sJ}, 28")
e("s_cbranch_scc1 L_w_noap")
e("s_mov_b64 exec, 0xffff")
if CLR != "none": e(f"buffer_store_dwordx4 v[8:11], v6, {srd(SRD_WS)}, {sU2} offen sc1")
e("s_mov_b64 exec, -1")
lab("L_w_noap")
e(f"s_load_dword {sTAG}, s[{pWS}:{pWS+1}], 0")
e("s_waitcnt vmcnt(0) lgkmcnt(0)")
mk_tag()
e(f"v_mov_b32 v7, {sTAG}")
lds_wait(F_CLR, 1, 4, 11)
e(f"s_lshl_b32 {sT0}, {sH}, 5")
e(f"s_add_u32 {sT0}, {sT0}, {sJ}")
e(f"s_lshl_b32 {sT0}, {sT0}, 2")
e(f"s_add_u32 {sT0}, {sT0}, {W_READY}")
e("s_mov_b64 exec, 1")
e(f"buffer_store_dword v7, v4, {srd(SRD_WS)}, {sT0} offen sc1")
e("s_mov_b64 exec, -1")
stamp(1)
e(f"s_cmp_ge_u32 {sJ}, 28")
e("s_cbranch_scc1 L_final")
mk_srd(SRD_A, pWO, 4096*896)
e("v_lshrrev_b32 v2, 3, v0")
e("v_mul_u32_u24 v2, 7168, v2")
e("v_and_b32 v3, 7, v0")
e("v_lshl_add_u32 v2, v3, 4, v2")
e("v_bfe_u32 v10, v0, 1, 1")
e("v_lshrrev_b32 v11, 4, v0")
e("v_lshl_add_u32 v10, v11, 1, v10")
e("v_lshlrev_b32 v10, 4, v10")
e("v_lshlrev_b32 v9, 5, v3")
if PRESO:
    for s in range(2):
        for r in range(8):
            e(f"s_add_u32 s{16+8*s+r}, {sU3}, {(64*s+r)*896}")
    lds_wait(F_VISS, 4, 4, 11)
    stamp(2)
    if SHARE and WWIN == KWIN:
        e("s_waitcnt vmcnt(0)")
        e("s_branch L_issue16")
    else:
        for i in range(16):
            q = WI+4*i
            if i >= WWIN: e(f"s_waitcnt vmcnt({WWIN-1})")
            e(f"buffer_load_dwordx4 v[{q}:{q+3}], v2, {srd(SRD_A)}, s{16+i} offen nt")
    if SHARE: lab("L_w_issued")
else:
    lds_wait(F_VISS, 4, 4, 11)
    stamp(2)
    for s in range(2):
        for r in range(8):
            q = WI+32*s+4*r
            e(f"s_add_u32 {sT1}, {sU3}, {(64*s+r)*896}")
            e(f"buffer_load_dwordx4 v[{q}:{q+3}], v2, {srd(SRD_A)}, {sT1} offen nt")
e("s_waitcnt vmcnt(8)")
transpose_set(WI, WB)
e("s_waitcnt vmcnt(0)")
transpose_set(WI+32, WB+32)
stamp(3)
lds_wait(F_ORDY, 4, 4, 11, sleep=0)
stamp(4)
e(f"ds_read_b128 v[16:19], v10 offset:{L_OL}")
e(f"ds_read_b128 v[20:23], v10 offset:{L_OL+128}")
e("s_waitcnt lgkmcnt(0)")
WDA = 32
mfma_set(WDA, 16, WB, True)
mfma_set(WDA, 20, WB+32, False)
e("s_nop 3")
for rp in range(8):
    if rp == 7: e("s_nop 3")
    e(f"v_add_f32_dpp v{64+rp}, v{WDA+4*rp+2}, v{WDA+4*rp} row_shl:8 row_mask:0xf bank_mask:0xf")
e("s_mov_b64 exec, 0xff")
e(f"buffer_store_dwordx4 v[64:67], v9, {srd(SRD_WS)}, {sU2} offen {FST}")
e(f"buffer_store_dwordx4 v[68:71], v9, {srd(SRD_WS)}, {sU2} offen offset:16 {FST}")
e("s_mov_b64 exec, -1")
stamp(5)
stamps_out(6)
e("s_endpgm")

lab("L_final")
e(f"s_sub_u32 {sT0}, {sJ}, 28")
e(f"s_lshl_b32 {sT0}, {sT0}, 3")
e(f"s_add_u32 {sU0}, {sT0}, {sH}")
e(f"s_cmp_ge_u32 {sU0}, 28")
e("s_cbranch_scc1 L_end")
mk_srd(SRD_A, pX, 896)
mk_srd(SRD_B, pB2, 896)
mk_srd(SRD_C, pOUT, 896)
e("v_and_b32 v2, 3, v0")
e("v_lshlrev_b32 v2, 2, v2")
e("v_bfe_u32 v3, v0, 5, 1")
e("v_lshl_add_u32 v2, v3, 1, v2")
e("v_bfe_u32 v3, v0, 4, 1")
e("v_add_u32 v2, v2, v3")
e(f"s_lshl_b32 {sT0}, {sU0}, 4")
e(f"v_add_u32 v2, {sT0}, v2")
e("v_lshlrev_b32 v2, 1, v2")
e(f"buffer_load_ushort v12, v2, {srd(SRD_A)}, 0 offen")
e(f"buffer_load_ushort v13, v2, {srd(SRD_B)}, 0 offen")
e(f"s_mov_b32 {sT1}, {W_READY}")
lds_wait(F_KISS, 4, 4, 11)
e(f"s_mov_b32 {sCNT}, 0")
lab("L_rdy")
e(f"buffer_load_dwordx4 v[8:11], v6, {srd(SRD_WS)}, {sT1} offen sc1")
e("s_waitcnt vmcnt(0)")
for k in range(4): e(f"v_xor_b32 v{8+k}, v{8+k}, v7")
e("v_or_b32 v8, v8, v9")
e("v_or_b32 v10, v10, v11")
e("v_or_b32 v8, v8, v10")
e("v_cmp_lt_u32 vcc, 7, v8")
e("s_cmp_eq_u64 vcc, 0")
e("s_cbranch_scc1 L_rdy_ok")
e("s_sleep 8")
e(f"s_add_u32 {sCNT}, {sCNT}, 1")
e(f"s_cmp_lt_u32 {sCNT}, {SPIN_LIMIT}")
e("s_cbranch_scc1 L_rdy")
lab("L_rdy_ok")
stamp(2)
e(f"s_cmp_lg_u32 {sU0}, 0")
e("s_cbranch_scc1 L_noep")
e("s_mov_b64 exec, 1")
e(f"buffer_store_dword v7, v4, {srd(SRD_WS)}, 0 offen sc1")
e("s_mov_b64 exec, -1")
lab("L_noep")
e("v_lshrrev_b32 v3, 2, v0")
e("v_lshlrev_b32 v3, 11, v3")
e("v_and_b32 v7, 3, v0")
e("v_lshl_add_u32 v3, v7, 4, v3")
e(f"s_lshl_b32 {sU1}, {sU0}, 6")
e(f"s_add_u32 {sU1}, {sU1}, {W_AP}")
e("v_lshlrev_b32 v13, 16, v13")
e("v_lshlrev_b32 v12, 16, v12")
e("v_lshrrev_b32 v14, 2, v0")
e("v_min_u32 v14, 11, v14")
e("v_lshlrev_b32 v14, 11, v14")
e("v_lshl_add_u32 v14, v7, 4, v14")
e("v_cmp_gt_u32 vcc, 48, v0")
e("s_nop 1")
e("v_cndmask_b32 v15, 0, 1.0, vcc")
lds_wait(F_VISS, 4, 4, 11)
lds_wait(F_SDONE, 4, 4, 11)
stamp(3)
e(f"s_mov_b32 {sCNT}, 0")
lab("L_bpoll")
e(f"s_add_u32 {sT1}, {sU1}, {16*2048*2}")
e(f"buffer_load_dwordx4 v[24:27], v3, {srd(SRD_WS)}, {sT1} offen sc1")
e(f"s_add_u32 {sT1}, {sU1}, {16*2048*3}")
e(f"buffer_load_dwordx4 v[28:31], v14, {srd(SRD_WS)}, {sT1} offen sc1")
e("s_waitcnt vmcnt(0)")
for d in range(4):
    e(f"v_fma_f32 v{104+d}, v{28+d}, v15, v{24+d}")
nan_or_sentinel_check([104, 105, 106, 107], list(range(24, 32)), "L_bgot", "L_bpoll", sCNT, 16, 17)
lab("L_bgot")
def red4(lo):
    for r in (4, 8):
        e("s_nop 1")
        for d in range(4):
            e(f"v_add_f32_dpp v{lo+d}, v{lo+d}, v{lo+d} row_ror:{r} row_mask:0xf bank_mask:0xf")
    e("s_nop 1")
    e(f"v_permlane32_swap_b32 v{lo}, v{lo+2}")
    e(f"v_permlane32_swap_b32 v{lo+1}, v{lo+3}")
    e("s_nop 1")
    e(f"v_add_f32 v{lo}, v{lo}, v{lo+2}")
    e(f"v_add_f32 v{lo+1}, v{lo+1}, v{lo+3}")
    e("s_nop 1")
    e(f"v_permlane16_swap_b32 v{lo}, v{lo+1}")
    e("s_nop 1")
    e(f"v_add_f32 v{lo}, v{lo}, v{lo+1}")
red4(104)
bf16r(104, 104)
e("v_add_f32 v104, v104, v13")
bf16r(104, 104)
stamp(4)
e(f"s_add_u32 {sU2}, {sU1}, {16*2048}")
e(f"s_mov_b32 {sCNT}, 0")
NB = FNB
def issue(b):
    e(f"buffer_load_dwordx4 v[{32+8*b}:{35+8*b}], v3, {srd(SRD_WS)}, {sU1} offen {FLD}")
    e(f"buffer_load_dwordx4 v[{36+8*b}:{39+8*b}], v3, {srd(SRD_WS)}, {sU2} offen {FLD}")
for b in range(NB):
    issue(b)
    if b < NB-1: e(f"s_sleep {FSL}")
lab("L_fpoll")
for b in range(NB):
    e(f"s_waitcnt vmcnt({2*(NB-1)})")
    for d in range(4):
        e(f"v_add_f32 v{100+d}, v{32+8*b+d}, v{36+8*b+d}")
    e("v_add_f32 v16, v100, v101")
    e("v_add_f32 v17, v102, v103")
    e("v_add_f32 v16, v16, v17")
    e("v_cmp_u_f32 vcc, v16, v16")
    e("s_cmp_eq_u64 vcc, 0")
    e("s_cbranch_scc1 L_fgot")
    e(f"v_max3_u32 v16, v{32+8*b}, v{33+8*b}, v{34+8*b}")
    e(f"v_max3_u32 v16, v16, v{35+8*b}, v{36+8*b}")
    e(f"v_max3_u32 v16, v16, v{37+8*b}, v{38+8*b}")
    e(f"v_max_u32 v16, v16, v{39+8*b}")
    e("v_cmp_eq_u32 vcc, -1, v16")
    e("s_cmp_eq_u64 vcc, 0")
    e("s_cbranch_scc1 L_fgot")
    issue(b)
e(f"s_add_u32 {sCNT}, {sCNT}, 1")
e(f"s_cmp_lt_u32 {sCNT}, {SPIN_LIMIT}")
e("s_cbranch_scc1 L_fpoll")
lab("L_fgot")
stamp(5)
red4(100)
bf16r(100, 100)
e("v_add_f32 v100, v100, v12")
bf16r(100, 100)
e("v_add_f32 v100, v100, v104")
e("v_cvt_pk_bf16_f32 v100, v100, v100")
if HOPS:
    e("s_branch L_hop0")
    for i in range(HOPS):
        e(".p2align 8")
        lab(f"L_hop{i}")
        e(f"s_branch L_hop{i+1}")
    e(".p2align 8")
    lab(f"L_hop{HOPS}")
e("s_mov_b32 exec_lo, 0x000f000f")
e("s_mov_b32 exec_hi, 0x000f000f")
e(f"buffer_store_short v100, v2, {srd(SRD_C)}, 0 offen")
e("s_mov_b64 exec, -1")
stamp(6)
stamps_out(7, sCNT)
lab("L_end")
e("s_endpgm")
lab("L_code_end")

e(f""".section .rodata,"a"
.p2align 6
.amdhsa_kernel {NAME}_kernel
  .amdhsa_next_free_vgpr 160
  .amdhsa_next_free_sgpr 96
  .amdhsa_accum_offset 160
  .amdhsa_group_segment_fixed_size 0
  .amdhsa_kernarg_size 104
  .amdhsa_user_sgpr_count 2
  .amdhsa_user_sgpr_kernarg_segment_ptr 1
  .amdhsa_system_sgpr_workgroup_id_x 1
  .amdhsa_float_denorm_mode_32 3
.end_amdhsa_kernel""")

txt = "\n".join(x for x in out if x is not None) + "\n"
path = sys.argv[1] if len(sys.argv) > 1 else "cdna_kernels/" + NAME + ".s"
open(path, "w").write(txt)
print("wrote", path, len(txt), "bytes")
```

```python
import sys, os, struct
NAME = "parallel_sum__sliding_block_cached__dense_activation_gelu__decode"
PROFILE = int(sys.argv[2]) if len(sys.argv) > 2 else 0
OPT = dict(kv.split("=") for kv in os.environ.get("GOPT", "").split(",") if kv)
def opt(k, d): return type(d)(OPT.get(k, d))
QDELAY = opt("qdelay", 8)
QSPACE = opt("qspace", 4)
HDELAY = opt("hdelay", 8)
TLBPF = opt("tlbpf", 0)
KWIN = opt("kwin", 6)
VWIN = opt("vwin", 6)
SHARE = opt("share", 1)
WWIN = opt("wwin", 8)
MLEARLY = opt("mlearly", 1)
MLD = opt("mld", 8)
EARLYPF = opt("earlypf", 1)
NTRY = 4
KTRIG = opt("ktrig", 5)
FLD = opt("fld", "sc1").replace("_"," ")
FST = opt("fst", "sc1").replace("_"," ")
FNB = opt("fnb", 3)
FSL = opt("fsl", 2)
OPIPE = opt("opipe", 1)
OSL = opt("osl", 2)
HOPS = opt("hops", 0)
WINL = opt("winl", 1)
WQAF = opt("wqaf", 0)
PRESO = opt("preso", 1)
CODEPF = opt("codepf", 1)
CODE_CHUNKS = opt("chunks", 13)
W2LATE = opt("w2late", 1)
MLDELAY = opt("mldelay", 12)
KEARLY = opt("kearly", 0)
VGATE = opt("vgate", 0)
OHINT = opt("ohint", 0)
CLR = opt("clr", "sc1")
FPIPE = opt("fpipe", 1)

out = []
def e(s=""): out.append(s)
def lab(s): out.append(s + ":")
_uid = [0]
def uid(p):
    _uid[0] += 1
    return f"L_{p}_{_uid[0]}"
def f2h(x): return "0x%08x" % struct.unpack("<I", struct.pack("<f", x))[0]

F_KISS, F_VISS, F_QRDY, F_SDONE, F_XN, F_CLR, F_ORDY, F_WRDY, F_KHALF, F_QISS, F_MLP, F_VDONE, F_WQA, F_PRDY, F_QLD = 0, 4, 8, 12, 16, 20, 24, 28, 32, 36, 40, 44, 48, 52, 56
L_XN = 256
L_Q = 1280
L_SC = 2304
L_OL = 4352
L_HL = 4608
L_WL = 4736
L_P = 4864
LDS_BYTES = 8192
W_EPOCH = 0
W_READY = 0x1000
W_ML = 0x2000
W_QMB = 0x5000
W_HMB = 0x1D000
W_BOFF = 0x40000
W_OP = 0x90000
W_AP = 0x110000
W_QH = 0x3000
W_HH = 0x3400
W_OF = 0x110000+0x20000
W_PROF = 0x4000000
WS_SIZE = 0x8000000
SPIN_LIMIT = 200000

NWAVES = 11
sH, sJ, sXR, sWV = "s4", "s5", "s6", "s3"
sTAG = "s7"
sT0, sT1, sT2, sT3 = "s8", "s9", "s10", "s11"
sCNT = "s12"
sSELLO, sSELHI = "s13", "s14"
sFAST = "s15"
pX, pK, pV, pWQ, pWO, pW1, pB1 = 16, 18, 20, 22, 24, 28, 30
pW2, pB2, pOUT, pDBG, pWS = 32, 34, 36, 38, 40
SRD_A, SRD_B, SRD_WS, SRD_C = 44, 48, 52, 56
sSTAMP = 60
sX7, sXS, sXW = "s76", "s77", "s78"
sU0, sU1, sU2, sU3, sU4, sU5 = "s80", "s81", "s82", "s83", "s84", "s85"

def srd(n): return f"s[{n}:{n+3}]"

def mk_srd(n, p, size, add_lo=None):
    if add_lo is None:
        e(f"s_mov_b32 s{n}, s{p}")
        e(f"s_and_b32 s{n+1}, s{p+1}, 0xffff")
    else:
        e(f"s_add_u32 s{n}, s{p}, {add_lo}")
        e(f"s_addc_u32 s{n+1}, s{p+1}, 0")
        e(f"s_and_b32 s{n+1}, s{n+1}, 0xffff")
    e(f"s_mov_b32 s{n+2}, {size}")
    e(f"s_mov_b32 s{n+3}, 0x20000")

def stamp(k):
    if PROFILE: e(f"s_memrealtime s[{sSTAMP+2*k}:{sSTAMP+2*k+1}]")

DBGMAP = {}
def dbg_out(pairs):
    e("s_waitcnt lgkmcnt(0)")
    mk_srd(SRD_C, pDBG, 256)
    e("s_mov_b64 exec, 1")
    e("v_mov_b32 v1, 0")
    for k, slot, neg in pairs:
        L = uid("dz")
        e(f"s_cmp_eq_u32 s{sSTAMP+2*k}, 0")
        e(f"s_cbranch_scc1 {L}")
        e(f"v_mov_b32 v2, s{sSTAMP+2*k}")
        if neg: e("v_not_b32 v2, v2")
        e(f"buffer_atomic_umax v2, v1, {srd(SRD_C)}, 0 offen offset:{4*slot}")
        lab(L)
    e("s_waitcnt vmcnt(0)")
ROLE = [None]
def stamps_out(n, cnt=None):
    if PROFILE == 2:
        m = {"Q": [(0,0,True),(1,2,False),(4,3,False),(6,4,False)], "K": [(1,5,False),(2,6,False),(5,9,False)], "V": [(5,7,False),(6,8,False)],
             "F": [(5,11,False)], "W": [(3,12,False),(5,10,False)], "Fin": [(6,1,False),(4,13,False)]}
        dbg_out(m[ROLE[0]])
        return
    if not PROFILE: return
    e("s_waitcnt lgkmcnt(0)")
    if cnt is not None:
        e(f"s_mov_b32 s{sSTAMP+14}, {cnt}"); e(f"s_mov_b32 s{sSTAMP+15}, 0")
        n = 8
    e("s_mov_b64 exec, 1")
    e(f"s_lshl_b32 {sT0}, s2, 4")
    e(f"s_add_u32 {sT0}, {sT0}, {sWV}")
    e(f"s_lshl_b32 {sT0}, {sT0}, 6")
    e(f"s_add_u32 {sT0}, {sT0}, {W_PROF}")
    e(f"v_mov_b32 v1, {sT0}")
    for k in range(n):
        e(f"v_mov_b32 v2, s{sSTAMP+2*k}")
        e(f"v_mov_b32 v3, s{sSTAMP+2*k+1}")
        e(f"buffer_store_dwordx2 v[2:3], v1, {srd(SRD_WS)}, 0 offen offset:{8*k}")
        e("s_nop 1")
    e("s_waitcnt vmcnt(0)")

def zero_stamps():
    if PROFILE:
        for k in range(1, 8):
            e(f"s_mov_b64 s[{sSTAMP+2*k}:{sSTAMP+2*k+1}], 0")

def lds_wait(flag, val, vz, vt, sleep=1):
    L = uid("lw"); D = uid("lwd")
    e(f"s_mov_b32 {sCNT}, 0")
    lab(L)
    e(f"ds_read_b32 v{vt}, v{vz} offset:{flag}")
    e("s_waitcnt lgkmcnt(0)")
    e(f"v_readfirstlane_b32 {sT0}, v{vt}")
    e(f"s_cmp_ge_u32 {sT0}, {val}")
    e(f"s_cbranch_scc1 {D}")
    if sleep: e(f"s_sleep {sleep}")
    e(f"s_add_u32 {sCNT}, {sCNT}, 1")
    e(f"s_cmp_lt_u32 {sCNT}, {SPIN_LIMIT*4}")
    e(f"s_cbranch_scc1 {L}")
    lab(D)

def lds_signal(flag, vz, vone):
    e("s_mov_b64 exec, 1")
    e(f"ds_add_u32 v{vz}, v{vone} offset:{flag}")
    e("s_mov_b64 exec, -1")

def bf16r(dst, src):
    e(f"v_cvt_pk_bf16_f32 v{dst}, v{src}, v{src}")
    e(f"v_lshlrev_b32 v{dst}, 16, v{dst}")

def allreduce(op, a, t):
    for r in (8, 4, 2, 1):
        e("s_nop 1")
        e(f"{op}_dpp v{a}, v{a}, v{a} row_ror:{r} row_mask:0xf bank_mask:0xf")
    e(f"v_mov_b32 v{t}, v{a}")
    e("s_nop 1")
    e(f"v_permlane16_swap_b32 v{a}, v{t}")
    e("s_nop 1")
    e(f"{op} v{a}, v{a}, v{t}")
    e(f"v_mov_b32 v{t}, v{a}")
    e("s_nop 1")
    e(f"v_permlane32_swap_b32 v{a}, v{t}")
    e("s_nop 1")
    e(f"{op} v{a}, v{a}, v{t}")

def common_scalars():
    e(f"s_lshr_b32 {sT0}, {sJ}, 2")
    e(f"s_mul_i32 {sT1}, {sH}, 5")
    e(f"s_add_u32 {sT0}, {sT0}, {sT1}")
    e(f"s_and_b32 {sT1}, {sJ}, 3")
    e(f"s_lshl_b32 {sT1}, {sT1}, 2")
    e(f"s_add_u32 {sT0}, {sT0}, {sT1}")
    e(f"s_and_b32 {sXR}, {sT0}, 15")
    e(f"s_and_b32 {sX7}, {sXR}, 7")
    e(f"s_lshr_b32 {sT0}, {sXR}, 2")
    e(f"s_lshl_b32 {sT0}, {sT0}, 3")
    e(f"s_or_b32 {sX7}, {sX7}, {sT0}")
    e(f"s_lshr_b32 {sT0}, {sXR}, 3")
    e(f"s_lshl_b32 {sT0}, {sT0}, 6")
    e(f"s_or_b32 {sX7}, {sX7}, {sT0}")
    e(f"s_and_b32 {sXS}, {sXR}, 3")
    e(f"s_add_u32 {sT0}, {sJ}, {sH}")
    e(f"s_and_b32 {sXW}, {sT0}, 3")

def kv_off():
    e(f"s_lshl_b32 {sT0}, {sH}, 25")
    e(f"s_lshl_b32 {sT1}, {sJ}, 16")
    e(f"s_add_u32 {sT0}, {sT0}, {sT1}")
    e(f"s_add_u32 {sT0}, {sT0}, 0x1E00000")
def kv_srd(n, p):
    kv_off()
    mk_srd(n, p, 65536, add_lo=sT0)

def transpose_set(src, dst, waits=None):
    for kp in range(4):
        if waits is not None:
            e(f"s_waitcnt vmcnt({waits[kp]})")
        a = src+8*kp; b = a+4
        for d in range(4):
            e(f"v_perm_b32 v{dst+4*(2*d)+kp}, v{b+d}, v{a+d}, {sSELLO}")
            e(f"v_perm_b32 v{dst+4*(2*d+1)+kp}, v{b+d}, v{a+d}, {sSELHI}")

def mfma_set(D, A, B, first):
    for rp in range(8):
        c = "0" if first else f"v[{D+4*rp}:{D+4*rp+3}]"
        e(f"v_mfma_f32_16x16x32_bf16 v[{D+4*rp}:{D+4*rp+3}], v[{A}:{A+3}], v[{B+4*rp}:{B+4*rp+3}], {c}")

def mk_tag():
    e(f"s_add_u32 {sTAG}, {sTAG}, 8")
    e(f"s_andn2_b32 {sTAG}, {sTAG}, 7")

GPOS = [0, 1, 2, 4, 5, 6, 8, 9]
def tile_out_granules(D, G, vtag):
    e("s_nop 3")
    for rp in range(8):
        if rp == 7: e("s_nop 3")
        e(f"v_add_f32_dpp v{G+GPOS[rp]}, v{D+4*rp+2}, v{D+4*rp} row_shl:8 row_mask:0xf bank_mask:0xf")
    for k in (3, 7, 10, 11):
        e(f"v_mov_b32 v{G+k}, v{vtag}")

def publish_granules(G, vaddr, soff, slotB):
    e("s_mov_b64 exec, 0xff")
    if slotB:
        e(f"s_add_u32 {sT3}, {soff}, {W_BOFF}")
        for k in range(3):
            e(f"buffer_store_dwordx4 v[{G+4*k}:{G+4*k+3}], v{vaddr}, {srd(SRD_WS)}, {sT3} offen offset:{128*k} sc1")
    else:
        for k in range(3):
            e(f"buffer_store_dwordx4 v[{G+4*k}:{G+4*k+3}], v{vaddr}, {srd(SRD_WS)}, {soff} offen offset:{128*k}")
    e("s_mov_b64 exec, -1")

def nan_or_sentinel_check(accs, regs, okl, retry_l, cnt, tmp1, tmp2):
    e(f"v_add_f32 v{tmp1}, v{accs[0]}, v{accs[1]}")
    for a in accs[2:]:
        e(f"v_add_f32 v{tmp1}, v{tmp1}, v{a}")
    e(f"v_cmp_u_f32 vcc, v{tmp1}, v{tmp1}")
    e("s_cmp_eq_u64 vcc, 0")
    e(f"s_cbranch_scc1 {okl}")
    e(f"v_max_u32 v{tmp1}, v{regs[0]}, v{regs[1]}")
    rest = regs[2:]
    for i in range(0, len(rest)-1, 2):
        e(f"v_max3_u32 v{tmp1}, v{tmp1}, v{rest[i]}, v{rest[i+1]}")
    if len(rest) % 2: e(f"v_max_u32 v{tmp1}, v{tmp1}, v{rest[-1]}")
    e(f"v_cmp_eq_u32 vcc, -1, v{tmp1}")
    e("s_cmp_eq_u64 vcc, 0")
    e(f"s_cbranch_scc1 {okl}")
    e(f"s_add_u32 {cnt}, {cnt}, 1")
    e(f"s_cmp_lt_u32 {cnt}, {SPIN_LIMIT}")
    e(f"s_cbranch_scc1 {retry_l}")

e(f"""; Fused decode kernel: LN -> (GQA sliding-window attention + Wo) + (GELU FFN) + residual
; @launch grid=(256,1,1) block=({NWAVES*64},1,1) lds={LDS_BYTES}
.amdgcn_target "amdgcn-amd-amdhsa--gfx950"
.text
.globl {NAME}_kernel
.p2align 8
.type {NAME}_kernel,@function
{NAME}_kernel:""")
e("s_cmp_ge_u32 s2, 256")
e("s_cbranch_scc1 L_end")
e("v_lshrrev_b32 v1, 6, v0")
e("v_and_b32 v0, 63, v0")
e(f"v_readfirstlane_b32 {sWV}, v1")
if WINL:
    e(f"s_cmp_lg_u32 {sWV}, 10")
    e("s_cbranch_scc1 L_noinit")
    if EARLYPF:
        e("s_getpc_b64 s[86:87]")
        lab("L_pc_here")
        e(f"s_sub_u32 s86, s86, L_pc_here-{NAME}_kernel")
        e("s_subb_u32 s87, s87, 0")
        e(f"s_lshr_b32 {sT0}, s2, 3")
        for _ in range(2):
            e(f"s_cmp_ge_u32 {sT0}, {CODE_CHUNKS}")
            e(f"s_cselect_b32 {sT1}, {CODE_CHUNKS}, 0")
            e(f"s_sub_u32 {sT0}, {sT0}, {sT1}")
        e(f"s_lshl_b32 {sT0}, {sT0}, 10")
        e("v_lshlrev_b32 v2, 4, v0")
        e(f"v_add_u32 v2, {sT0}, v2")
        e("global_load_dwordx4 v[16:19], v2, s[86:87]")
    e("v_lshlrev_b32 v2, 2, v0")
    e("v_mov_b32 v3, 0")
    e("ds_write_b32 v2, v3")
    e("s_waitcnt lgkmcnt(0)")
    lab("L_noinit")
else:
    e(f"s_cmp_eq_u32 {sWV}, 10")
    e("s_cbranch_scc1 L_winit")
def kernarg_loads():
    e("s_load_dwordx16 s[16:31], s[0:1], 0")
    e("s_load_dwordx8 s[32:39], s[0:1], 64")
    e("s_load_dwordx2 s[40:41], s[0:1], 96")
kernarg_loads()
stamp(0)
e("s_barrier")
zero_stamps()
e(f"s_and_b32 {sH}, s2, 7")
e(f"s_lshr_b32 {sJ}, s2, 3")
e(f"s_mov_b32 {sSELLO}, 0x05040100")
e(f"s_mov_b32 {sSELHI}, 0x07060302")
e(f"s_cmp_lg_u32 {sWV}, 0")
e("s_cbranch_scc1 L_others")

lab("L_roleQ")
e("s_setprio 3")
XD = 8; FX = 12; TD = 24; TB = 88; TDA = 120; TA = 152
e("v_mov_b32 v3, 0")
e("v_lshlrev_b32 v4, 4, v0")
e("v_lshrrev_b32 v5, 3, v0")
e("v_min_u32 v6, 5, v5")
e("v_and_b32 v7, 7, v0")
e("v_lshlrev_b32 v7, 4, v7")
e("v_lshl_add_u32 v5, v5, 16, v7")
e("v_lshl_add_u32 v6, v6, 16, v7")
e(f"s_lshr_b32 {sU4}, {sJ}, 3")
e(f"s_mul_i32 {sU2}, {sU4}, {112*8192}")
e(f"s_lshl_b32 {sT1}, {sH}, 10")
e(f"s_add_u32 {sU2}, {sU2}, {sT1}")
e(f"s_and_b32 {sT1}, {sJ}, 7")
e(f"s_lshl_b32 {sT1}, {sT1}, 7")
e(f"s_add_u32 {sU2}, {sU2}, {sT1}")
e("s_waitcnt lgkmcnt(0)")
mk_srd(SRD_A, pX, 896)
mk_srd(SRD_B, pWQ, 448*8192)
e(f"buffer_load_dwordx4 v[{XD}:{XD+3}], v4, {srd(SRD_A)}, 0 offen")
for s in range(2):
    for r in range(8):
        q = TD+32*s+4*r
        e(f"s_add_u32 {sT1}, {sU2}, {(64*s+r)*8192}")
        e(f"buffer_load_dwordx4 v[{q}:{q+3}], v{5+s}, {srd(SRD_B)}, {sT1} offen nt")
e("v_mov_b32 v2, 1")
lds_signal(F_QLD, 3, 2)
e(f"s_load_dword {sTAG}, s[{pWS}:{pWS+1}], 0")
mk_srd(SRD_WS, pWS, WS_SIZE)
stamp(1)
e(f"s_getreg_b32 {sU0}, hwreg(HW_REG_XCC_ID, 0, 3)")
e("s_waitcnt vmcnt(16)")
stamp(2)
for k in range(4):
    e(f"v_lshlrev_b32 v{FX+2*k}, 16, v{XD+k}")
    e(f"v_and_b32 v{FX+2*k+1}, 0xffff0000, v{XD+k}")
e(f"v_add_f32 v2, v{FX}, v{FX+1}")
for k in range(2, 8):
    e(f"v_add_f32 v2, v2, v{FX+k}")
allreduce("v_add_f32", 2, 3)
e(f"v_mul_f32 v2, {f2h(1.0/448)}, v2")
e(f"v_sub_f32 v6, v{FX}, v2")
e("v_mul_f32 v7, v6, v6")
for k in range(1, 8):
    e(f"v_sub_f32 v6, v{FX+k}, v2")
    e("v_fmac_f32 v7, v6, v6")
e("v_cmp_gt_u32 vcc, 56, v0")
e("s_nop 1")
e("v_cndmask_b32 v7, 0, v7, vcc")
allreduce("v_add_f32", 7, 3)
e(f"v_mul_f32 v7, {f2h(1.0/448)}, v7")
bf16r(2, 2)
bf16r(7, 7)
e("v_add_f32 v7, 0x3727c5ac, v7")
bf16r(7, 7)
e("v_sqrt_f32 v7, v7")
e("s_nop 0")
bf16r(7, 7)
e("v_rcp_f32 v7, v7")
for k in range(4):
    e(f"v_sub_f32 v{FX+2*k}, v{FX+2*k}, v2")
    e(f"v_sub_f32 v{FX+2*k+1}, v{FX+2*k+1}, v2")
    e(f"v_cvt_pk_bf16_f32 v6, v{FX+2*k}, v{FX+2*k+1}")
    e(f"v_lshlrev_b32 v{FX+2*k}, 16, v6")
    e(f"v_and_b32 v{FX+2*k+1}, 0xffff0000, v6")
    e(f"v_mul_f32 v{FX+2*k}, v{FX+2*k}, v7")
    e(f"v_mul_f32 v{FX+2*k+1}, v{FX+2*k+1}, v7")
    e(f"v_cvt_pk_bf16_f32 v{XD+k}, v{FX+2*k}, v{FX+2*k+1}")
    e(f"v_cndmask_b32 v{XD+k}, 0, v{XD+k}, vcc")
e(f"ds_write_b128 v4, v[{XD}:{XD+3}] offset:{L_XN}")
e("v_mov_b32 v3, 0")
e("v_mov_b32 v6, 1")
lds_signal(F_XN, 3, 6)
e("v_bfe_u32 v2, v0, 1, 1")
e("v_lshrrev_b32 v7, 4, v0")
e("v_lshl_add_u32 v2, v7, 1, v2")
e("v_lshlrev_b32 v2, 4, v2")
e(f"s_mul_i32 {sT0}, {sU4}, 224")
e(f"v_add_u32 v2, {sT0}, v2")
e(f"ds_read_b128 v[{TA}:{TA+3}], v2 offset:{L_XN}")
e(f"ds_read_b128 v[{TA+4}:{TA+7}], v2 offset:{L_XN+128}")
e("v_cmp_gt_u32 vcc, 48, v0")
e("s_waitcnt lgkmcnt(0)")
for k in range(4):
    e(f"v_cndmask_b32 v{TA+4+k}, 0, v{TA+4+k}, vcc")
stamp(3)
e("s_waitcnt vmcnt(8)")
if not WQAF:
    e("v_mov_b32 v6, 1")
    lds_signal(F_WQA, 3, 6)
transpose_set(TD, TB)
e("s_nop 1")
mfma_set(TDA, TA, TB, True)
transpose_set(TD+32, TB, waits=[6, 4, 2, 0])
e("s_nop 1")
mfma_set(TDA, TA+4, TB, False)
mk_tag()
e(f"s_or_b32 {sU1}, {sTAG}, {sU0}")
e(f"v_mov_b32 v9, {sU1}")
e(f"s_mul_i32 {sT0}, {sH}, 12288")
e(f"s_add_u32 {sU3}, {sT0}, {W_QMB}")
e(f"s_mul_i32 {sT1}, {sJ}, 384")
e(f"s_add_u32 {sU2}, {sU3}, {sT1}")
G = 12
tile_out_granules(TDA, G, 9)
publish_granules(G, 4, sU2, False)
stamp(4)
e("v_lshrrev_b32 v2, 3, v0")
e("v_mul_u32_u24 v2, 384, v2")
e("v_and_b32 v7, 7, v0")
e("v_lshl_add_u32 v2, v7, 4, v2")
e(f"v_mov_b32 v10, {sTAG}")
e(f"v_mov_b32 v11, {sU1}")
e(f"s_mov_b32 {sU5}, 0")
e(f"s_mov_b32 {sU0}, 0")
GD = 24
lds_wait(F_KHALF, 4, 3, 7)
stamp(5)
lab("L_qpoll")
e(f"s_cmp_ge_u32 {sU5}, {NTRY}")
e(f"s_cselect_b32 {sT2}, {sU5}, 0")
e(f"s_and_b32 {sT2}, {sT2}, 1")
e(f"s_mul_i32 {sT2}, {sT2}, {W_BOFF}")
e(f"s_add_u32 {sT0}, {sT2}, {sU3}")
for rq in range(4):
    e(f"s_add_u32 {sT1}, {sT0}, {3072*rq}")
    for k in range(3):
        r = GD+12*rq+4*k
        e(f"buffer_load_dwordx4 v[{r}:{r+3}], v2, {srd(SRD_WS)}, {sT1} offen offset:{128*k} sc1")
e(f"s_cmp_lg_u32 {sU5}, 0")
e("s_cbranch_scc1 L_q_nosig")
e("v_mov_b32 v6, 1")
lds_signal(F_QISS, 3, 6)
lab("L_q_nosig")
e("s_waitcnt vmcnt(0)")
e(f"v_xor_b32 v6, v{GD+3}, v10")
for i in range(1, 12):
    e(f"v_xor_b32 v7, v{GD+4*i+3}, v10")
    e("v_or_b32 v6, v6, v7")
e("v_cmp_lt_u32 vcc, 7, v6")
e("s_cmp_eq_u64 vcc, 0")
e("s_cbranch_scc1 L_qgot")
e(f"s_add_u32 {sU5}, {sU5}, 1")
e(f"s_cmp_lg_u32 {sU5}, {NTRY}")
e("s_cbranch_scc1 L_q_nob")
def q_pub_b():
    publish_granules(G, 4, sU2, True)
    e(f"s_mov_b32 {sU0}, 1")
q_pub_b()
lab("L_q_nob")
e(f"s_cmp_lt_u32 {sU5}, {SPIN_LIMIT}")
e("s_cbranch_scc1 L_qpoll")
lab("L_qgot")
e(f"v_xor_b32 v5, v{GD+3}, v11")
for rq in range(1, 4):
    e(f"v_xor_b32 v6, v{GD+12*rq+3}, v11")
    e("v_or_b32 v5, v5, v6")
for i in range(8):
    p = GPOS[i]
    e(f"v_add_f32 v{GD+p}, v{GD+p}, v{GD+12+p}")
    e(f"v_add_f32 v{GD+24+p}, v{GD+24+p}, v{GD+36+p}")
for i in range(8):
    p = GPOS[i]
    e(f"v_add_f32 v{GD+p}, v{GD+p}, v{GD+24+p}")
for k in range(4):
    e(f"v_cvt_pk_bf16_f32 v{GD+12+k}, v{GD+GPOS[2*k]}, v{GD+GPOS[2*k+1]}")
e(f"ds_write_b128 v4, v[{GD+12}:{GD+15}] offset:{L_Q}")
e("v_cmp_ne_u32 vcc, 0, v5")
e("s_cmp_eq_u64 vcc, 0")
e(f"s_cselect_b32 {sT0}, 2, 1")
e(f"v_mov_b32 v6, {sT0}")
e("s_mov_b64 exec, 1")
e(f"ds_write_b32 v3, v6 offset:{F_QRDY}")
e("s_mov_b64 exec, -1")
stamp(6)
e(f"s_cmp_lg_u32 {sU0}, 0")
e("s_cbranch_scc1 L_q_bdone2")
q_pub_b()
lab("L_q_bdone2")
ROLE[0]="Q"
stamps_out(7, sU5)
e("s_endpgm")

lab("L_others")
if WINL:
    e(f"s_cmp_eq_u32 {sWV}, 10")
    e("s_cbranch_scc1 L_roleW")
e(f"s_cmp_eq_u32 {sWV}, 9")
e("s_cbranch_scc1 L_roleF")
common_scalars()
e(f"s_cmp_ge_u32 {sWV}, 5")
e("s_cbranch_scc1 L_roleV")
lab("L_roleK")
KD = 16; QF = 80; KA = 96
e(f"s_sub_u32 {sU0}, {sWV}, 1")
e(f"s_and_b32 {sT0}, {sX7}, 7")
e("v_and_b32 v2, 7, v0")
e(f"v_xor_b32 v2, {sT0}, v2")
e("v_lshlrev_b32 v2, 9, v2")
e("v_lshrrev_b32 v3, 3, v0")
e("v_lshl_or_b32 v2, v3, 4, v2")
e("v_mov_b32 v4, 0")
e("v_mov_b32 v5, 1")
e("v_and_b32 v6, 1, v0")
e("v_lshlrev_b32 v6, 9, v6")
e("v_bfe_u32 v7, v0, 1, 1")
e("v_lshrrev_b32 v8, 4, v0")
e("v_lshl_add_u32 v7, v8, 1, v7")
e("v_lshl_add_u32 v6, v7, 4, v6")
e("v_bfe_u32 v9, v0, 1, 1")
e("v_lshlrev_b32 v9, 10, v9")
e("v_and_b32 v10, 1, v0")
e("v_lshl_or_b32 v9, v10, 9, v9")
e("v_bfe_u32 v10, v0, 4, 1")
e("v_lshl_or_b32 v9, v10, 4, v9")
e(f"s_lshl_b32 {sT0}, {sU0}, 7")
e(f"v_add_u32 v9, {sT0}, v9")
e(f"s_and_b32 {sU1}, {sX7}, 0x78")
e(f"s_lshl_b32 {sU2}, {sU0}, 5")
kv_off()
e(f"s_mov_b32 {sU3}, {sT0}")
e("s_waitcnt lgkmcnt(0)")
mk_srd(SRD_A, pK, 65536, add_lo=sU3)
mk_srd(SRD_WS, pWS, WS_SIZE)
stamp(1)
if PRESO:
    for rgp in range(4):
        e(f"s_add_u32 {sT2}, {sU2}, {8*rgp}")
        e(f"s_xor_b32 {sT2}, {sT2}, {sU1}")
        e(f"s_lshl_b32 {sT2}, {sT2}, 9")
        for u in range(4):
            e(f"s_xor_b32 {sT1}, {sXS}, {u}")
            e(f"s_lshl_b32 {sT1}, {sT1}, 7")
            e(f"s_or_b32 s{16+4*rgp+u}, {sT1}, {sT2}")
    lds_wait(F_WQA, 1, 4, 11)
    if SHARE: lab("L_issue16")
    for i in range(16):
        r = KD+4*i
        if i >= KWIN: e(f"s_waitcnt vmcnt({KWIN-1})")
        e(f"buffer_load_dwordx4 v[{r}:{r+3}], v2, {srd(SRD_A)}, s{16+i} offen nt")
    if SHARE:
        e(f"s_cmp_ge_u32 {sWV}, 9")
        e("s_cbranch_scc1 L_w_issued")
        e(f"s_cmp_ge_u32 {sWV}, 5")
        e("s_cbranch_scc1 L_v_issued")
else:
    for rgp in range(4):
        e(f"s_add_u32 {sT2}, {sU2}, {8*rgp}")
        e(f"s_xor_b32 {sT2}, {sT2}, {sU1}")
        e(f"s_lshl_b32 {sT2}, {sT2}, 9")
        for u in range(4):
            e(f"s_xor_b32 {sT1}, {sXS}, {u}")
            e(f"s_lshl_b32 {sT1}, {sT1}, 7")
            e(f"s_or_b32 {sT1}, {sT1}, {sT2}")
            r = KD+16*rgp+4*u
            if 4*rgp+u == KEARLY:
                e(f"s_mov_b32 {sT3}, {sT1}")
                lds_wait(F_WQA, 1, 4, 11)
                e(f"s_mov_b32 {sT1}, {sT3}")
            if 4*rgp+u >= KWIN: e(f"s_waitcnt vmcnt({KWIN-1})")
            e(f"buffer_load_dwordx4 v[{r}:{r+3}], v2, {srd(SRD_A)}, {sT1} offen nt")
lds_signal(F_KISS, 4, 5)
e(f"s_load_dword {sTAG}, s[{pWS}:{pWS+1}], 0")
e(f"s_waitcnt vmcnt({KTRIG})")
lds_signal(F_KHALF, 4, 5)
stamp(2)
if PROFILE:
    e("s_waitcnt vmcnt(0)")
    e(f"s_memrealtime s[{sSTAMP+2}:{sSTAMP+3}]")
lds_wait(F_QRDY, 1, 4, 11)
e(f"s_mov_b32 {sFAST}, {sT0}")
for u in range(4):
    e(f"s_xor_b32 {sT1}, {sXS}, {u}")
    e(f"s_lshl_b32 {sT1}, {sT1}, 7")
    e(f"s_add_u32 {sT1}, {sT1}, {L_Q}")
    e(f"v_add_u32 v11, {sT1}, v6")
    e(f"ds_read_b128 v[{QF+4*u}:{QF+4*u+3}], v11")
e("s_waitcnt vmcnt(0) lgkmcnt(0)")
for u in range(4):
    for rgp in range(4):
        r = KD+16*rgp+4*u
        c = "0" if u == 0 else f"v[{KA+4*rgp}:{KA+4*rgp+3}]"
        e(f"v_mfma_f32_16x16x32_bf16 v[{KA+4*rgp}:{KA+4*rgp+3}], v[{r}:{r+3}], v[{QF+4*u}:{QF+4*u+3}], {c}")
e("s_nop 7")
e("s_mov_b32 exec_lo, 0x00030003")
e("s_mov_b32 exec_hi, 0x000C000C")
for rgp in range(4):
    e(f"ds_write_b128 v9, v[{KA+4*rgp}:{KA+4*rgp+3}] offset:{L_SC+32*rgp}")
e("s_mov_b64 exec, -1")
lds_signal(F_SDONE, 4, 5)
stamp(3)
def reduce32(op, a, t):
    for r in (8, 4, 2, 1):
        e("s_nop 1")
        e(f"{op}_dpp v{a}, v{a}, v{a} row_ror:{r} row_mask:0xf bank_mask:0xf")
    e(f"v_mov_b32 v{t}, v{a}")
    e("s_nop 1")
    e(f"v_permlane16_swap_b32 v{a}, v{t}")
    e("s_nop 1")
    e(f"{op} v{a}, v{a}, v{t}")
e(f"s_cmp_lg_u32 {sU0}, 0")
e("s_cbranch_scc1 L_k_nosoft")
e("v_lshrrev_b32 v6, 5, v0")
e("v_and_b32 v7, 31, v0")
e("v_lshlrev_b32 v8, 9, v6")
e("v_lshl_add_u32 v8, v7, 4, v8")
e("v_lshlrev_b32 v9, 8, v6")
e("v_lshl_add_u32 v16, v7, 3, v9")
C_EXP = 0.0625*1.4426950408889634
e(f"s_mov_b32 {sT2}, {f2h(C_EXP)}")
e(f"s_lshl_b32 {sT1}, {sH}, 9")
e(f"s_lshl_b32 {sT3}, {sJ}, 3")
e(f"s_add_u32 {sT1}, {sT1}, {sT3}")
e(f"s_add_u32 {sU1}, {sT1}, {W_ML}")
lds_wait(F_SDONE, 4, 4, 11, sleep=0)
e(f"ds_read_b128 v[20:23], v8 offset:{L_SC}")
e(f"ds_read_b128 v[24:27], v8 offset:{L_SC+1024}")
e("s_waitcnt lgkmcnt(0)")
for k in range(4): e(f"v_add_f32 v{20+k}, v{20+k}, v{24+k}")
e("v_cvt_pk_bf16_f32 v24, v20, v21")
e("v_cvt_pk_bf16_f32 v25, v22, v23")
e("v_lshlrev_b32 v20, 16, v24")
e("v_and_b32 v21, 0xffff0000, v24")
e("v_lshlrev_b32 v22, 16, v25")
e("v_and_b32 v23, 0xffff0000, v25")
e("v_max3_f32 v10, v20, v21, v22")
e("v_max_f32 v10, v10, v23")
reduce32("v_max_f32", 10, 11)
for k in range(4): e(f"v_sub_f32 v{20+k}, v{20+k}, v10")
for k in range(4): e(f"v_mul_f32 v{20+k}, {sT2}, v{20+k}")
for k in range(4): e(f"v_exp_f32 v{20+k}, v{20+k}")
e("s_nop 0")
e("v_cvt_pk_bf16_f32 v24, v20, v21")
e("v_cvt_pk_bf16_f32 v25, v22, v23")
e(f"ds_write_b64 v16, v[24:25] offset:{L_P}")
lds_signal(F_PRDY, 4, 5)
e("v_add_f32 v11, v20, v21")
e("v_add_f32 v12, v22, v23")
e("v_add_f32 v11, v11, v12")
reduce32("v_add_f32", 11, 12)
e(f"v_mul_f32 v10, {sT2}, v10")
e("s_mov_b32 exec_lo, 1")
e("s_mov_b32 exec_hi, 1")
e(f"s_cmp_eq_u32 {sFAST}, 2")
e("s_cbranch_scc1 L_k_mlfast")
e(f"buffer_store_dwordx2 v[10:11], v9, {srd(SRD_WS)}, {sU1} offen sc1")
e("s_branch L_k_mldone")
lab("L_k_mlfast")
e(f"buffer_store_dwordx2 v[10:11], v9, {srd(SRD_WS)}, {sU1} offen")
lab("L_k_mldone")
e("s_mov_b64 exec, -1")
if PROFILE: e(f"s_memrealtime s[{sSTAMP+4}:{sSTAMP+5}]")
lab("L_k_nosoft")
e(f"s_cmp_ge_u32 {sJ}, 28")
e("s_cbranch_scc1 L_k_end")
e(f"s_and_b32 {sU1}, {sJ}, 3")
mk_tag()
e(f"v_mov_b32 v12, {sTAG}")
e("v_and_b32 v13, 31, v0")
e("v_lshlrev_b32 v13, 2, v13")
e(f"s_lshl_b32 {sT0}, {sH}, 7")
e(f"s_add_u32 {sU2}, {sT0}, {W_READY}")
e("v_lshlrev_b32 v14, 1, v13")
e(f"s_lshr_b32 {sT0}, {sU1}, 1")
e(f"s_lshl_b32 {sT1}, {sH}, 1")
e(f"s_add_u32 {sT0}, {sT0}, {sT1}")
e(f"s_lshl_b32 {sT0}, {sT0}, 8")
e(f"s_add_u32 {sU4}, {sT0}, {W_ML}")
e("v_lshrrev_b32 v15, 3, v0")
e("v_lshlrev_b32 v16, 11, v15")
e("v_and_b32 v17, 7, v0")
e("v_lshl_add_u32 v16, v17, 4, v16")
e(f"s_lshl_b32 {sT0}, {sH}, 16")
e(f"s_lshl_b32 {sT1}, {sU1}, 9")
e(f"s_add_u32 {sT0}, {sT0}, {sT1}")
e(f"s_lshl_b32 {sT1}, {sU0}, 7")
e(f"s_add_u32 {sT0}, {sT0}, {sT1}")
e(f"s_add_u32 {sU5}, {sT0}, {W_OP}")
e("v_lshlrev_b32 v15, 2, v15")
e("v_lshlrev_b32 v18, 2, v17")
e("v_bfe_u32 v19, v0, 5, 1")
e("v_lshl_add_u32 v18, v19, 1, v18")
e("v_bfe_u32 v19, v0, 4, 1")
e("v_add_u32 v18, v18, v19")
e("v_lshlrev_b32 v18, 1, v18")
e(f"s_lshl_b32 {sT0}, {sU0}, 6")
e(f"v_add_u32 v18, {sT0}, v18")
e(f"s_mov_b32 {sCNT}, 0")
lab("L_k_rdy")
e(f"buffer_load_dword v20, v13, {srd(SRD_WS)}, {sU2} offen sc1")
e("s_waitcnt vmcnt(0)")
e("v_xor_b32 v20, v20, v12")
e("v_cmp_lt_u32 vcc, 7, v20")
e("s_cmp_eq_u64 vcc, 0")
e("s_cbranch_scc1 L_k_rdy_ok")
e("s_sleep 4")
e(f"s_add_u32 {sCNT}, {sCNT}, 1")
e(f"s_cmp_lt_u32 {sCNT}, {SPIN_LIMIT}")
e("s_cbranch_scc1 L_k_rdy")
lab("L_k_rdy_ok")
if OPIPE:
    if MLEARLY:
        lds_wait(F_PRDY, 1, 4, 11)
        e(f"s_sleep {MLD}")
    else:
        lds_wait(F_VISS, 4, 4, 11)
    e(f"s_mov_b32 {sCNT}, 0")
    e(f"buffer_load_dwordx2 v[20:21], v14, {srd(SRD_WS)}, {sU4} offen sc1")
    e("s_sleep 12")
    e(f"buffer_load_dwordx2 v[48:49], v14, {srd(SRD_WS)}, {sU4} offen sc1")
    lab("L_mlpoll")
    e("s_waitcnt vmcnt(1)")
    e("v_max_u32 v22, v20, v21")
    e("v_cmp_eq_u32 vcc, -1, v22")
    e("s_cmp_eq_u64 vcc, 0")
    e("s_cbranch_scc1 L_mlgot")
    e(f"buffer_load_dwordx2 v[20:21], v14, {srd(SRD_WS)}, {sU4} offen sc1")
    e("s_waitcnt vmcnt(1)")
    e("v_max_u32 v22, v48, v49")
    e("v_cmp_eq_u32 vcc, -1, v22")
    e("s_cmp_eq_u64 vcc, 0")
    e("s_cbranch_scc1 L_mlgot2")
    e(f"buffer_load_dwordx2 v[48:49], v14, {srd(SRD_WS)}, {sU4} offen sc1")
    e(f"s_add_u32 {sCNT}, {sCNT}, 1")
    e(f"s_cmp_lt_u32 {sCNT}, {SPIN_LIMIT}")
    e("s_cbranch_scc1 L_mlpoll")
    lab("L_mlgot2")
    e("s_waitcnt vmcnt(0)")
    e("v_mov_b32 v20, v48")
    e("v_mov_b32 v21, v49")
    lab("L_mlgot")
    e("s_waitcnt vmcnt(0)")
    stamp(4)
    e("v_mov_b32 v22, v20")
    reduce32("v_max_f32", 22, 23)
    e("v_sub_f32 v20, v20, v22")
    e("v_exp_f32 v20, v20")
    e("s_nop 0")
    e("v_mul_f32 v21, v20, v21")
    reduce32("v_add_f32", 21, 23)
    e("v_rcp_f32 v21, v21")
    e("s_nop 0")
    e("v_mul_f32 v20, v20, v21")
    for u in range(4):
        e(f"v_add_u32 v23, {32*u}, v15")
        e(f"ds_bpermute_b32 v{24+u}, v23, v20")
    lds_wait(F_VDONE, 4, 4, 11, sleep=0)
    e(f"s_mov_b32 {sCNT}, 0")
    OGS = [32, 48]
    def o_issue(bi):
        for u in range(4):
            e(f"s_add_u32 {sT1}, {sU5}, {8*2048*u}")
            e(f"buffer_load_dwordx4 v[{OGS[bi]+4*u}:{OGS[bi]+4*u+3}], v16, {srd(SRD_WS)}, {sT1} offen sc1")
    o_issue(0)
    e(f"s_sleep {OSL}")
    o_issue(1)
    lab("L_opoll")
    for bi in range(2):
        OG = OGS[bi]
        for u in range(4):
            e(f"s_waitcnt vmcnt({4+3-u})")
            for d in range(4):
                if u == 0: e(f"v_mul_f32 v{28+d}, v24, v{OG+d}")
                else: e(f"v_fmac_f32 v{28+d}, v{24+u}, v{OG+4*u+d}")
        e("v_add_f32 v22, v28, v29")
        e("v_add_f32 v22, v22, v30")
        e("v_add_f32 v22, v22, v31")
        e("v_cmp_u_f32 vcc, v22, v22")
        e("s_cmp_eq_u64 vcc, 0")
        e("s_cbranch_scc1 L_ogot")
        e(f"v_max_u32 v22, v{OG}, v{OG+1}")
        for i in range(2, 16, 2):
            e(f"v_max3_u32 v22, v22, v{OG+i}, v{OG+i+1}")
        e("v_cmp_eq_u32 vcc, -1, v22")
        e("s_cmp_eq_u64 vcc, 0")
        e("s_cbranch_scc1 L_ogot")
        o_issue(bi)
    e(f"s_add_u32 {sCNT}, {sCNT}, 1")
    e(f"s_cmp_lt_u32 {sCNT}, {SPIN_LIMIT}")
    e("s_cbranch_scc1 L_opoll")
else:
    lds_wait(F_VDONE, 4, 4, 11, sleep=0)
    e(f"s_mov_b32 {sCNT}, 0")
    OG = 32
    lab("L_opoll")
    e(f"buffer_load_dwordx2 v[20:21], v14, {srd(SRD_WS)}, {sU4} offen sc1")
    for u in range(4):
        e(f"s_add_u32 {sT1}, {sU5}, {8*2048*u}")
        e(f"buffer_load_dwordx4 v[{OG+4*u}:{OG+4*u+3}], v16, {srd(SRD_WS)}, {sT1} offen sc1")
    e("s_waitcnt vmcnt(4)")
    e("v_max_u32 v22, v20, v21")
    e("v_cmp_eq_u32 vcc, -1, v22")
    e("s_cmp_eq_u64 vcc, 0")
    e("s_cbranch_scc1 L_mlgot")
    e("s_waitcnt vmcnt(0)")
    e(f"s_add_u32 {sCNT}, {sCNT}, 1")
    e(f"s_cmp_lt_u32 {sCNT}, {SPIN_LIMIT}")
    e("s_cbranch_scc1 L_opoll")
    lab("L_mlgot")
    stamp(4)
    e("v_mov_b32 v22, v20")
    reduce32("v_max_f32", 22, 23)
    e("v_sub_f32 v20, v20, v22")
    e("v_exp_f32 v20, v20")
    e("s_nop 0")
    e("v_mul_f32 v21, v20, v21")
    reduce32("v_add_f32", 21, 23)
    e("v_rcp_f32 v21, v21")
    e("s_nop 0")
    e("v_mul_f32 v20, v20, v21")
    for u in range(4):
        e(f"v_add_u32 v23, {32*u}, v15")
        e(f"ds_bpermute_b32 v{24+u}, v23, v20")
    e("s_waitcnt vmcnt(0) lgkmcnt(0)")
    for u in range(4):
        for d in range(4):
            if u == 0: e(f"v_mul_f32 v{28+d}, v24, v{OG+d}")
            else: e(f"v_fmac_f32 v{28+d}, v{24+u}, v{OG+4*u+d}")
    nan_or_sentinel_check([28, 29, 30, 31], list(range(OG, OG+16)), "L_ogot", "L_opoll", sCNT, 22, 23)
lab("L_ogot")
stamp(5)
e("v_permlane32_swap_b32 v28, v30")
e("v_permlane32_swap_b32 v29, v31")
e("s_nop 1")
e("v_add_f32 v28, v28, v30")
e("v_add_f32 v29, v29, v31")
e("s_nop 1")
e("v_permlane16_swap_b32 v28, v29")
e("s_nop 1")
e("v_add_f32 v28, v28, v29")
e("s_nop 1")
e("v_add_f32_dpp v28, v28, v28 row_ror:8 row_mask:0xf bank_mask:0xf")
e("v_cvt_pk_bf16_f32 v28, v28, v28")
e(f"ds_write_b16 v18, v28 offset:{L_OL}")
lds_signal(F_ORDY, 4, 5)
stamp(6)
lab("L_k_end")
ROLE[0]="K"
stamps_out(7, sCNT)
e("s_endpgm")

lab("L_roleV")
VD = 16; BF = 80; DA = 112; AF = 144; SCR = 80
e(f"s_sub_u32 {sU0}, {sWV}, 5")
e(f"s_xor_b32 {sU3}, {sU0}, {sXW}")
e(f"s_and_b32 {sT0}, {sX7}, 0x38")
e("v_and_b32 v2, 0x38, v0")
e(f"v_xor_b32 v2, {sT0}, v2")
e("v_lshlrev_b32 v2, 9, v2")
e("v_and_b32 v3, 7, v0")
e("v_lshl_or_b32 v2, v3, 4, v2")
e(f"s_lshl_b32 {sT0}, {sU3}, 7")
e(f"v_add_u32 v2, {sT0}, v2")
e("v_mov_b32 v4, 0")
e("v_mov_b32 v5, 1")
e("v_and_b32 v6, 1, v0")
e("v_lshlrev_b32 v6, 9, v6")
e("v_bfe_u32 v7, v0, 1, 1")
e("v_lshrrev_b32 v8, 4, v0")
e("v_lshl_add_u32 v7, v8, 1, v7")
e("v_lshl_add_u32 v6, v7, 5, v6")
e("v_and_b32 v9, 7, v0")
e("v_lshlrev_b32 v9, 5, v9")
e(f"s_lshl_b32 {sT0}, {sU3}, 8")
e(f"v_add_u32 v9, {sT0}, v9")
e(f"s_lshl_b32 {sT0}, {sH}, 5")
e(f"s_add_u32 {sT0}, {sT0}, {sJ}")
e(f"s_lshl_b32 {sT0}, {sT0}, 11")
e(f"s_add_u32 {sU2}, {sT0}, {W_OP}")
e(f"s_and_b32 {sU1}, {sX7}, 0x47")
kv_off()
e(f"s_mov_b32 {sU4}, {sT0}")
e("s_waitcnt lgkmcnt(0)")
mk_srd(SRD_A, pV, 65536, add_lo=sU4)
mk_srd(SRD_WS, pWS, WS_SIZE)
e(f"s_load_dword {sTAG}, s[{pWS}:{pWS+1}], 0")
e(f"s_lshl_b32 {sT0}, {sH}, 2")
e(f"s_add_u32 {sT0}, {sT0}, {sU3}")
e(f"s_lshl_b32 {sT0}, {sT0}, 7")
e(f"s_lshl_b32 {sT1}, {sJ}, 2")
e(f"s_add_u32 {sT0}, {sT0}, {sT1}")
e(f"s_add_u32 {sU5}, {sT0}, {W_OF}")
if PRESO:
    for s in range(2):
        for r in range(8):
            e(f"s_xor_b32 {sT1}, {sU1}, {r | (s << 6)}")
            e(f"s_lshl_b32 s{16+8*s+r}, {sT1}, 9")
    lds_wait(F_QISS, 1, 4, 11)
    stamp(1)
    if SHARE:
        assert KWIN == VWIN
        e("s_branch L_issue16")
        lab("L_v_issued")
    else:
        for i in range(16):
            q = VD+4*i
            if i >= VWIN: e(f"s_waitcnt vmcnt({VWIN-1})")
            e(f"buffer_load_dwordx4 v[{q}:{q+3}], v2, {srd(SRD_A)}, s{16+i} offen nt")
else:
    lds_wait(F_QISS, 1, 4, 11)
    stamp(1)
    for s in range(2):
        if s == 1 and VGATE: lds_wait(F_QRDY, 1, 4, 11)
        for r in range(8):
            e(f"s_xor_b32 {sT1}, {sU1}, {r | (s << 6)}")
            e(f"s_lshl_b32 {sT1}, {sT1}, 9")
            q = VD+32*s+4*r
            if 8*s+r >= VWIN: e(f"s_waitcnt vmcnt({VWIN-1})")
            e(f"buffer_load_dwordx4 v[{q}:{q+3}], v2, {srd(SRD_A)}, {sT1} offen nt")
lds_signal(F_VISS, 4, 5)
stamp(2)
BF1 = 112; DA = 16
mk_tag()
e(f"v_mov_b32 v13, {sTAG}")
e("v_and_b32 v10, 1, v0")
e("v_lshlrev_b32 v10, 8, v10")
e("v_bfe_u32 v11, v0, 1, 1")
e("v_lshrrev_b32 v14, 4, v0")
e("v_lshl_add_u32 v11, v14, 1, v11")
e("v_lshl_add_u32 v10, v11, 4, v10")
e("s_waitcnt vmcnt(8)")
transpose_set(VD, BF)
e(f"ds_read_b32 v11, v4 offset:{F_PRDY}")
e(f"ds_read_b32 v12, v4 offset:{F_QRDY}")
e(f"ds_read_b128 v[{AF}:{AF+3}], v10 offset:{L_P}")
e(f"ds_read_b128 v[{AF+4}:{AF+7}], v10 offset:{L_P+128}")
e("s_waitcnt lgkmcnt(0)")
e(f"v_readfirstlane_b32 {sU1}, v11")
e(f"v_readfirstlane_b32 {sFAST}, v12")
e(f"s_cmp_eq_u32 {sU1}, 0")
e("s_cbranch_scc1 L_v_late")
stamp(3)
mfma_set(DA, AF, BF, True)
transpose_set(VD+32, BF1, waits=[6, 4, 2, 0])
stamp(5)
e("s_branch L_v_m1")
lab("L_v_late")
transpose_set(VD+32, BF1, waits=[6, 4, 2, 0])
lds_wait(F_PRDY, 1, 4, 11, sleep=0)
e(f"ds_read_b32 v12, v4 offset:{F_QRDY}")
e(f"ds_read_b128 v[{AF}:{AF+3}], v10 offset:{L_P}")
e(f"ds_read_b128 v[{AF+4}:{AF+7}], v10 offset:{L_P+128}")
e("s_waitcnt lgkmcnt(0)")
e(f"v_readfirstlane_b32 {sFAST}, v12")
stamp(3)
mfma_set(DA, AF, BF, True)
stamp(5)
lab("L_v_m1")
e("s_nop 1")
mfma_set(DA, AF+4, BF1, False)
e("s_nop 3")
OO = 80
for rp in range(8):
    if rp == 7: e("s_nop 3")
    for hd in range(2):
        e(f"v_add_f32_dpp v{OO+8*hd+rp}, v{DA+4*rp+2+hd}, v{DA+4*rp+hd} row_shl:8 row_mask:0xf bank_mask:0xf")
e("s_mov_b64 exec, 0xff")
e(f"s_cmp_eq_u32 {sFAST}, 2")
e("s_cbranch_scc1 L_v_ofast")
for hd in range(2):
    for q in range(2):
        e(f"buffer_store_dwordx4 v[{OO+8*hd+4*q}:{OO+8*hd+4*q+3}], v9, {srd(SRD_WS)}, {sU2} offen offset:{1024*hd+16*q} sc1")
e("s_branch L_v_odone")
lab("L_v_ofast")
for hd in range(2):
    for q in range(2):
        e(f"buffer_store_dwordx4 v[{OO+8*hd+4*q}:{OO+8*hd+4*q+3}], v9, {srd(SRD_WS)}, {sU2} offen offset:{1024*hd+16*q}")
lab("L_v_odone")
if OHINT:
    e("s_mov_b64 exec, 1")
    e(f"s_cmp_eq_u32 {sFAST}, 2")
    e("s_cbranch_scc1 L_v_ffast")
    e(f"buffer_store_dword v13, v4, {srd(SRD_WS)}, {sU5} offen sc1")
    e("s_branch L_v_fdone")
    lab("L_v_ffast")
    e(f"buffer_store_dword v13, v4, {srd(SRD_WS)}, {sU5} offen")
    lab("L_v_fdone")
e("s_mov_b64 exec, -1")
lds_signal(F_VDONE, 4, 5)
stamp(6)
ROLE[0]="V"
stamps_out(7)
e("s_endpgm")

lab("L_roleF")
FD = 16; FB = 48; FDA = 80; FA_ = 112; FG = 116; F2D = 128
e(f"s_lshr_b32 {sT0}, {sJ}, 3")
e(f"s_lshl_b32 {sT0}, {sT0}, 3")
e(f"s_add_u32 {sU0}, {sT0}, {sH}")
e(f"s_and_b32 {sU1}, {sJ}, 7")
e(f"s_mul_i32 {sT0}, {sJ}, 37")
e(f"s_lshr_b32 {sT0}, {sT0}, 8")
e(f"s_mul_i32 {sT1}, {sT0}, 7")
e(f"s_sub_u32 {sU3}, {sJ}, {sT1}")
e(f"s_lshl_b32 {sT0}, {sT0}, 3")
e(f"s_add_u32 {sU2}, {sT0}, {sH}")
e("v_mov_b32 v4, 0")
e("v_mov_b32 v5, 1")
e("v_lshlrev_b32 v6, 4, v0")
e("v_lshrrev_b32 v2, 3, v0")
e("v_min_u32 v3, 6, v2")
e("v_mul_u32_u24 v3, 28672, v3")
e("v_and_b32 v7, 7, v0")
e("v_lshl_add_u32 v3, v7, 4, v3")
e("v_mul_u32_u24 v2, 7168, v2")
e("v_lshl_add_u32 v2, v7, 4, v2")
e("s_waitcnt lgkmcnt(0)")
mk_srd(SRD_WS, pWS, WS_SIZE)
mk_srd(SRD_A, pW1, 448*3584)
mk_srd(SRD_B, pW2, 1792*896)
mk_srd(SRD_C, pB1, 3584)
e(f"s_add_u32 {sT0}, {sU2}, 32")
e(f"s_lshl_b32 {sT0}, {sT0}, 11")
e(f"s_lshl_b32 {sT1}, {sU3}, 8")
e(f"s_add_u32 {sT0}, {sT0}, {sT1}")
e(f"s_add_u32 {sU4}, {sT0}, {W_AP}")
e("s_setprio 1")
e(f"s_mov_b32 {sU5}, 0")
e(f"s_cmp_ge_u32 {sU0}, 28")
e("s_cbranch_scc1 L_f_now1")
e(f"s_mul_i32 {sT0}, {sU1}, {56*3584}")
e(f"s_lshl_b32 {sT1}, {sU0}, 7")
e(f"s_add_u32 {sT0}, {sT0}, {sT1}")
for r in range(8):
    e(f"s_add_u32 {sT1}, {sT0}, {r*3584}")
    e(f"buffer_load_dwordx4 v[{FD+4*r}:{FD+4*r+3}], v3, {srd(SRD_A)}, {sT1} offen nt")
lab("L_f_now1")
e(f"s_load_dword {sTAG}, s[{pWS}:{pWS+1}], 0")
if WQAF:
    e(f"s_cmp_lt_u32 {sU0}, 28")
    e("s_cbranch_scc1 L_f_wq1")
    e(f"buffer_load_dword v12, v4, {srd(SRD_C)}, 0 offen")
    e("s_waitcnt vmcnt(0)")
    e("s_branch L_f_wq2")
    lab("L_f_wq1")
    e("s_waitcnt vmcnt(WQAN)".replace("WQAN", str(opt("wqan", 3))))
    lab("L_f_wq2")
    lds_signal(F_WQA, 4, 5)
e(f"s_cmp_ge_u32 {sU2}, 28")
e("s_cbranch_scc1 L_f_noclr")
for k in range(4): e(f"v_mov_b32 v{8+k}, -1")
e("s_mov_b64 exec, 0xffff")
if CLR != "none": e(f"buffer_store_dwordx4 v[8:11], v6, {srd(SRD_WS)}, {sU4} offen sc1")
e("s_mov_b64 exec, -1")
lab("L_f_noclr")
stamp(1)
def w2_loads():
    e(f"s_mul_i32 {sT0}, {sU2}, {64*896}")
    e(f"s_lshl_b32 {sT1}, {sU3}, 7")
    e(f"s_add_u32 {sT0}, {sT0}, {sT1}")
    for r in range(8):
        e(f"s_add_u32 {sT1}, {sT0}, {r*896}")
        e(f"buffer_load_dwordx4 v[{F2D+4*r}:{F2D+4*r+3}], v2, {srd(SRD_B)}, {sT1} offen nt")
    e("v_and_b32 v12, 7, v0")
    e("v_lshlrev_b32 v12, 4, v12")
    e("v_lshrrev_b32 v13, 4, v0")
    e("v_lshl_add_u32 v14, v13, 2, v12")
    e(f"s_lshl_b32 {sT0}, {sU2}, 7")
    e(f"v_add_u32 v15, {sT0}, v14")
    e(f"buffer_load_dword v8, v15, {srd(SRD_C)}, 0 offen")
e(f"s_cmp_ge_u32 {sU0}, 28")
e("s_cbranch_scc1 L_f_stage2")
lds_wait(F_XN, 1, 4, 11)
e("v_bfe_u32 v12, v0, 1, 1")
e("v_lshrrev_b32 v13, 4, v0")
e("v_lshl_add_u32 v12, v13, 1, v12")
e("v_cmp_gt_u32 vcc, 7, v12")
e("v_lshlrev_b32 v12, 4, v12")
e(f"s_mul_i32 {sT0}, {sU1}, 112")
e(f"v_add_u32 v12, {sT0}, v12")
e(f"ds_read_b128 v[{FA_}:{FA_+3}], v12 offset:{L_XN}")
e(f"s_cmp_ge_u32 {sU2}, 28")
e("s_cbranch_scc1 L_f_w0")
e("s_waitcnt vmcnt(1) lgkmcnt(0)")
e("s_branch L_f_w1")
lab("L_f_w0")
e("s_waitcnt vmcnt(0) lgkmcnt(0)")
lab("L_f_w1")
for k in range(4): e(f"v_cndmask_b32 v{FA_+k}, 0, v{FA_+k}, vcc")
transpose_set(FD, FB)
e("s_nop 1")
mfma_set(FDA, FA_, FB, True)
mk_tag()
e(f"v_mov_b32 v9, {sTAG}")
e(f"s_mul_i32 {sT0}, {sU0}, 3072")
e(f"s_mul_i32 {sT1}, {sU1}, 384")
e(f"s_add_u32 {sT0}, {sT0}, {sT1}")
e(f"s_add_u32 {sU5}, {sT0}, {W_HMB}")
tile_out_granules(FDA, FG, 9)
publish_granules(FG, 6, sU5, False)
e(f"s_mov_b32 s86, {sU5}")
e("s_mov_b32 s87, 0")
stamp(2)
e("s_waitcnt vmcnt(0)")
lds_signal(F_CLR, 4, 5)
e("s_branch L_f_stage2b")
lab("L_f_stage2")
e("s_mov_b32 s87, 1")
e("s_waitcnt vmcnt(0) lgkmcnt(0)")
lds_signal(F_CLR, 4, 5)
mk_tag()
def f_pub_b():
    L = uid("fb")
    e("s_cmp_lg_u32 s87, 0")
    e(f"s_cbranch_scc1 {L}")
    publish_granules(FG, 6, "s86", True)
    e("s_mov_b32 s87, 1")
    lab(L)
lab("L_f_stage2b")
e(f"s_cmp_ge_u32 {sU2}, 28")
e("s_cbranch_scc1 L_f_endb")
e("v_and_b32 v12, 7, v0")
e("v_lshlrev_b32 v12, 4, v12")
e("v_lshrrev_b32 v13, 3, v0")
e("v_mul_u32_u24 v13, 384, v13")
e("v_add_u32 v13, v13, v12")
e(f"s_mul_i32 {sT0}, {sU2}, 3072")
e(f"s_add_u32 {sU5}, {sT0}, {W_HMB}")
e(f"v_mov_b32 v10, {sTAG}")
lds_wait(F_KHALF, 4, 4, 11)
e(f"s_mov_b32 {sCNT}, 0")
e(f"s_mov_b32 s88, 0")
HG = 16
lab("L_hpoll")
e(f"s_cmp_ge_u32 s88, {NTRY}")
e(f"s_cselect_b32 {sT2}, s88, 0")
e(f"s_and_b32 {sT2}, {sT2}, 1")
e(f"s_mul_i32 {sT2}, {sT2}, {W_BOFF}")
e(f"s_add_u32 {sT0}, {sT2}, {sU5}")
for k in range(3):
    e(f"buffer_load_dwordx4 v[{HG+4*k}:{HG+4*k+3}], v13, {srd(SRD_WS)}, {sT0} offen offset:{128*k} sc1")
if not W2LATE:
    e("s_cmp_lg_u32 s88, 0")
    e("s_cbranch_scc1 L_h_w2done")
    e("v_mov_b32 v28, v13")
    w2_loads()
    e("v_mov_b32 v13, v28")
    e("s_waitcnt vmcnt(9)")
    e("s_branch L_h_chk")
    lab("L_h_w2done")
e("s_waitcnt vmcnt(0)")
lab("L_h_chk")
e(f"v_xor_b32 v11, v{HG+3}, v10")
e(f"v_xor_b32 v28, v{HG+7}, v10")
e("v_or_b32 v11, v11, v28")
e(f"v_xor_b32 v28, v{HG+11}, v10")
e("v_or_b32 v11, v11, v28")
e("v_cmp_lt_u32 vcc, 7, v11")
e("s_cmp_eq_u64 vcc, 0")
e("s_cbranch_scc1 L_hgot")
e("s_add_u32 s88, s88, 1")
e(f"s_cmp_lg_u32 s88, {NTRY}")
e("s_cbranch_scc1 L_h_nob")
f_pub_b()
lab("L_h_nob")
e(f"s_cmp_lt_u32 s88, {SPIN_LIMIT}")
e("s_cbranch_scc1 L_hpoll")
lab("L_hgot")
stamp(4)
e("s_waitcnt vmcnt(0)")
if W2LATE:
    e("v_and_b32 v12, 7, v0")
    e("v_lshlrev_b32 v12, 4, v12")
    e("v_lshrrev_b32 v13, 4, v0")
    e("v_lshl_add_u32 v14, v13, 2, v12")
    e(f"s_lshl_b32 {sT0}, {sU2}, 7")
    e(f"v_add_u32 v15, {sT0}, v14")
    e(f"buffer_load_dword v8, v15, {srd(SRD_C)}, 0 offen")
    lds_wait(F_VISS, 4, 4, 11)
    e(f"s_mul_i32 {sT0}, {sU2}, {64*896}")
    e(f"s_lshl_b32 {sT1}, {sU3}, 7")
    e(f"s_add_u32 {sT0}, {sT0}, {sT1}")
    for r in range(8):
        e(f"s_add_u32 {sT1}, {sT0}, {r*896}")
        e(f"buffer_load_dwordx4 v[{F2D+4*r}:{F2D+4*r+3}], v2, {srd(SRD_B)}, {sT1} offen nt")
    e("s_waitcnt vmcnt(8)")
hv = [HG+p for p in GPOS]
e("s_nop 1")
for i in range(8):
    e(f"v_add_f32_dpp v{hv[i]}, v{hv[i]}, v{hv[i]} row_ror:8 row_mask:0xf bank_mask:0xf")
e("s_nop 1")
for i in range(4): e(f"v_permlane32_swap_b32 v{hv[i]}, v{hv[i+4]}")
e("s_nop 1")
for i in range(4): e(f"v_add_f32 v{hv[i]}, v{hv[i]}, v{hv[i+4]}")
e("s_nop 1")
for i in range(2): e(f"v_permlane16_swap_b32 v{hv[i]}, v{hv[i+2]}")
e("s_nop 1")
for i in range(2): e(f"v_add_f32 v{hv[i]}, v{hv[i]}, v{hv[i+2]}")
X0, X1 = hv[0], hv[1]
e(f"v_cvt_pk_bf16_f32 v11, v{X0}, v{X1}")
e(f"v_lshlrev_b32 v{X0}, 16, v11")
e(f"v_and_b32 v{X1}, 0xffff0000, v11")
e("v_lshlrev_b32 v11, 16, v8")
e("v_and_b32 v12, 0xffff0000, v8")
e(f"v_add_f32 v{X0}, v{X0}, v11")
e(f"v_add_f32 v{X1}, v{X1}, v12")
e(f"v_cvt_pk_bf16_f32 v11, v{X0}, v{X1}")
e(f"v_lshlrev_b32 v{X0}, 16, v11")
e(f"v_and_b32 v{X1}, 0xffff0000, v11")
KB = -2.0*0.7978845608028654*1.4426950408889634
e(f"s_mov_b32 {sT2}, {f2h(0.044715)}")
e(f"s_mov_b32 {sT3}, {f2h(KB)}")
for x, t in ((X0, 60), (X1, 61)):
    e(f"v_mul_f32 v{t}, v{x}, v{x}")
    e(f"v_mul_f32 v{t}, v{t}, v{x}")
    e(f"v_fma_f32 v{t}, v{t}, {sT2}, v{x}")
    e(f"v_mul_f32 v{t}, {sT3}, v{t}")
    e(f"v_exp_f32 v{t}, v{t}")
    e("s_nop 0")
    e(f"v_add_f32 v{t}, 1.0, v{t}")
    e(f"v_rcp_f32 v{t}, v{t}")
    e("s_nop 0")
    e(f"v_mul_f32 v{x}, v{x}, v{t}")
e(f"v_cvt_pk_bf16_f32 v11, v{X0}, v{X1}")
e(f"ds_write_b32 v14, v11 offset:{L_HL}")
e("v_bfe_u32 v12, v0, 1, 1")
e("v_lshrrev_b32 v13, 4, v0")
e("v_lshl_add_u32 v12, v13, 1, v12")
e("v_lshlrev_b32 v12, 4, v12")
e(f"ds_read_b128 v[{FA_}:{FA_+3}], v12 offset:{L_HL}")
e("s_waitcnt vmcnt(0)")
transpose_set(F2D, FB)
e("s_waitcnt lgkmcnt(0)")
mfma_set(FDA, FA_, FB, True)
e("v_and_b32 v10, 7, v0")
e("v_lshlrev_b32 v10, 5, v10")
e("s_nop 3")
for rp in range(8):
    if rp == 7: e("s_nop 3")
    e(f"v_add_f32_dpp v{16+rp}, v{FDA+4*rp+2}, v{FDA+4*rp} row_shl:8 row_mask:0xf bank_mask:0xf")
e("s_mov_b64 exec, 0xff")
e(f"buffer_store_dwordx4 v[16:19], v10, {srd(SRD_WS)}, {sU4} offen sc1")
e(f"buffer_store_dwordx4 v[20:23], v10, {srd(SRD_WS)}, {sU4} offen offset:16 sc1")
e("s_mov_b64 exec, -1")
stamp(5)
lab("L_f_endb")
f_pub_b()
lab("L_f_end")
ROLE[0]="F"
stamps_out(6, "s88")
e("s_endpgm")

if not WINL:
    lab("L_winit")
    e("v_lshlrev_b32 v2, 2, v0")
    e("v_mov_b32 v3, 0")
    e("ds_write_b32 v2, v3")
    e("s_waitcnt lgkmcnt(0)")
    e("s_barrier")
    kernarg_loads()
    stamp(0)
    zero_stamps()
    e(f"s_and_b32 {sH}, s2, 7")
    e(f"s_lshr_b32 {sJ}, s2, 3")
    e(f"s_mov_b32 {sSELLO}, 0x05040100")
    e(f"s_mov_b32 {sSELHI}, 0x07060302")
lab("L_roleW")
e("s_setprio 2")
WI = 16; WB = 80
e("v_mov_b32 v4, 0")
e("v_mov_b32 v5, 1")
e("v_lshlrev_b32 v6, 4, v0")
e(f"s_and_b32 {sU0}, {sJ}, 3")
e(f"s_lshr_b32 {sU1}, {sJ}, 2")
e(f"s_lshl_b32 {sT0}, {sH}, 2")
e(f"s_add_u32 {sT0}, {sT0}, {sU0}")
e(f"s_mul_i32 {sU3}, {sT0}, {128*896}")
e(f"s_lshl_b32 {sT1}, {sU1}, 7")
e(f"s_add_u32 {sU3}, {sU3}, {sT1}")
kv_off()
e(f"s_mov_b32 {sU4}, {sT0}")
e("s_waitcnt lgkmcnt(0)")
mk_srd(SRD_WS, pWS, WS_SIZE)
lds_wait(F_QLD, 1, 4, 11, sleep=0)
if TLBPF:
    e(f"s_add_u32 s86, s{pV}, {sU4}")
    e(f"s_addc_u32 s87, s{pV+1}, 0")
    e("v_mov_b32 v12, s86")
    e("v_mov_b32 v13, s87")
    e(f"s_min_u32 {sT0}, {sU3}, {4096*896-131072}")
    e(f"s_add_u32 s86, s{pWO}, {sT0}")
    e(f"s_addc_u32 s87, s{pWO+1}, 0")
    e("v_writelane_b32 v12, s86, 1")
    e("v_writelane_b32 v13, s87, 1")
    e(f"s_add_u32 s86, s86, {127*896}")
    e("s_addc_u32 s87, s87, 0")
    e("v_writelane_b32 v12, s86, 2")
    e("v_writelane_b32 v13, s87, 2")
    e(f"v_writelane_b32 v12, s{pOUT}, 3")
    e(f"v_writelane_b32 v13, s{pOUT+1}, 3")
    e(f"s_add_u32 s86, s{pK}, {sU4}")
    e(f"s_addc_u32 s87, s{pK+1}, 0")
    e("v_writelane_b32 v12, s86, 4")
    e("v_writelane_b32 v13, s87, 4")
    e(f"v_writelane_b32 v12, s{pW2}, 5")
    e(f"v_writelane_b32 v13, s{pW2+1}, 5")
    e("s_mov_b64 exec, 0x3f")
    e("global_load_dword v14, v[12:13], off nt")
    e("s_mov_b64 exec, -1")
if CODEPF and not EARLYPF:
    e("s_getpc_b64 s[86:87]")
    lab("L_pc_here")
    e(f"s_sub_u32 s86, s86, L_pc_here-{NAME}_kernel")
    e("s_subb_u32 s87, s87, 0")
    e(f"s_cmp_ge_u32 {sJ}, {CODE_CHUNKS}")
    e(f"s_cselect_b32 {sT0}, {CODE_CHUNKS}, 0")
    e(f"s_sub_u32 {sT0}, {sJ}, {sT0}")
    e(f"s_cmp_ge_u32 {sT0}, {CODE_CHUNKS}")
    e(f"s_cselect_b32 {sT0}, 0, {sT0}")
    e(f"s_lshl_b32 {sT0}, {sT0}, 10")
    e(f"v_add_u32 v15, {sT0}, v6")
    e("global_load_dwordx4 v[16:19], v15, s[86:87]")
for k in range(4): e(f"v_mov_b32 v{8+k}, -1")
e(f"s_lshl_b32 {sT0}, {sH}, 5")
e(f"s_add_u32 {sT0}, {sT0}, {sJ}")
e(f"s_lshl_b32 {sT0}, {sT0}, 11")
e(f"s_add_u32 {sT0}, {sT0}, {W_OP}")
CP = {"sc1": " sc1", "plain": "", "none": None}[CLR]
if CP is not None:
    e(f"buffer_store_dwordx4 v[8:11], v6, {srd(SRD_WS)}, {sT0} offen{CP}")
    e(f"buffer_store_dwordx4 v[8:11], v6, {srd(SRD_WS)}, {sT0} offen offset:1024{CP}")
e("v_lshlrev_b32 v7, 8, v0")
e(f"s_lshl_b32 {sT0}, {sH}, 9")
e(f"s_lshl_b32 {sT1}, {sJ}, 3")
e(f"s_add_u32 {sT0}, {sT0}, {sT1}")
e(f"s_add_u32 {sT0}, {sT0}, {W_ML}")
e("s_mov_b64 exec, 3")
if CP is not None: e(f"buffer_store_dwordx2 v[8:9], v7, {srd(SRD_WS)}, {sT0} offen{CP}")
e("s_mov_b64 exec, -1")
e(f"s_lshl_b32 {sT0}, {sH}, 2")
e(f"s_add_u32 {sT0}, {sT0}, {sU0}")
e(f"s_lshl_b32 {sT0}, {sT0}, 11")
e(f"s_lshl_b32 {sT1}, {sU1}, 8")
e(f"s_add_u32 {sT0}, {sT0}, {sT1}")
e(f"s_add_u32 {sU2}, {sT0}, {W_AP}")
e(f"s_cmp_ge_u32 {sJ}, 28")
e("s_cbranch_scc1 L_w_noap")
e("s_mov_b64 exec, 0xffff")
if CLR != "none": e(f"buffer_store_dwordx4 v[8:11], v6, {srd(SRD_WS)}, {sU2} offen sc1")
e("s_mov_b64 exec, -1")
lab("L_w_noap")
e(f"s_load_dword {sTAG}, s[{pWS}:{pWS+1}], 0")
e("s_waitcnt vmcnt(0) lgkmcnt(0)")
mk_tag()
e(f"v_mov_b32 v7, {sTAG}")
lds_wait(F_CLR, 1, 4, 11)
e(f"s_lshl_b32 {sT0}, {sH}, 5")
e(f"s_add_u32 {sT0}, {sT0}, {sJ}")
e(f"s_lshl_b32 {sT0}, {sT0}, 2")
e(f"s_add_u32 {sT0}, {sT0}, {W_READY}")
e("s_mov_b64 exec, 1")
e(f"buffer_store_dword v7, v4, {srd(SRD_WS)}, {sT0} offen sc1")
e("s_mov_b64 exec, -1")
stamp(1)
e(f"s_cmp_ge_u32 {sJ}, 28")
e("s_cbranch_scc1 L_final")
mk_srd(SRD_A, pWO, 4096*896)
e("v_lshrrev_b32 v2, 3, v0")
e("v_mul_u32_u24 v2, 7168, v2")
e("v_and_b32 v3, 7, v0")
e("v_lshl_add_u32 v2, v3, 4, v2")
e("v_bfe_u32 v10, v0, 1, 1")
e("v_lshrrev_b32 v11, 4, v0")
e("v_lshl_add_u32 v10, v11, 1, v10")
e("v_lshlrev_b32 v10, 4, v10")
e("v_lshlrev_b32 v9, 5, v3")
if PRESO:
    for s in range(2):
        for r in range(8):
            e(f"s_add_u32 s{16+8*s+r}, {sU3}, {(64*s+r)*896}")
    lds_wait(F_VISS, 4, 4, 11)
    stamp(2)
    if SHARE and WWIN == KWIN:
        e("s_waitcnt vmcnt(0)")
        e("s_branch L_issue16")
    else:
        for i in range(16):
            q = WI+4*i
            if i >= WWIN: e(f"s_waitcnt vmcnt({WWIN-1})")
            e(f"buffer_load_dwordx4 v[{q}:{q+3}], v2, {srd(SRD_A)}, s{16+i} offen nt")
    if SHARE: lab("L_w_issued")
else:
    lds_wait(F_VISS, 4, 4, 11)
    stamp(2)
    for s in range(2):
        for r in range(8):
            q = WI+32*s+4*r
            e(f"s_add_u32 {sT1}, {sU3}, {(64*s+r)*896}")
            e(f"buffer_load_dwordx4 v[{q}:{q+3}], v2, {srd(SRD_A)}, {sT1} offen nt")
e("s_waitcnt vmcnt(8)")
transpose_set(WI, WB)
e("s_waitcnt vmcnt(0)")
transpose_set(WI+32, WB+32)
stamp(3)
lds_wait(F_ORDY, 4, 4, 11, sleep=0)
stamp(4)
e(f"ds_read_b128 v[16:19], v10 offset:{L_OL}")
e(f"ds_read_b128 v[20:23], v10 offset:{L_OL+128}")
e("s_waitcnt lgkmcnt(0)")
WDA = 32
mfma_set(WDA, 16, WB, True)
mfma_set(WDA, 20, WB+32, False)
e("s_nop 3")
for rp in range(8):
    if rp == 7: e("s_nop 3")
    e(f"v_add_f32_dpp v{64+rp}, v{WDA+4*rp+2}, v{WDA+4*rp} row_shl:8 row_mask:0xf bank_mask:0xf")
e("s_mov_b64 exec, 0xff")
e(f"buffer_store_dwordx4 v[64:67], v9, {srd(SRD_WS)}, {sU2} offen {FST}")
e(f"buffer_store_dwordx4 v[68:71], v9, {srd(SRD_WS)}, {sU2} offen offset:16 {FST}")
e("s_mov_b64 exec, -1")
stamp(5)
ROLE[0]="W"
stamps_out(6)
e("s_endpgm")

lab("L_final")
e(f"s_sub_u32 {sT0}, {sJ}, 28")
e(f"s_lshl_b32 {sT0}, {sT0}, 3")
e(f"s_add_u32 {sU0}, {sT0}, {sH}")
e(f"s_cmp_ge_u32 {sU0}, 28")
e("s_cbranch_scc1 L_end")
mk_srd(SRD_A, pX, 896)
mk_srd(SRD_B, pB2, 896)
mk_srd(SRD_C, pOUT, 896)
e("v_and_b32 v2, 3, v0")
e("v_lshlrev_b32 v2, 2, v2")
e("v_bfe_u32 v3, v0, 5, 1")
e("v_lshl_add_u32 v2, v3, 1, v2")
e("v_bfe_u32 v3, v0, 4, 1")
e("v_add_u32 v2, v2, v3")
e(f"s_lshl_b32 {sT0}, {sU0}, 4")
e(f"v_add_u32 v2, {sT0}, v2")
e("v_lshlrev_b32 v2, 1, v2")
e(f"buffer_load_ushort v12, v2, {srd(SRD_A)}, 0 offen")
e(f"buffer_load_ushort v13, v2, {srd(SRD_B)}, 0 offen")
e(f"s_mov_b32 {sT1}, {W_READY}")
lds_wait(F_KISS, 4, 4, 11)
e(f"s_mov_b32 {sCNT}, 0")
lab("L_rdy")
e(f"buffer_load_dwordx4 v[8:11], v6, {srd(SRD_WS)}, {sT1} offen sc1")
e("s_waitcnt vmcnt(0)")
for k in range(4): e(f"v_xor_b32 v{8+k}, v{8+k}, v7")
e("v_or_b32 v8, v8, v9")
e("v_or_b32 v10, v10, v11")
e("v_or_b32 v8, v8, v10")
e("v_cmp_lt_u32 vcc, 7, v8")
e("s_cmp_eq_u64 vcc, 0")
e("s_cbranch_scc1 L_rdy_ok")
e("s_sleep 8")
e(f"s_add_u32 {sCNT}, {sCNT}, 1")
e(f"s_cmp_lt_u32 {sCNT}, {SPIN_LIMIT}")
e("s_cbranch_scc1 L_rdy")
lab("L_rdy_ok")
stamp(2)
e(f"s_cmp_lg_u32 {sU0}, 0")
e("s_cbranch_scc1 L_noep")
e("s_mov_b64 exec, 1")
e(f"buffer_store_dword v7, v4, {srd(SRD_WS)}, 0 offen sc1")
e("s_mov_b64 exec, -1")
lab("L_noep")
e("v_lshrrev_b32 v3, 2, v0")
e("v_lshlrev_b32 v3, 11, v3")
e("v_and_b32 v7, 3, v0")
e("v_lshl_add_u32 v3, v7, 4, v3")
e(f"s_lshl_b32 {sU1}, {sU0}, 6")
e(f"s_add_u32 {sU1}, {sU1}, {W_AP}")
e("v_lshlrev_b32 v13, 16, v13")
e("v_lshlrev_b32 v12, 16, v12")
e("v_lshrrev_b32 v14, 2, v0")
e("v_min_u32 v14, 11, v14")
e("v_lshlrev_b32 v14, 11, v14")
e("v_lshl_add_u32 v14, v7, 4, v14")
e("v_cmp_gt_u32 vcc, 48, v0")
e("s_nop 1")
e("v_cndmask_b32 v15, 0, 1.0, vcc")
lds_wait(F_VISS, 4, 4, 11)
lds_wait(F_SDONE, 4, 4, 11)
stamp(3)
e(f"s_mov_b32 {sCNT}, 0")
lab("L_bpoll")
e(f"s_add_u32 {sT1}, {sU1}, {16*2048*2}")
e(f"buffer_load_dwordx4 v[24:27], v3, {srd(SRD_WS)}, {sT1} offen sc1")
e(f"s_add_u32 {sT1}, {sU1}, {16*2048*3}")
e(f"buffer_load_dwordx4 v[28:31], v14, {srd(SRD_WS)}, {sT1} offen sc1")
e("s_waitcnt vmcnt(0)")
for d in range(4):
    e(f"v_fma_f32 v{104+d}, v{28+d}, v15, v{24+d}")
nan_or_sentinel_check([104, 105, 106, 107], list(range(24, 32)), "L_bgot", "L_bpoll", sCNT, 16, 17)
lab("L_bgot")
def red4(lo):
    for r in (4, 8):
        e("s_nop 1")
        for d in range(4):
            e(f"v_add_f32_dpp v{lo+d}, v{lo+d}, v{lo+d} row_ror:{r} row_mask:0xf bank_mask:0xf")
    e("s_nop 1")
    e(f"v_permlane32_swap_b32 v{lo}, v{lo+2}")
    e(f"v_permlane32_swap_b32 v{lo+1}, v{lo+3}")
    e("s_nop 1")
    e(f"v_add_f32 v{lo}, v{lo}, v{lo+2}")
    e(f"v_add_f32 v{lo+1}, v{lo+1}, v{lo+3}")
    e("s_nop 1")
    e(f"v_permlane16_swap_b32 v{lo}, v{lo+1}")
    e("s_nop 1")
    e(f"v_add_f32 v{lo}, v{lo}, v{lo+1}")
red4(104)
bf16r(104, 104)
e("v_add_f32 v104, v104, v13")
bf16r(104, 104)
stamp(4)
e(f"s_add_u32 {sU2}, {sU1}, {16*2048}")
e(f"s_mov_b32 {sCNT}, 0")
NB = FNB
def issue(b):
    e(f"buffer_load_dwordx4 v[{32+8*b}:{35+8*b}], v3, {srd(SRD_WS)}, {sU1} offen {FLD}")
    e(f"buffer_load_dwordx4 v[{36+8*b}:{39+8*b}], v3, {srd(SRD_WS)}, {sU2} offen {FLD}")
for b in range(NB):
    issue(b)
    if b < NB-1: e(f"s_sleep {FSL}")
lab("L_fpoll")
for b in range(NB):
    e(f"s_waitcnt vmcnt({2*(NB-1)})")
    for d in range(4):
        e(f"v_add_f32 v{100+d}, v{32+8*b+d}, v{36+8*b+d}")
    e("v_add_f32 v16, v100, v101")
    e("v_add_f32 v17, v102, v103")
    e("v_add_f32 v16, v16, v17")
    e("v_cmp_u_f32 vcc, v16, v16")
    e("s_cmp_eq_u64 vcc, 0")
    e("s_cbranch_scc1 L_fgot")
    e(f"v_max3_u32 v16, v{32+8*b}, v{33+8*b}, v{34+8*b}")
    e(f"v_max3_u32 v16, v16, v{35+8*b}, v{36+8*b}")
    e(f"v_max3_u32 v16, v16, v{37+8*b}, v{38+8*b}")
    e(f"v_max_u32 v16, v16, v{39+8*b}")
    e("v_cmp_eq_u32 vcc, -1, v16")
    e("s_cmp_eq_u64 vcc, 0")
    e("s_cbranch_scc1 L_fgot")
    issue(b)
e(f"s_add_u32 {sCNT}, {sCNT}, 1")
e(f"s_cmp_lt_u32 {sCNT}, {SPIN_LIMIT}")
e("s_cbranch_scc1 L_fpoll")
lab("L_fgot")
stamp(5)
red4(100)
bf16r(100, 100)
e("v_add_f32 v100, v100, v12")
bf16r(100, 100)
e("v_add_f32 v100, v100, v104")
e("v_cvt_pk_bf16_f32 v100, v100, v100")
if HOPS:
    e("s_branch L_hop0")
    for i in range(HOPS):
        e(".p2align 8")
        lab(f"L_hop{i}")
        e(f"s_branch L_hop{i+1}")
    e(".p2align 8")
    lab(f"L_hop{HOPS}")
e("s_mov_b32 exec_lo, 0x000f000f")
e("s_mov_b32 exec_hi, 0x000f000f")
e(f"buffer_store_short v100, v2, {srd(SRD_C)}, 0 offen")
e("s_mov_b64 exec, -1")
stamp(6)
ROLE[0]="Fin"
stamps_out(7, sCNT)
lab("L_end")
e("s_endpgm")
lab("L_code_end")

e(f""".section .rodata,"a"
.p2align 6
.amdhsa_kernel {NAME}_kernel
  .amdhsa_next_free_vgpr 160
  .amdhsa_next_free_sgpr 96
  .amdhsa_accum_offset 160
  .amdhsa_group_segment_fixed_size 0
  .amdhsa_kernarg_size 104
  .amdhsa_user_sgpr_count 2
  .amdhsa_user_sgpr_kernarg_segment_ptr 1
  .amdhsa_system_sgpr_workgroup_id_x 1
  .amdhsa_float_denorm_mode_32 3
.end_amdhsa_kernel""")

txt = "\n".join(x for x in out if x is not None) + "\n"
path = sys.argv[1] if len(sys.argv) > 1 else "cdna_kernels/" + NAME + ".s"
open(path, "w").write(txt)
print("wrote", path, len(txt), "bytes")
```

```python
import sys, os, struct
NAME = "parallel_sum__sliding_block_cached__dense_activation_gelu__decode"
PROFILE = int(sys.argv[2]) if len(sys.argv) > 2 else 0
OPT = dict(kv.split("=") for kv in os.environ.get("GOPT", "").split(",") if kv)
def opt(k, d): return type(d)(OPT.get(k, d))
QDELAY = opt("qdelay", 8)
QSPACE = opt("qspace", 4)
HDELAY = opt("hdelay", 8)
TLBPF = opt("tlbpf", 0)
KWIN = opt("kwin", 6)
VWIN = opt("vwin", 6)
SHARE = opt("share", 1)
WWIN = opt("wwin", 8)
MLEARLY = opt("mlearly", 1)
MLD = opt("mld", 8)
EARLYPF = opt("earlypf", 1)
NTRY = 4
KTRIG = opt("ktrig", 5)
FLD = opt("fld", "sc1").replace("_"," ")
FST = opt("fst", "sc1").replace("_"," ")
FNB = opt("fnb", 3)
FSL = opt("fsl", 2)
OPIPE = opt("opipe", 1)
OSL = opt("osl", 2)
HOPS = opt("hops", 0)
WINL = opt("winl", 1)
WQAF = opt("wqaf", 0)
PRESO = opt("preso", 1)
CODEPF = opt("codepf", 1)
CODE_CHUNKS = opt("chunks", 13)
W2LATE = opt("w2late", 1)
MLDELAY = opt("mldelay", 12)
KEARLY = opt("kearly", 0)
VGATE = opt("vgate", 0)
OHINT = opt("ohint", 0)
CLR = opt("clr", "sc1")
FPIPE = opt("fpipe", 1)

out = []
def e(s=""): out.append(s)
def lab(s): out.append(s + ":")
_uid = [0]
def uid(p):
    _uid[0] += 1
    return f"L_{p}_{_uid[0]}"
def f2h(x): return "0x%08x" % struct.unpack("<I", struct.pack("<f", x))[0]

F_KISS, F_VISS, F_QRDY, F_SDONE, F_XN, F_CLR, F_ORDY, F_WRDY, F_KHALF, F_QISS, F_MLP, F_VDONE, F_WQA, F_PRDY, F_QLD = 0, 4, 8, 12, 16, 20, 24, 28, 32, 36, 40, 44, 48, 52, 56
L_XN = 256
L_Q = 1280
L_SC = 2304
L_OL = 4352
L_HL = 4608
L_WL = 4736
L_P = 4864
LDS_BYTES = 8192
W_EPOCH = 0
W_READY = 0x1000
W_ML = 0x2000
W_QMB = 0x5000
W_HMB = 0x1D000
W_BOFF = 0x40000
W_OP = 0x90000
W_AP = 0x110000
W_QH = 0x3000
W_HH = 0x3400
W_OF = 0x110000+0x20000
W_PROF = 0x4000000
WS_SIZE = 0x8000000
SPIN_LIMIT = 200000

NWAVES = 11
sH, sJ, sXR, sWV = "s4", "s5", "s6", "s3"
sTAG = "s7"
sT0, sT1, sT2, sT3 = "s8", "s9", "s10", "s11"
sCNT = "s12"
sSELLO, sSELHI = "s13", "s14"
sFAST = "s15"
pX, pK, pV, pWQ, pWO, pW1, pB1 = 16, 18, 20, 22, 24, 28, 30
pW2, pB2, pOUT, pDBG, pWS = 32, 34, 36, 38, 40
SRD_A, SRD_B, SRD_WS, SRD_C = 44, 48, 52, 56
sSTAMP = 60
sX7, sXS, sXW = "s76", "s77", "s78"
sU0, sU1, sU2, sU3, sU4, sU5 = "s80", "s81", "s82", "s83", "s84", "s85"

def srd(n): return f"s[{n}:{n+3}]"

def mk_srd(n, p, size, add_lo=None):
    if add_lo is None:
        e(f"s_mov_b32 s{n}, s{p}")
        e(f"s_and_b32 s{n+1}, s{p+1}, 0xffff")
    else:
        e(f"s_add_u32 s{n}, s{p}, {add_lo}")
        e(f"s_addc_u32 s{n+1}, s{p+1}, 0")
        e(f"s_and_b32 s{n+1}, s{n+1}, 0xffff")
    e(f"s_mov_b32 s{n+2}, {size}")
    e(f"s_mov_b32 s{n+3}, 0x20000")

def stamp(k):
    if PROFILE: e(f"s_memrealtime s[{sSTAMP+2*k}:{sSTAMP+2*k+1}]")

DBGMAP = {}
def dbg_out(pairs):
    e("s_waitcnt lgkmcnt(0)")
    mk_srd(SRD_C, pDBG, 256)
    e("s_mov_b64 exec, 1")
    e("v_mov_b32 v1, 0")
    for k, slot, neg in pairs:
        L = uid("dz")
        e(f"s_cmp_eq_u32 s{sSTAMP+2*k}, 0")
        e(f"s_cbranch_scc1 {L}")
        e(f"v_mov_b32 v2, s{sSTAMP+2*k}")
        if neg: e("v_not_b32 v2, v2")
        e(f"buffer_atomic_umax v2, v1, {srd(SRD_C)}, 0 offen offset:{4*slot}")
        lab(L)
    e("s_waitcnt vmcnt(0)")
ROLE = [None]
def stamps_out(n, cnt=None):
    if PROFILE == 2:
        m = {"Q": [(0,0,True),(1,2,False),(4,3,False),(6,4,False)], "K": [(1,5,False),(2,6,False),(5,9,False)], "V": [(5,7,False),(6,8,False)],
             "F": [(5,11,False)], "W": [(3,12,False),(5,10,False)], "Fin": [(6,1,False),(4,13,False)]}
        Lq = uid("dq")
        if ROLE[0] != "Fin":
            e(f"s_cmp_lg_u32 {sJ}, 3")
            e(f"s_cbranch_scc1 {Lq}")
            if ROLE[0] in ("K", "V"):
                e(f"s_and_b32 {sT0}, {sWV}, 3")
                e(f"s_cmp_lg_u32 {sT0}, 1")
                e(f"s_cbranch_scc1 {Lq}")
        dbg_out(m[ROLE[0]])
        lab(Lq)
        return
    if not PROFILE: return
    e("s_waitcnt lgkmcnt(0)")
    if cnt is not None:
        e(f"s_mov_b32 s{sSTAMP+14}, {cnt}"); e(f"s_mov_b32 s{sSTAMP+15}, 0")
        n = 8
    e("s_mov_b64 exec, 1")
    e(f"s_lshl_b32 {sT0}, s2, 4")
    e(f"s_add_u32 {sT0}, {sT0}, {sWV}")
    e(f"s_lshl_b32 {sT0}, {sT0}, 6")
    e(f"s_add_u32 {sT0}, {sT0}, {W_PROF}")
    e(f"v_mov_b32 v1, {sT0}")
    for k in range(n):
        e(f"v_mov_b32 v2, s{sSTAMP+2*k}")
        e(f"v_mov_b32 v3, s{sSTAMP+2*k+1}")
        e(f"buffer_store_dwordx2 v[2:3], v1, {srd(SRD_WS)}, 0 offen offset:{8*k}")
        e("s_nop 1")
    e("s_waitcnt vmcnt(0)")

def zero_stamps():
    if PROFILE:
        for k in range(1, 8):
            e(f"s_mov_b64 s[{sSTAMP+2*k}:{sSTAMP+2*k+1}], 0")

def lds_wait(flag, val, vz, vt, sleep=1):
    L = uid("lw"); D = uid("lwd")
    e(f"s_mov_b32 {sCNT}, 0")
    lab(L)
    e(f"ds_read_b32 v{vt}, v{vz} offset:{flag}")
    e("s_waitcnt lgkmcnt(0)")
    e(f"v_readfirstlane_b32 {sT0}, v{vt}")
    e(f"s_cmp_ge_u32 {sT0}, {val}")
    e(f"s_cbranch_scc1 {D}")
    if sleep: e(f"s_sleep {sleep}")
    e(f"s_add_u32 {sCNT}, {sCNT}, 1")
    e(f"s_cmp_lt_u32 {sCNT}, {SPIN_LIMIT*4}")
    e(f"s_cbranch_scc1 {L}")
    lab(D)

def lds_signal(flag, vz, vone):
    e("s_mov_b64 exec, 1")
    e(f"ds_add_u32 v{vz}, v{vone} offset:{flag}")
    e("s_mov_b64 exec, -1")

def bf16r(dst, src):
    e(f"v_cvt_pk_bf16_f32 v{dst}, v{src}, v{src}")
    e(f"v_lshlrev_b32 v{dst}, 16, v{dst}")

def allreduce(op, a, t):
    for r in (8, 4, 2, 1):
        e("s_nop 1")
        e(f"{op}_dpp v{a}, v{a}, v{a} row_ror:{r} row_mask:0xf bank_mask:0xf")
    e(f"v_mov_b32 v{t}, v{a}")
    e("s_nop 1")
    e(f"v_permlane16_swap_b32 v{a}, v{t}")
    e("s_nop 1")
    e(f"{op} v{a}, v{a}, v{t}")
    e(f"v_mov_b32 v{t}, v{a}")
    e("s_nop 1")
    e(f"v_permlane32_swap_b32 v{a}, v{t}")
    e("s_nop 1")
    e(f"{op} v{a}, v{a}, v{t}")

def common_scalars():
    e(f"s_lshr_b32 {sT0}, {sJ}, 2")
    e(f"s_mul_i32 {sT1}, {sH}, 5")
    e(f"s_add_u32 {sT0}, {sT0}, {sT1}")
    e(f"s_and_b32 {sT1}, {sJ}, 3")
    e(f"s_lshl_b32 {sT1}, {sT1}, 2")
    e(f"s_add_u32 {sT0}, {sT0}, {sT1}")
    e(f"s_and_b32 {sXR}, {sT0}, 15")
    e(f"s_and_b32 {sX7}, {sXR}, 7")
    e(f"s_lshr_b32 {sT0}, {sXR}, 2")
    e(f"s_lshl_b32 {sT0}, {sT0}, 3")
    e(f"s_or_b32 {sX7}, {sX7}, {sT0}")
    e(f"s_lshr_b32 {sT0}, {sXR}, 3")
    e(f"s_lshl_b32 {sT0}, {sT0}, 6")
    e(f"s_or_b32 {sX7}, {sX7}, {sT0}")
    e(f"s_and_b32 {sXS}, {sXR}, 3")
    e(f"s_add_u32 {sT0}, {sJ}, {sH}")
    e(f"s_and_b32 {sXW}, {sT0}, 3")

def kv_off():
    e(f"s_lshl_b32 {sT0}, {sH}, 25")
    e(f"s_lshl_b32 {sT1}, {sJ}, 16")
    e(f"s_add_u32 {sT0}, {sT0}, {sT1}")
    e(f"s_add_u32 {sT0}, {sT0}, 0x1E00000")
def kv_srd(n, p):
    kv_off()
    mk_srd(n, p, 65536, add_lo=sT0)

def transpose_set(src, dst, waits=None):
    for kp in range(4):
        if waits is not None:
            e(f"s_waitcnt vmcnt({waits[kp]})")
        a = src+8*kp; b = a+4
        for d in range(4):
            e(f"v_perm_b32 v{dst+4*(2*d)+kp}, v{b+d}, v{a+d}, {sSELLO}")
            e(f"v_perm_b32 v{dst+4*(2*d+1)+kp}, v{b+d}, v{a+d}, {sSELHI}")

def mfma_set(D, A, B, first):
    for rp in range(8):
        c = "0" if first else f"v[{D+4*rp}:{D+4*rp+3}]"
        e(f"v_mfma_f32_16x16x32_bf16 v[{D+4*rp}:{D+4*rp+3}], v[{A}:{A+3}], v[{B+4*rp}:{B+4*rp+3}], {c}")

def mk_tag():
    e(f"s_add_u32 {sTAG}, {sTAG}, 8")
    e(f"s_andn2_b32 {sTAG}, {sTAG}, 7")

GPOS = [0, 1, 2, 4, 5, 6, 8, 9]
def tile_out_granules(D, G, vtag):
    e("s_nop 3")
    for rp in range(8):
        if rp == 7: e("s_nop 3")
        e(f"v_add_f32_dpp v{G+GPOS[rp]}, v{D+4*rp+2}, v{D+4*rp} row_shl:8 row_mask:0xf bank_mask:0xf")
    for k in (3, 7, 10, 11):
        e(f"v_mov_b32 v{G+k}, v{vtag}")

def publish_granules(G, vaddr, soff, slotB):
    e("s_mov_b64 exec, 0xff")
    if slotB:
        e(f"s_add_u32 {sT3}, {soff}, {W_BOFF}")
        for k in range(3):
            e(f"buffer_store_dwordx4 v[{G+4*k}:{G+4*k+3}], v{vaddr}, {srd(SRD_WS)}, {sT3} offen offset:{128*k} sc1")
    else:
        for k in range(3):
            e(f"buffer_store_dwordx4 v[{G+4*k}:{G+4*k+3}], v{vaddr}, {srd(SRD_WS)}, {soff} offen offset:{128*k}")
    e("s_mov_b64 exec, -1")

def nan_or_sentinel_check(accs, regs, okl, retry_l, cnt, tmp1, tmp2):
    e(f"v_add_f32 v{tmp1}, v{accs[0]}, v{accs[1]}")
    for a in accs[2:]:
        e(f"v_add_f32 v{tmp1}, v{tmp1}, v{a}")
    e(f"v_cmp_u_f32 vcc, v{tmp1}, v{tmp1}")
    e("s_cmp_eq_u64 vcc, 0")
    e(f"s_cbranch_scc1 {okl}")
    e(f"v_max_u32 v{tmp1}, v{regs[0]}, v{regs[1]}")
    rest = regs[2:]
    for i in range(0, len(rest)-1, 2):
        e(f"v_max3_u32 v{tmp1}, v{tmp1}, v{rest[i]}, v{rest[i+1]}")
    if len(rest) % 2: e(f"v_max_u32 v{tmp1}, v{tmp1}, v{rest[-1]}")
    e(f"v_cmp_eq_u32 vcc, -1, v{tmp1}")
    e("s_cmp_eq_u64 vcc, 0")
    e(f"s_cbranch_scc1 {okl}")
    e(f"s_add_u32 {cnt}, {cnt}, 1")
    e(f"s_cmp_lt_u32 {cnt}, {SPIN_LIMIT}")
    e(f"s_cbranch_scc1 {retry_l}")

e(f"""; Fused decode kernel: LN -> (GQA sliding-window attention + Wo) + (GELU FFN) + residual
; @launch grid=(256,1,1) block=({NWAVES*64},1,1) lds={LDS_BYTES}
.amdgcn_target "amdgcn-amd-amdhsa--gfx950"
.text
.globl {NAME}_kernel
.p2align 8
.type {NAME}_kernel,@function
{NAME}_kernel:""")
e("s_cmp_ge_u32 s2, 256")
e("s_cbranch_scc1 L_end")
e("v_lshrrev_b32 v1, 6, v0")
e("v_and_b32 v0, 63, v0")
e(f"v_readfirstlane_b32 {sWV}, v1")
if WINL:
    e(f"s_cmp_lg_u32 {sWV}, 10")
    e("s_cbranch_scc1 L_noinit")
    if EARLYPF:
        e("s_getpc_b64 s[86:87]")
        lab("L_pc_here")
        e(f"s_sub_u32 s86, s86, L_pc_here-{NAME}_kernel")
        e("s_subb_u32 s87, s87, 0")
        e(f"s_lshr_b32 {sT0}, s2, 3")
        for _ in range(2):
            e(f"s_cmp_ge_u32 {sT0}, {CODE_CHUNKS}")
            e(f"s_cselect_b32 {sT1}, {CODE_CHUNKS}, 0")
            e(f"s_sub_u32 {sT0}, {sT0}, {sT1}")
        e(f"s_lshl_b32 {sT0}, {sT0}, 10")
        e("v_lshlrev_b32 v2, 4, v0")
        e(f"v_add_u32 v2, {sT0}, v2")
        e("global_load_dwordx4 v[16:19], v2, s[86:87]")
    e("v_lshlrev_b32 v2, 2, v0")
    e("v_mov_b32 v3, 0")
    e("ds_write_b32 v2, v3")
    e("s_waitcnt lgkmcnt(0)")
    lab("L_noinit")
else:
    e(f"s_cmp_eq_u32 {sWV}, 10")
    e("s_cbranch_scc1 L_winit")
def kernarg_loads():
    e("s_load_dwordx16 s[16:31], s[0:1], 0")
    e("s_load_dwordx8 s[32:39], s[0:1], 64")
    e("s_load_dwordx2 s[40:41], s[0:1], 96")
kernarg_loads()
stamp(0)
e("s_barrier")
zero_stamps()
e(f"s_and_b32 {sH}, s2, 7")
e(f"s_lshr_b32 {sJ}, s2, 3")
e(f"s_mov_b32 {sSELLO}, 0x05040100")
e(f"s_mov_b32 {sSELHI}, 0x07060302")
e(f"s_cmp_lg_u32 {sWV}, 0")
e("s_cbranch_scc1 L_others")

lab("L_roleQ")
e("s_setprio 3")
XD = 8; FX = 12; TD = 24; TB = 88; TDA = 120; TA = 152
e("v_mov_b32 v3, 0")
e("v_lshlrev_b32 v4, 4, v0")
e("v_lshrrev_b32 v5, 3, v0")
e("v_min_u32 v6, 5, v5")
e("v_and_b32 v7, 7, v0")
e("v_lshlrev_b32 v7, 4, v7")
e("v_lshl_add_u32 v5, v5, 16, v7")
e("v_lshl_add_u32 v6, v6, 16, v7")
e(f"s_lshr_b32 {sU4}, {sJ}, 3")
e(f"s_mul_i32 {sU2}, {sU4}, {112*8192}")
e(f"s_lshl_b32 {sT1}, {sH}, 10")
e(f"s_add_u32 {sU2}, {sU2}, {sT1}")
e(f"s_and_b32 {sT1}, {sJ}, 7")
e(f"s_lshl_b32 {sT1}, {sT1}, 7")
e(f"s_add_u32 {sU2}, {sU2}, {sT1}")
e("s_waitcnt lgkmcnt(0)")
mk_srd(SRD_A, pX, 896)
mk_srd(SRD_B, pWQ, 448*8192)
e(f"buffer_load_dwordx4 v[{XD}:{XD+3}], v4, {srd(SRD_A)}, 0 offen")
for s in range(2):
    for r in range(8):
        q = TD+32*s+4*r
        e(f"s_add_u32 {sT1}, {sU2}, {(64*s+r)*8192}")
        e(f"buffer_load_dwordx4 v[{q}:{q+3}], v{5+s}, {srd(SRD_B)}, {sT1} offen nt")
e("v_mov_b32 v2, 1")
lds_signal(F_QLD, 3, 2)
e(f"s_load_dword {sTAG}, s[{pWS}:{pWS+1}], 0")
mk_srd(SRD_WS, pWS, WS_SIZE)
stamp(1)
e(f"s_getreg_b32 {sU0}, hwreg(HW_REG_XCC_ID, 0, 3)")
e("s_waitcnt vmcnt(16)")
stamp(2)
for k in range(4):
    e(f"v_lshlrev_b32 v{FX+2*k}, 16, v{XD+k}")
    e(f"v_and_b32 v{FX+2*k+1}, 0xffff0000, v{XD+k}")
e(f"v_add_f32 v2, v{FX}, v{FX+1}")
for k in range(2, 8):
    e(f"v_add_f32 v2, v2, v{FX+k}")
allreduce("v_add_f32", 2, 3)
e(f"v_mul_f32 v2, {f2h(1.0/448)}, v2")
e(f"v_sub_f32 v6, v{FX}, v2")
e("v_mul_f32 v7, v6, v6")
for k in range(1, 8):
    e(f"v_sub_f32 v6, v{FX+k}, v2")
    e("v_fmac_f32 v7, v6, v6")
e("v_cmp_gt_u32 vcc, 56, v0")
e("s_nop 1")
e("v_cndmask_b32 v7, 0, v7, vcc")
allreduce("v_add_f32", 7, 3)
e(f"v_mul_f32 v7, {f2h(1.0/448)}, v7")
bf16r(2, 2)
bf16r(7, 7)
e("v_add_f32 v7, 0x3727c5ac, v7")
bf16r(7, 7)
e("v_sqrt_f32 v7, v7")
e("s_nop 0")
bf16r(7, 7)
e("v_rcp_f32 v7, v7")
for k in range(4):
    e(f"v_sub_f32 v{FX+2*k}, v{FX+2*k}, v2")
    e(f"v_sub_f32 v{FX+2*k+1}, v{FX+2*k+1}, v2")
    e(f"v_cvt_pk_bf16_f32 v6, v{FX+2*k}, v{FX+2*k+1}")
    e(f"v_lshlrev_b32 v{FX+2*k}, 16, v6")
    e(f"v_and_b32 v{FX+2*k+1}, 0xffff0000, v6")
    e(f"v_mul_f32 v{FX+2*k}, v{FX+2*k}, v7")
    e(f"v_mul_f32 v{FX+2*k+1}, v{FX+2*k+1}, v7")
    e(f"v_cvt_pk_bf16_f32 v{XD+k}, v{FX+2*k}, v{FX+2*k+1}")
    e(f"v_cndmask_b32 v{XD+k}, 0, v{XD+k}, vcc")
e(f"ds_write_b128 v4, v[{XD}:{XD+3}] offset:{L_XN}")
e("v_mov_b32 v3, 0")
e("v_mov_b32 v6, 1")
lds_signal(F_XN, 3, 6)
e("v_bfe_u32 v2, v0, 1, 1")
e("v_lshrrev_b32 v7, 4, v0")
e("v_lshl_add_u32 v2, v7, 1, v2")
e("v_lshlrev_b32 v2, 4, v2")
e(f"s_mul_i32 {sT0}, {sU4}, 224")
e(f"v_add_u32 v2, {sT0}, v2")
e(f"ds_read_b128 v[{TA}:{TA+3}], v2 offset:{L_XN}")
e(f"ds_read_b128 v[{TA+4}:{TA+7}], v2 offset:{L_XN+128}")
e("v_cmp_gt_u32 vcc, 48, v0")
e("s_waitcnt lgkmcnt(0)")
for k in range(4):
    e(f"v_cndmask_b32 v{TA+4+k}, 0, v{TA+4+k}, vcc")
stamp(3)
e("s_waitcnt vmcnt(8)")
if not WQAF:
    e("v_mov_b32 v6, 1")
    lds_signal(F_WQA, 3, 6)
transpose_set(TD, TB)
e("s_nop 1")
mfma_set(TDA, TA, TB, True)
transpose_set(TD+32, TB, waits=[6, 4, 2, 0])
e("s_nop 1")
mfma_set(TDA, TA+4, TB, False)
mk_tag()
e(f"s_or_b32 {sU1}, {sTAG}, {sU0}")
e(f"v_mov_b32 v9, {sU1}")
e(f"s_mul_i32 {sT0}, {sH}, 12288")
e(f"s_add_u32 {sU3}, {sT0}, {W_QMB}")
e(f"s_mul_i32 {sT1}, {sJ}, 384")
e(f"s_add_u32 {sU2}, {sU3}, {sT1}")
G = 12
tile_out_granules(TDA, G, 9)
publish_granules(G, 4, sU2, False)
stamp(4)
e("v_lshrrev_b32 v2, 3, v0")
e("v_mul_u32_u24 v2, 384, v2")
e("v_and_b32 v7, 7, v0")
e("v_lshl_add_u32 v2, v7, 4, v2")
e(f"v_mov_b32 v10, {sTAG}")
e(f"v_mov_b32 v11, {sU1}")
e(f"s_mov_b32 {sU5}, 0")
e(f"s_mov_b32 {sU0}, 0")
GD = 24
lds_wait(F_KHALF, 4, 3, 7)
stamp(5)
lab("L_qpoll")
e(f"s_cmp_ge_u32 {sU5}, {NTRY}")
e(f"s_cselect_b32 {sT2}, {sU5}, 0")
e(f"s_and_b32 {sT2}, {sT2}, 1")
e(f"s_mul_i32 {sT2}, {sT2}, {W_BOFF}")
e(f"s_add_u32 {sT0}, {sT2}, {sU3}")
for rq in range(4):
    e(f"s_add_u32 {sT1}, {sT0}, {3072*rq}")
    for k in range(3):
        r = GD+12*rq+4*k
        e(f"buffer_load_dwordx4 v[{r}:{r+3}], v2, {srd(SRD_WS)}, {sT1} offen offset:{128*k} sc1")
e(f"s_cmp_lg_u32 {sU5}, 0")
e("s_cbranch_scc1 L_q_nosig")
e("v_mov_b32 v6, 1")
lds_signal(F_QISS, 3, 6)
lab("L_q_nosig")
e("s_waitcnt vmcnt(0)")
e(f"v_xor_b32 v6, v{GD+3}, v10")
for i in range(1, 12):
    e(f"v_xor_b32 v7, v{GD+4*i+3}, v10")
    e("v_or_b32 v6, v6, v7")
e("v_cmp_lt_u32 vcc, 7, v6")
e("s_cmp_eq_u64 vcc, 0")
e("s_cbranch_scc1 L_qgot")
e(f"s_add_u32 {sU5}, {sU5}, 1")
e(f"s_cmp_lg_u32 {sU5}, {NTRY}")
e("s_cbranch_scc1 L_q_nob")
def q_pub_b():
    publish_granules(G, 4, sU2, True)
    e(f"s_mov_b32 {sU0}, 1")
q_pub_b()
lab("L_q_nob")
e(f"s_cmp_lt_u32 {sU5}, {SPIN_LIMIT}")
e("s_cbranch_scc1 L_qpoll")
lab("L_qgot")
e(f"v_xor_b32 v5, v{GD+3}, v11")
for rq in range(1, 4):
    e(f"v_xor_b32 v6, v{GD+12*rq+3}, v11")
    e("v_or_b32 v5, v5, v6")
for i in range(8):
    p = GPOS[i]
    e(f"v_add_f32 v{GD+p}, v{GD+p}, v{GD+12+p}")
    e(f"v_add_f32 v{GD+24+p}, v{GD+24+p}, v{GD+36+p}")
for i in range(8):
    p = GPOS[i]
    e(f"v_add_f32 v{GD+p}, v{GD+p}, v{GD+24+p}")
for k in range(4):
    e(f"v_cvt_pk_bf16_f32 v{GD+12+k}, v{GD+GPOS[2*k]}, v{GD+GPOS[2*k+1]}")
e(f"ds_write_b128 v4, v[{GD+12}:{GD+15}] offset:{L_Q}")
e("v_cmp_ne_u32 vcc, 0, v5")
e("s_cmp_eq_u64 vcc, 0")
e(f"s_cselect_b32 {sT0}, 2, 1")
e(f"v_mov_b32 v6, {sT0}")
e("s_mov_b64 exec, 1")
e(f"ds_write_b32 v3, v6 offset:{F_QRDY}")
e("s_mov_b64 exec, -1")
stamp(6)
e(f"s_cmp_lg_u32 {sU0}, 0")
e("s_cbranch_scc1 L_q_bdone2")
q_pub_b()
lab("L_q_bdone2")
ROLE[0]="Q"
stamps_out(7, sU5)
e("s_endpgm")

lab("L_others")
if WINL:
    e(f"s_cmp_eq_u32 {sWV}, 10")
    e("s_cbranch_scc1 L_roleW")
e(f"s_cmp_eq_u32 {sWV}, 9")
e("s_cbranch_scc1 L_roleF")
common_scalars()
e(f"s_cmp_ge_u32 {sWV}, 5")
e("s_cbranch_scc1 L_roleV")
lab("L_roleK")
KD = 16; QF = 80; KA = 96
e(f"s_sub_u32 {sU0}, {sWV}, 1")
e(f"s_and_b32 {sT0}, {sX7}, 7")
e("v_and_b32 v2, 7, v0")
e(f"v_xor_b32 v2, {sT0}, v2")
e("v_lshlrev_b32 v2, 9, v2")
e("v_lshrrev_b32 v3, 3, v0")
e("v_lshl_or_b32 v2, v3, 4, v2")
e("v_mov_b32 v4, 0")
e("v_mov_b32 v5, 1")
e("v_and_b32 v6, 1, v0")
e("v_lshlrev_b32 v6, 9, v6")
e("v_bfe_u32 v7, v0, 1, 1")
e("v_lshrrev_b32 v8, 4, v0")
e("v_lshl_add_u32 v7, v8, 1, v7")
e("v_lshl_add_u32 v6, v7, 4, v6")
e("v_bfe_u32 v9, v0, 1, 1")
e("v_lshlrev_b32 v9, 10, v9")
e("v_and_b32 v10, 1, v0")
e("v_lshl_or_b32 v9, v10, 9, v9")
e("v_bfe_u32 v10, v0, 4, 1")
e("v_lshl_or_b32 v9, v10, 4, v9")
e(f"s_lshl_b32 {sT0}, {sU0}, 7")
e(f"v_add_u32 v9, {sT0}, v9")
e(f"s_and_b32 {sU1}, {sX7}, 0x78")
e(f"s_lshl_b32 {sU2}, {sU0}, 5")
kv_off()
e(f"s_mov_b32 {sU3}, {sT0}")
e("s_waitcnt lgkmcnt(0)")
mk_srd(SRD_A, pK, 65536, add_lo=sU3)
mk_srd(SRD_WS, pWS, WS_SIZE)
stamp(1)
if PRESO:
    for rgp in range(4):
        e(f"s_add_u32 {sT2}, {sU2}, {8*rgp}")
        e(f"s_xor_b32 {sT2}, {sT2}, {sU1}")
        e(f"s_lshl_b32 {sT2}, {sT2}, 9")
        for u in range(4):
            e(f"s_xor_b32 {sT1}, {sXS}, {u}")
            e(f"s_lshl_b32 {sT1}, {sT1}, 7")
            e(f"s_or_b32 s{16+4*rgp+u}, {sT1}, {sT2}")
    lds_wait(F_WQA, 1, 4, 11)
    if SHARE: lab("L_issue16")
    for i in range(16):
        r = KD+4*i
        if i >= KWIN: e(f"s_waitcnt vmcnt({KWIN-1})")
        e(f"buffer_load_dwordx4 v[{r}:{r+3}], v2, {srd(SRD_A)}, s{16+i} offen nt")
    if SHARE:
        e(f"s_cmp_ge_u32 {sWV}, 9")
        e("s_cbranch_scc1 L_w_issued")
        e(f"s_cmp_ge_u32 {sWV}, 5")
        e("s_cbranch_scc1 L_v_issued")
else:
    for rgp in range(4):
        e(f"s_add_u32 {sT2}, {sU2}, {8*rgp}")
        e(f"s_xor_b32 {sT2}, {sT2}, {sU1}")
        e(f"s_lshl_b32 {sT2}, {sT2}, 9")
        for u in range(4):
            e(f"s_xor_b32 {sT1}, {sXS}, {u}")
            e(f"s_lshl_b32 {sT1}, {sT1}, 7")
            e(f"s_or_b32 {sT1}, {sT1}, {sT2}")
            r = KD+16*rgp+4*u
            if 4*rgp+u == KEARLY:
                e(f"s_mov_b32 {sT3}, {sT1}")
                lds_wait(F_WQA, 1, 4, 11)
                e(f"s_mov_b32 {sT1}, {sT3}")
            if 4*rgp+u >= KWIN: e(f"s_waitcnt vmcnt({KWIN-1})")
            e(f"buffer_load_dwordx4 v[{r}:{r+3}], v2, {srd(SRD_A)}, {sT1} offen nt")
lds_signal(F_KISS, 4, 5)
e(f"s_load_dword {sTAG}, s[{pWS}:{pWS+1}], 0")
e(f"s_waitcnt vmcnt({KTRIG})")
lds_signal(F_KHALF, 4, 5)
stamp(2)
if PROFILE:
    e("s_waitcnt vmcnt(0)")
    e(f"s_memrealtime s[{sSTAMP+2}:{sSTAMP+3}]")
lds_wait(F_QRDY, 1, 4, 11)
e(f"s_mov_b32 {sFAST}, {sT0}")
for u in range(4):
    e(f"s_xor_b32 {sT1}, {sXS}, {u}")
    e(f"s_lshl_b32 {sT1}, {sT1}, 7")
    e(f"s_add_u32 {sT1}, {sT1}, {L_Q}")
    e(f"v_add_u32 v11, {sT1}, v6")
    e(f"ds_read_b128 v[{QF+4*u}:{QF+4*u+3}], v11")
e("s_waitcnt vmcnt(0) lgkmcnt(0)")
for u in range(4):
    for rgp in range(4):
        r = KD+16*rgp+4*u
        c = "0" if u == 0 else f"v[{KA+4*rgp}:{KA+4*rgp+3}]"
        e(f"v_mfma_f32_16x16x32_bf16 v[{KA+4*rgp}:{KA+4*rgp+3}], v[{r}:{r+3}], v[{QF+4*u}:{QF+4*u+3}], {c}")
e("s_nop 7")
e("s_mov_b32 exec_lo, 0x00030003")
e("s_mov_b32 exec_hi, 0x000C000C")
for rgp in range(4):
    e(f"ds_write_b128 v9, v[{KA+4*rgp}:{KA+4*rgp+3}] offset:{L_SC+32*rgp}")
e("s_mov_b64 exec, -1")
lds_signal(F_SDONE, 4, 5)
stamp(3)
def reduce32(op, a, t):
    for r in (8, 4, 2, 1):
        e("s_nop 1")
        e(f"{op}_dpp v{a}, v{a}, v{a} row_ror:{r} row_mask:0xf bank_mask:0xf")
    e(f"v_mov_b32 v{t}, v{a}")
    e("s_nop 1")
    e(f"v_permlane16_swap_b32 v{a}, v{t}")
    e("s_nop 1")
    e(f"{op} v{a}, v{a}, v{t}")
e(f"s_cmp_lg_u32 {sU0}, 0")
e("s_cbranch_scc1 L_k_nosoft")
e("v_lshrrev_b32 v6, 5, v0")
e("v_and_b32 v7, 31, v0")
e("v_lshlrev_b32 v8, 9, v6")
e("v_lshl_add_u32 v8, v7, 4, v8")
e("v_lshlrev_b32 v9, 8, v6")
e("v_lshl_add_u32 v16, v7, 3, v9")
C_EXP = 0.0625*1.4426950408889634
e(f"s_mov_b32 {sT2}, {f2h(C_EXP)}")
e(f"s_lshl_b32 {sT1}, {sH}, 9")
e(f"s_lshl_b32 {sT3}, {sJ}, 3")
e(f"s_add_u32 {sT1}, {sT1}, {sT3}")
e(f"s_add_u32 {sU1}, {sT1}, {W_ML}")
lds_wait(F_SDONE, 4, 4, 11, sleep=0)
e(f"ds_read_b128 v[20:23], v8 offset:{L_SC}")
e(f"ds_read_b128 v[24:27], v8 offset:{L_SC+1024}")
e("s_waitcnt lgkmcnt(0)")
for k in range(4): e(f"v_add_f32 v{20+k}, v{20+k}, v{24+k}")
e("v_cvt_pk_bf16_f32 v24, v20, v21")
e("v_cvt_pk_bf16_f32 v25, v22, v23")
e("v_lshlrev_b32 v20, 16, v24")
e("v_and_b32 v21, 0xffff0000, v24")
e("v_lshlrev_b32 v22, 16, v25")
e("v_and_b32 v23, 0xffff0000, v25")
e("v_max3_f32 v10, v20, v21, v22")
e("v_max_f32 v10, v10, v23")
reduce32("v_max_f32", 10, 11)
for k in range(4): e(f"v_sub_f32 v{20+k}, v{20+k}, v10")
for k in range(4): e(f"v_mul_f32 v{20+k}, {sT2}, v{20+k}")
for k in range(4): e(f"v_exp_f32 v{20+k}, v{20+k}")
e("s_nop 0")
e("v_cvt_pk_bf16_f32 v24, v20, v21")
e("v_cvt_pk_bf16_f32 v25, v22, v23")
e(f"ds_write_b64 v16, v[24:25] offset:{L_P}")
lds_signal(F_PRDY, 4, 5)
e("v_add_f32 v11, v20, v21")
e("v_add_f32 v12, v22, v23")
e("v_add_f32 v11, v11, v12")
reduce32("v_add_f32", 11, 12)
e(f"v_mul_f32 v10, {sT2}, v10")
e("s_mov_b32 exec_lo, 1")
e("s_mov_b32 exec_hi, 1")
e(f"s_cmp_eq_u32 {sFAST}, 2")
e("s_cbranch_scc1 L_k_mlfast")
e(f"buffer_store_dwordx2 v[10:11], v9, {srd(SRD_WS)}, {sU1} offen sc1")
e("s_branch L_k_mldone")
lab("L_k_mlfast")
e(f"buffer_store_dwordx2 v[10:11], v9, {srd(SRD_WS)}, {sU1} offen")
lab("L_k_mldone")
e("s_mov_b64 exec, -1")
if PROFILE: e(f"s_memrealtime s[{sSTAMP+4}:{sSTAMP+5}]")
lab("L_k_nosoft")
e(f"s_cmp_ge_u32 {sJ}, 28")
e("s_cbranch_scc1 L_k_end")
e(f"s_and_b32 {sU1}, {sJ}, 3")
mk_tag()
e(f"v_mov_b32 v12, {sTAG}")
e("v_and_b32 v13, 31, v0")
e("v_lshlrev_b32 v13, 2, v13")
e(f"s_lshl_b32 {sT0}, {sH}, 7")
e(f"s_add_u32 {sU2}, {sT0}, {W_READY}")
e("v_lshlrev_b32 v14, 1, v13")
e(f"s_lshr_b32 {sT0}, {sU1}, 1")
e(f"s_lshl_b32 {sT1}, {sH}, 1")
e(f"s_add_u32 {sT0}, {sT0}, {sT1}")
e(f"s_lshl_b32 {sT0}, {sT0}, 8")
e(f"s_add_u32 {sU4}, {sT0}, {W_ML}")
e("v_lshrrev_b32 v15, 3, v0")
e("v_lshlrev_b32 v16, 11, v15")
e("v_and_b32 v17, 7, v0")
e("v_lshl_add_u32 v16, v17, 4, v16")
e(f"s_lshl_b32 {sT0}, {sH}, 16")
e(f"s_lshl_b32 {sT1}, {sU1}, 9")
e(f"s_add_u32 {sT0}, {sT0}, {sT1}")
e(f"s_lshl_b32 {sT1}, {sU0}, 7")
e(f"s_add_u32 {sT0}, {sT0}, {sT1}")
e(f"s_add_u32 {sU5}, {sT0}, {W_OP}")
e("v_lshlrev_b32 v15, 2, v15")
e("v_lshlrev_b32 v18, 2, v17")
e("v_bfe_u32 v19, v0, 5, 1")
e("v_lshl_add_u32 v18, v19, 1, v18")
e("v_bfe_u32 v19, v0, 4, 1")
e("v_add_u32 v18, v18, v19")
e("v_lshlrev_b32 v18, 1, v18")
e(f"s_lshl_b32 {sT0}, {sU0}, 6")
e(f"v_add_u32 v18, {sT0}, v18")
e(f"s_mov_b32 {sCNT}, 0")
lab("L_k_rdy")
e(f"buffer_load_dword v20, v13, {srd(SRD_WS)}, {sU2} offen sc1")
e("s_waitcnt vmcnt(0)")
e("v_xor_b32 v20, v20, v12")
e("v_cmp_lt_u32 vcc, 7, v20")
e("s_cmp_eq_u64 vcc, 0")
e("s_cbranch_scc1 L_k_rdy_ok")
e("s_sleep 4")
e(f"s_add_u32 {sCNT}, {sCNT}, 1")
e(f"s_cmp_lt_u32 {sCNT}, {SPIN_LIMIT}")
e("s_cbranch_scc1 L_k_rdy")
lab("L_k_rdy_ok")
if OPIPE:
    if MLEARLY:
        lds_wait(F_PRDY, 1, 4, 11)
        e(f"s_sleep {MLD}")
    else:
        lds_wait(F_VISS, 4, 4, 11)
    e(f"s_mov_b32 {sCNT}, 0")
    e(f"buffer_load_dwordx2 v[20:21], v14, {srd(SRD_WS)}, {sU4} offen sc1")
    e("s_sleep 12")
    e(f"buffer_load_dwordx2 v[48:49], v14, {srd(SRD_WS)}, {sU4} offen sc1")
    lab("L_mlpoll")
    e("s_waitcnt vmcnt(1)")
    e("v_max_u32 v22, v20, v21")
    e("v_cmp_eq_u32 vcc, -1, v22")
    e("s_cmp_eq_u64 vcc, 0")
    e("s_cbranch_scc1 L_mlgot")
    e(f"buffer_load_dwordx2 v[20:21], v14, {srd(SRD_WS)}, {sU4} offen sc1")
    e("s_waitcnt vmcnt(1)")
    e("v_max_u32 v22, v48, v49")
    e("v_cmp_eq_u32 vcc, -1, v22")
    e("s_cmp_eq_u64 vcc, 0")
    e("s_cbranch_scc1 L_mlgot2")
    e(f"buffer_load_dwordx2 v[48:49], v14, {srd(SRD_WS)}, {sU4} offen sc1")
    e(f"s_add_u32 {sCNT}, {sCNT}, 1")
    e(f"s_cmp_lt_u32 {sCNT}, {SPIN_LIMIT}")
    e("s_cbranch_scc1 L_mlpoll")
    lab("L_mlgot2")
    e("s_waitcnt vmcnt(0)")
    e("v_mov_b32 v20, v48")
    e("v_mov_b32 v21, v49")
    lab("L_mlgot")
    e("s_waitcnt vmcnt(0)")
    stamp(4)
    e("v_mov_b32 v22, v20")
    reduce32("v_max_f32", 22, 23)
    e("v_sub_f32 v20, v20, v22")
    e("v_exp_f32 v20, v20")
    e("s_nop 0")
    e("v_mul_f32 v21, v20, v21")
    reduce32("v_add_f32", 21, 23)
    e("v_rcp_f32 v21, v21")
    e("s_nop 0")
    e("v_mul_f32 v20, v20, v21")
    for u in range(4):
        e(f"v_add_u32 v23, {32*u}, v15")
        e(f"ds_bpermute_b32 v{24+u}, v23, v20")
    lds_wait(F_VDONE, 4, 4, 11, sleep=0)
    e(f"s_mov_b32 {sCNT}, 0")
    OGS = [32, 48]
    def o_issue(bi):
        for u in range(4):
            e(f"s_add_u32 {sT1}, {sU5}, {8*2048*u}")
            e(f"buffer_load_dwordx4 v[{OGS[bi]+4*u}:{OGS[bi]+4*u+3}], v16, {srd(SRD_WS)}, {sT1} offen sc1")
    o_issue(0)
    e(f"s_sleep {OSL}")
    o_issue(1)
    lab("L_opoll")
    for bi in range(2):
        OG = OGS[bi]
        for u in range(4):
            e(f"s_waitcnt vmcnt({4+3-u})")
            for d in range(4):
                if u == 0: e(f"v_mul_f32 v{28+d}, v24, v{OG+d}")
                else: e(f"v_fmac_f32 v{28+d}, v{24+u}, v{OG+4*u+d}")
        e("v_add_f32 v22, v28, v29")
        e("v_add_f32 v22, v22, v30")
        e("v_add_f32 v22, v22, v31")
        e("v_cmp_u_f32 vcc, v22, v22")
        e("s_cmp_eq_u64 vcc, 0")
        e("s_cbranch_scc1 L_ogot")
        e(f"v_max_u32 v22, v{OG}, v{OG+1}")
        for i in range(2, 16, 2):
            e(f"v_max3_u32 v22, v22, v{OG+i}, v{OG+i+1}")
        e("v_cmp_eq_u32 vcc, -1, v22")
        e("s_cmp_eq_u64 vcc, 0")
        e("s_cbranch_scc1 L_ogot")
        o_issue(bi)
    e(f"s_add_u32 {sCNT}, {sCNT}, 1")
    e(f"s_cmp_lt_u32 {sCNT}, {SPIN_LIMIT}")
    e("s_cbranch_scc1 L_opoll")
else:
    lds_wait(F_VDONE, 4, 4, 11, sleep=0)
    e(f"s_mov_b32 {sCNT}, 0")
    OG = 32
    lab("L_opoll")
    e(f"buffer_load_dwordx2 v[20:21], v14, {srd(SRD_WS)}, {sU4} offen sc1")
    for u in range(4):
        e(f"s_add_u32 {sT1}, {sU5}, {8*2048*u}")
        e(f"buffer_load_dwordx4 v[{OG+4*u}:{OG+4*u+3}], v16, {srd(SRD_WS)}, {sT1} offen sc1")
    e("s_waitcnt vmcnt(4)")
    e("v_max_u32 v22, v20, v21")
    e("v_cmp_eq_u32 vcc, -1, v22")
    e("s_cmp_eq_u64 vcc, 0")
    e("s_cbranch_scc1 L_mlgot")
    e("s_waitcnt vmcnt(0)")
    e(f"s_add_u32 {sCNT}, {sCNT}, 1")
    e(f"s_cmp_lt_u32 {sCNT}, {SPIN_LIMIT}")
    e("s_cbranch_scc1 L_opoll")
    lab("L_mlgot")
    stamp(4)
    e("v_mov_b32 v22, v20")
    reduce32("v_max_f32", 22, 23)
    e("v_sub_f32 v20, v20, v22")
    e("v_exp_f32 v20, v20")
    e("s_nop 0")
    e("v_mul_f32 v21, v20, v21")
    reduce32("v_add_f32", 21, 23)
    e("v_rcp_f32 v21, v21")
    e("s_nop 0")
    e("v_mul_f32 v20, v20, v21")
    for u in range(4):
        e(f"v_add_u32 v23, {32*u}, v15")
        e(f"ds_bpermute_b32 v{24+u}, v23, v20")
    e("s_waitcnt vmcnt(0) lgkmcnt(0)")
    for u in range(4):
        for d in range(4):
            if u == 0: e(f"v_mul_f32 v{28+d}, v24, v{OG+d}")
            else: e(f"v_fmac_f32 v{28+d}, v{24+u}, v{OG+4*u+d}")
    nan_or_sentinel_check([28, 29, 30, 31], list(range(OG, OG+16)), "L_ogot", "L_opoll", sCNT, 22, 23)
lab("L_ogot")
stamp(5)
e("v_permlane32_swap_b32 v28, v30")
e("v_permlane32_swap_b32 v29, v31")
e("s_nop 1")
e("v_add_f32 v28, v28, v30")
e("v_add_f32 v29, v29, v31")
e("s_nop 1")
e("v_permlane16_swap_b32 v28, v29")
e("s_nop 1")
e("v_add_f32 v28, v28, v29")
e("s_nop 1")
e("v_add_f32_dpp v28, v28, v28 row_ror:8 row_mask:0xf bank_mask:0xf")
e("v_cvt_pk_bf16_f32 v28, v28, v28")
e(f"ds_write_b16 v18, v28 offset:{L_OL}")
lds_signal(F_ORDY, 4, 5)
stamp(6)
lab("L_k_end")
ROLE[0]="K"
stamps_out(7, sCNT)
e("s_endpgm")

lab("L_roleV")
VD = 16; BF = 80; DA = 112; AF = 144; SCR = 80
e(f"s_sub_u32 {sU0}, {sWV}, 5")
e(f"s_xor_b32 {sU3}, {sU0}, {sXW}")
e(f"s_and_b32 {sT0}, {sX7}, 0x38")
e("v_and_b32 v2, 0x38, v0")
e(f"v_xor_b32 v2, {sT0}, v2")
e("v_lshlrev_b32 v2, 9, v2")
e("v_and_b32 v3, 7, v0")
e("v_lshl_or_b32 v2, v3, 4, v2")
e(f"s_lshl_b32 {sT0}, {sU3}, 7")
e(f"v_add_u32 v2, {sT0}, v2")
e("v_mov_b32 v4, 0")
e("v_mov_b32 v5, 1")
e("v_and_b32 v6, 1, v0")
e("v_lshlrev_b32 v6, 9, v6")
e("v_bfe_u32 v7, v0, 1, 1")
e("v_lshrrev_b32 v8, 4, v0")
e("v_lshl_add_u32 v7, v8, 1, v7")
e("v_lshl_add_u32 v6, v7, 5, v6")
e("v_and_b32 v9, 7, v0")
e("v_lshlrev_b32 v9, 5, v9")
e(f"s_lshl_b32 {sT0}, {sU3}, 8")
e(f"v_add_u32 v9, {sT0}, v9")
e(f"s_lshl_b32 {sT0}, {sH}, 5")
e(f"s_add_u32 {sT0}, {sT0}, {sJ}")
e(f"s_lshl_b32 {sT0}, {sT0}, 11")
e(f"s_add_u32 {sU2}, {sT0}, {W_OP}")
e(f"s_and_b32 {sU1}, {sX7}, 0x47")
kv_off()
e(f"s_mov_b32 {sU4}, {sT0}")
e("s_waitcnt lgkmcnt(0)")
mk_srd(SRD_A, pV, 65536, add_lo=sU4)
mk_srd(SRD_WS, pWS, WS_SIZE)
e(f"s_load_dword {sTAG}, s[{pWS}:{pWS+1}], 0")
e(f"s_lshl_b32 {sT0}, {sH}, 2")
e(f"s_add_u32 {sT0}, {sT0}, {sU3}")
e(f"s_lshl_b32 {sT0}, {sT0}, 7")
e(f"s_lshl_b32 {sT1}, {sJ}, 2")
e(f"s_add_u32 {sT0}, {sT0}, {sT1}")
e(f"s_add_u32 {sU5}, {sT0}, {W_OF}")
if PRESO:
    for s in range(2):
        for r in range(8):
            e(f"s_xor_b32 {sT1}, {sU1}, {r | (s << 6)}")
            e(f"s_lshl_b32 s{16+8*s+r}, {sT1}, 9")
    lds_wait(F_QISS, 1, 4, 11)
    stamp(1)
    if SHARE:
        assert KWIN == VWIN
        e("s_branch L_issue16")
        lab("L_v_issued")
    else:
        for i in range(16):
            q = VD+4*i
            if i >= VWIN: e(f"s_waitcnt vmcnt({VWIN-1})")
            e(f"buffer_load_dwordx4 v[{q}:{q+3}], v2, {srd(SRD_A)}, s{16+i} offen nt")
else:
    lds_wait(F_QISS, 1, 4, 11)
    stamp(1)
    for s in range(2):
        if s == 1 and VGATE: lds_wait(F_QRDY, 1, 4, 11)
        for r in range(8):
            e(f"s_xor_b32 {sT1}, {sU1}, {r | (s << 6)}")
            e(f"s_lshl_b32 {sT1}, {sT1}, 9")
            q = VD+32*s+4*r
            if 8*s+r >= VWIN: e(f"s_waitcnt vmcnt({VWIN-1})")
            e(f"buffer_load_dwordx4 v[{q}:{q+3}], v2, {srd(SRD_A)}, {sT1} offen nt")
lds_signal(F_VISS, 4, 5)
stamp(2)
BF1 = 112; DA = 16
mk_tag()
e(f"v_mov_b32 v13, {sTAG}")
e("v_and_b32 v10, 1, v0")
e("v_lshlrev_b32 v10, 8, v10")
e("v_bfe_u32 v11, v0, 1, 1")
e("v_lshrrev_b32 v14, 4, v0")
e("v_lshl_add_u32 v11, v14, 1, v11")
e("v_lshl_add_u32 v10, v11, 4, v10")
e("s_waitcnt vmcnt(8)")
transpose_set(VD, BF)
e(f"ds_read_b32 v11, v4 offset:{F_PRDY}")
e(f"ds_read_b32 v12, v4 offset:{F_QRDY}")
e(f"ds_read_b128 v[{AF}:{AF+3}], v10 offset:{L_P}")
e(f"ds_read_b128 v[{AF+4}:{AF+7}], v10 offset:{L_P+128}")
e("s_waitcnt lgkmcnt(0)")
e(f"v_readfirstlane_b32 {sU1}, v11")
e(f"v_readfirstlane_b32 {sFAST}, v12")
e(f"s_cmp_eq_u32 {sU1}, 0")
e("s_cbranch_scc1 L_v_late")
stamp(3)
mfma_set(DA, AF, BF, True)
transpose_set(VD+32, BF1, waits=[6, 4, 2, 0])
stamp(5)
e("s_branch L_v_m1")
lab("L_v_late")
transpose_set(VD+32, BF1, waits=[6, 4, 2, 0])
lds_wait(F_PRDY, 1, 4, 11, sleep=0)
e(f"ds_read_b32 v12, v4 offset:{F_QRDY}")
e(f"ds_read_b128 v[{AF}:{AF+3}], v10 offset:{L_P}")
e(f"ds_read_b128 v[{AF+4}:{AF+7}], v10 offset:{L_P+128}")
e("s_waitcnt lgkmcnt(0)")
e(f"v_readfirstlane_b32 {sFAST}, v12")
stamp(3)
mfma_set(DA, AF, BF, True)
stamp(5)
lab("L_v_m1")
e("s_nop 1")
mfma_set(DA, AF+4, BF1, False)
e("s_nop 3")
OO = 80
for rp in range(8):
    if rp == 7: e("s_nop 3")
    for hd in range(2):
        e(f"v_add_f32_dpp v{OO+8*hd+rp}, v{DA+4*rp+2+hd}, v{DA+4*rp+hd} row_shl:8 row_mask:0xf bank_mask:0xf")
e("s_mov_b64 exec, 0xff")
e(f"s_cmp_eq_u32 {sFAST}, 2")
e("s_cbranch_scc1 L_v_ofast")
for hd in range(2):
    for q in range(2):
        e(f"buffer_store_dwordx4 v[{OO+8*hd+4*q}:{OO+8*hd+4*q+3}], v9, {srd(SRD_WS)}, {sU2} offen offset:{1024*hd+16*q} sc1")
e("s_branch L_v_odone")
lab("L_v_ofast")
for hd in range(2):
    for q in range(2):
        e(f"buffer_store_dwordx4 v[{OO+8*hd+4*q}:{OO+8*hd+4*q+3}], v9, {srd(SRD_WS)}, {sU2} offen offset:{1024*hd+16*q}")
lab("L_v_odone")
if OHINT:
    e("s_mov_b64 exec, 1")
    e(f"s_cmp_eq_u32 {sFAST}, 2")
    e("s_cbranch_scc1 L_v_ffast")
    e(f"buffer_store_dword v13, v4, {srd(SRD_WS)}, {sU5} offen sc1")
    e("s_branch L_v_fdone")
    lab("L_v_ffast")
    e(f"buffer_store_dword v13, v4, {srd(SRD_WS)}, {sU5} offen")
    lab("L_v_fdone")
e("s_mov_b64 exec, -1")
lds_signal(F_VDONE, 4, 5)
stamp(6)
ROLE[0]="V"
stamps_out(7)
e("s_endpgm")

lab("L_roleF")
FD = 16; FB = 48; FDA = 80; FA_ = 112; FG = 116; F2D = 128
e(f"s_lshr_b32 {sT0}, {sJ}, 3")
e(f"s_lshl_b32 {sT0}, {sT0}, 3")
e(f"s_add_u32 {sU0}, {sT0}, {sH}")
e(f"s_and_b32 {sU1}, {sJ}, 7")
e(f"s_mul_i32 {sT0}, {sJ}, 37")
e(f"s_lshr_b32 {sT0}, {sT0}, 8")
e(f"s_mul_i32 {sT1}, {sT0}, 7")
e(f"s_sub_u32 {sU3}, {sJ}, {sT1}")
e(f"s_lshl_b32 {sT0}, {sT0}, 3")
e(f"s_add_u32 {sU2}, {sT0}, {sH}")
e("v_mov_b32 v4, 0")
e("v_mov_b32 v5, 1")
e("v_lshlrev_b32 v6, 4, v0")
e("v_lshrrev_b32 v2, 3, v0")
e("v_min_u32 v3, 6, v2")
e("v_mul_u32_u24 v3, 28672, v3")
e("v_and_b32 v7, 7, v0")
e("v_lshl_add_u32 v3, v7, 4, v3")
e("v_mul_u32_u24 v2, 7168, v2")
e("v_lshl_add_u32 v2, v7, 4, v2")
e("s_waitcnt lgkmcnt(0)")
mk_srd(SRD_WS, pWS, WS_SIZE)
mk_srd(SRD_A, pW1, 448*3584)
mk_srd(SRD_B, pW2, 1792*896)
mk_srd(SRD_C, pB1, 3584)
e(f"s_add_u32 {sT0}, {sU2}, 32")
e(f"s_lshl_b32 {sT0}, {sT0}, 11")
e(f"s_lshl_b32 {sT1}, {sU3}, 8")
e(f"s_add_u32 {sT0}, {sT0}, {sT1}")
e(f"s_add_u32 {sU4}, {sT0}, {W_AP}")
e("s_setprio 1")
e(f"s_mov_b32 {sU5}, 0")
e(f"s_cmp_ge_u32 {sU0}, 28")
e("s_cbranch_scc1 L_f_now1")
e(f"s_mul_i32 {sT0}, {sU1}, {56*3584}")
e(f"s_lshl_b32 {sT1}, {sU0}, 7")
e(f"s_add_u32 {sT0}, {sT0}, {sT1}")
for r in range(8):
    e(f"s_add_u32 {sT1}, {sT0}, {r*3584}")
    e(f"buffer_load_dwordx4 v[{FD+4*r}:{FD+4*r+3}], v3, {srd(SRD_A)}, {sT1} offen nt")
lab("L_f_now1")
e(f"s_load_dword {sTAG}, s[{pWS}:{pWS+1}], 0")
if WQAF:
    e(f"s_cmp_lt_u32 {sU0}, 28")
    e("s_cbranch_scc1 L_f_wq1")
    e(f"buffer_load_dword v12, v4, {srd(SRD_C)}, 0 offen")
    e("s_waitcnt vmcnt(0)")
    e("s_branch L_f_wq2")
    lab("L_f_wq1")
    e("s_waitcnt vmcnt(WQAN)".replace("WQAN", str(opt("wqan", 3))))
    lab("L_f_wq2")
    lds_signal(F_WQA, 4, 5)
e(f"s_cmp_ge_u32 {sU2}, 28")
e("s_cbranch_scc1 L_f_noclr")
for k in range(4): e(f"v_mov_b32 v{8+k}, -1")
e("s_mov_b64 exec, 0xffff")
if CLR != "none": e(f"buffer_store_dwordx4 v[8:11], v6, {srd(SRD_WS)}, {sU4} offen sc1")
e("s_mov_b64 exec, -1")
lab("L_f_noclr")
stamp(1)
def w2_loads():
    e(f"s_mul_i32 {sT0}, {sU2}, {64*896}")
    e(f"s_lshl_b32 {sT1}, {sU3}, 7")
    e(f"s_add_u32 {sT0}, {sT0}, {sT1}")
    for r in range(8):
        e(f"s_add_u32 {sT1}, {sT0}, {r*896}")
        e(f"buffer_load_dwordx4 v[{F2D+4*r}:{F2D+4*r+3}], v2, {srd(SRD_B)}, {sT1} offen nt")
    e("v_and_b32 v12, 7, v0")
    e("v_lshlrev_b32 v12, 4, v12")
    e("v_lshrrev_b32 v13, 4, v0")
    e("v_lshl_add_u32 v14, v13, 2, v12")
    e(f"s_lshl_b32 {sT0}, {sU2}, 7")
    e(f"v_add_u32 v15, {sT0}, v14")
    e(f"buffer_load_dword v8, v15, {srd(SRD_C)}, 0 offen")
e(f"s_cmp_ge_u32 {sU0}, 28")
e("s_cbranch_scc1 L_f_stage2")
lds_wait(F_XN, 1, 4, 11)
e("v_bfe_u32 v12, v0, 1, 1")
e("v_lshrrev_b32 v13, 4, v0")
e("v_lshl_add_u32 v12, v13, 1, v12")
e("v_cmp_gt_u32 vcc, 7, v12")
e("v_lshlrev_b32 v12, 4, v12")
e(f"s_mul_i32 {sT0}, {sU1}, 112")
e(f"v_add_u32 v12, {sT0}, v12")
e(f"ds_read_b128 v[{FA_}:{FA_+3}], v12 offset:{L_XN}")
e(f"s_cmp_ge_u32 {sU2}, 28")
e("s_cbranch_scc1 L_f_w0")
e("s_waitcnt vmcnt(1) lgkmcnt(0)")
e("s_branch L_f_w1")
lab("L_f_w0")
e("s_waitcnt vmcnt(0) lgkmcnt(0)")
lab("L_f_w1")
for k in range(4): e(f"v_cndmask_b32 v{FA_+k}, 0, v{FA_+k}, vcc")
transpose_set(FD, FB)
e("s_nop 1")
mfma_set(FDA, FA_, FB, True)
mk_tag()
e(f"v_mov_b32 v9, {sTAG}")
e(f"s_mul_i32 {sT0}, {sU0}, 3072")
e(f"s_mul_i32 {sT1}, {sU1}, 384")
e(f"s_add_u32 {sT0}, {sT0}, {sT1}")
e(f"s_add_u32 {sU5}, {sT0}, {W_HMB}")
tile_out_granules(FDA, FG, 9)
publish_granules(FG, 6, sU5, False)
e(f"s_mov_b32 s86, {sU5}")
e("s_mov_b32 s87, 0")
stamp(2)
e("s_waitcnt vmcnt(0)")
lds_signal(F_CLR, 4, 5)
e("s_branch L_f_stage2b")
lab("L_f_stage2")
e("s_mov_b32 s87, 1")
e("s_waitcnt vmcnt(0) lgkmcnt(0)")
lds_signal(F_CLR, 4, 5)
mk_tag()
def f_pub_b():
    L = uid("fb")
    e("s_cmp_lg_u32 s87, 0")
    e(f"s_cbranch_scc1 {L}")
    publish_granules(FG, 6, "s86", True)
    e("s_mov_b32 s87, 1")
    lab(L)
lab("L_f_stage2b")
e(f"s_cmp_ge_u32 {sU2}, 28")
e("s_cbranch_scc1 L_f_endb")
e("v_and_b32 v12, 7, v0")
e("v_lshlrev_b32 v12, 4, v12")
e("v_lshrrev_b32 v13, 3, v0")
e("v_mul_u32_u24 v13, 384, v13")
e("v_add_u32 v13, v13, v12")
e(f"s_mul_i32 {sT0}, {sU2}, 3072")
e(f"s_add_u32 {sU5}, {sT0}, {W_HMB}")
e(f"v_mov_b32 v10, {sTAG}")
lds_wait(F_KHALF, 4, 4, 11)
e(f"s_mov_b32 {sCNT}, 0")
e(f"s_mov_b32 s88, 0")
HG = 16
lab("L_hpoll")
e(f"s_cmp_ge_u32 s88, {NTRY}")
e(f"s_cselect_b32 {sT2}, s88, 0")
e(f"s_and_b32 {sT2}, {sT2}, 1")
e(f"s_mul_i32 {sT2}, {sT2}, {W_BOFF}")
e(f"s_add_u32 {sT0}, {sT2}, {sU5}")
for k in range(3):
    e(f"buffer_load_dwordx4 v[{HG+4*k}:{HG+4*k+3}], v13, {srd(SRD_WS)}, {sT0} offen offset:{128*k} sc1")
if not W2LATE:
    e("s_cmp_lg_u32 s88, 0")
    e("s_cbranch_scc1 L_h_w2done")
    e("v_mov_b32 v28, v13")
    w2_loads()
    e("v_mov_b32 v13, v28")
    e("s_waitcnt vmcnt(9)")
    e("s_branch L_h_chk")
    lab("L_h_w2done")
e("s_waitcnt vmcnt(0)")
lab("L_h_chk")
e(f"v_xor_b32 v11, v{HG+3}, v10")
e(f"v_xor_b32 v28, v{HG+7}, v10")
e("v_or_b32 v11, v11, v28")
e(f"v_xor_b32 v28, v{HG+11}, v10")
e("v_or_b32 v11, v11, v28")
e("v_cmp_lt_u32 vcc, 7, v11")
e("s_cmp_eq_u64 vcc, 0")
e("s_cbranch_scc1 L_hgot")
e("s_add_u32 s88, s88, 1")
e(f"s_cmp_lg_u32 s88, {NTRY}")
e("s_cbranch_scc1 L_h_nob")
f_pub_b()
lab("L_h_nob")
e(f"s_cmp_lt_u32 s88, {SPIN_LIMIT}")
e("s_cbranch_scc1 L_hpoll")
lab("L_hgot")
stamp(4)
e("s_waitcnt vmcnt(0)")
if W2LATE:
    e("v_and_b32 v12, 7, v0")
    e("v_lshlrev_b32 v12, 4, v12")
    e("v_lshrrev_b32 v13, 4, v0")
    e("v_lshl_add_u32 v14, v13, 2, v12")
    e(f"s_lshl_b32 {sT0}, {sU2}, 7")
    e(f"v_add_u32 v15, {sT0}, v14")
    e(f"buffer_load_dword v8, v15, {srd(SRD_C)}, 0 offen")
    lds_wait(F_VISS, 4, 4, 11)
    e(f"s_mul_i32 {sT0}, {sU2}, {64*896}")
    e(f"s_lshl_b32 {sT1}, {sU3}, 7")
    e(f"s_add_u32 {sT0}, {sT0}, {sT1}")
    for r in range(8):
        e(f"s_add_u32 {sT1}, {sT0}, {r*896}")
        e(f"buffer_load_dwordx4 v[{F2D+4*r}:{F2D+4*r+3}], v2, {srd(SRD_B)}, {sT1} offen nt")
    e("s_waitcnt vmcnt(8)")
hv = [HG+p for p in GPOS]
e("s_nop 1")
for i in range(8):
    e(f"v_add_f32_dpp v{hv[i]}, v{hv[i]}, v{hv[i]} row_ror:8 row_mask:0xf bank_mask:0xf")
e("s_nop 1")
for i in range(4): e(f"v_permlane32_swap_b32 v{hv[i]}, v{hv[i+4]}")
e("s_nop 1")
for i in range(4): e(f"v_add_f32 v{hv[i]}, v{hv[i]}, v{hv[i+4]}")
e("s_nop 1")
for i in range(2): e(f"v_permlane16_swap_b32 v{hv[i]}, v{hv[i+2]}")
e("s_nop 1")
for i in range(2): e(f"v_add_f32 v{hv[i]}, v{hv[i]}, v{hv[i+2]}")
X0, X1 = hv[0], hv[1]
e(f"v_cvt_pk_bf16_f32 v11, v{X0}, v{X1}")
e(f"v_lshlrev_b32 v{X0}, 16, v11")
e(f"v_and_b32 v{X1}, 0xffff0000, v11")
e("v_lshlrev_b32 v11, 16, v8")
e("v_and_b32 v12, 0xffff0000, v8")
e(f"v_add_f32 v{X0}, v{X0}, v11")
e(f"v_add_f32 v{X1}, v{X1}, v12")
e(f"v_cvt_pk_bf16_f32 v11, v{X0}, v{X1}")
e(f"v_lshlrev_b32 v{X0}, 16, v11")
e(f"v_and_b32 v{X1}, 0xffff0000, v11")
KB = -2.0*0.7978845608028654*1.4426950408889634
e(f"s_mov_b32 {sT2}, {f2h(0.044715)}")
e(f"s_mov_b32 {sT3}, {f2h(KB)}")
for x, t in ((X0, 60), (X1, 61)):
    e(f"v_mul_f32 v{t}, v{x}, v{x}")
    e(f"v_mul_f32 v{t}, v{t}, v{x}")
    e(f"v_fma_f32 v{t}, v{t}, {sT2}, v{x}")
    e(f"v_mul_f32 v{t}, {sT3}, v{t}")
    e(f"v_exp_f32 v{t}, v{t}")
    e("s_nop 0")
    e(f"v_add_f32 v{t}, 1.0, v{t}")
    e(f"v_rcp_f32 v{t}, v{t}")
    e("s_nop 0")
    e(f"v_mul_f32 v{x}, v{x}, v{t}")
e(f"v_cvt_pk_bf16_f32 v11, v{X0}, v{X1}")
e(f"ds_write_b32 v14, v11 offset:{L_HL}")
e("v_bfe_u32 v12, v0, 1, 1")
e("v_lshrrev_b32 v13, 4, v0")
e("v_lshl_add_u32 v12, v13, 1, v12")
e("v_lshlrev_b32 v12, 4, v12")
e(f"ds_read_b128 v[{FA_}:{FA_+3}], v12 offset:{L_HL}")
e("s_waitcnt vmcnt(0)")
transpose_set(F2D, FB)
e("s_waitcnt lgkmcnt(0)")
mfma_set(FDA, FA_, FB, True)
e("v_and_b32 v10, 7, v0")
e("v_lshlrev_b32 v10, 5, v10")
e("s_nop 3")
for rp in range(8):
    if rp == 7: e("s_nop 3")
    e(f"v_add_f32_dpp v{16+rp}, v{FDA+4*rp+2}, v{FDA+4*rp} row_shl:8 row_mask:0xf bank_mask:0xf")
e("s_mov_b64 exec, 0xff")
e(f"buffer_store_dwordx4 v[16:19], v10, {srd(SRD_WS)}, {sU4} offen sc1")
e(f"buffer_store_dwordx4 v[20:23], v10, {srd(SRD_WS)}, {sU4} offen offset:16 sc1")
e("s_mov_b64 exec, -1")
stamp(5)
lab("L_f_endb")
f_pub_b()
lab("L_f_end")
ROLE[0]="F"
stamps_out(6, "s88")
e("s_endpgm")

if not WINL:
    lab("L_winit")
    e("v_lshlrev_b32 v2, 2, v0")
    e("v_mov_b32 v3, 0")
    e("ds_write_b32 v2, v3")
    e("s_waitcnt lgkmcnt(0)")
    e("s_barrier")
    kernarg_loads()
    stamp(0)
    zero_stamps()
    e(f"s_and_b32 {sH}, s2, 7")
    e(f"s_lshr_b32 {sJ}, s2, 3")
    e(f"s_mov_b32 {sSELLO}, 0x05040100")
    e(f"s_mov_b32 {sSELHI}, 0x07060302")
lab("L_roleW")
e("s_setprio 2")
WI = 16; WB = 80
e("v_mov_b32 v4, 0")
e("v_mov_b32 v5, 1")
e("v_lshlrev_b32 v6, 4, v0")
e(f"s_and_b32 {sU0}, {sJ}, 3")
e(f"s_lshr_b32 {sU1}, {sJ}, 2")
e(f"s_lshl_b32 {sT0}, {sH}, 2")
e(f"s_add_u32 {sT0}, {sT0}, {sU0}")
e(f"s_mul_i32 {sU3}, {sT0}, {128*896}")
e(f"s_lshl_b32 {sT1}, {sU1}, 7")
e(f"s_add_u32 {sU3}, {sU3}, {sT1}")
kv_off()
e(f"s_mov_b32 {sU4}, {sT0}")
e("s_waitcnt lgkmcnt(0)")
mk_srd(SRD_WS, pWS, WS_SIZE)
lds_wait(F_QLD, 1, 4, 11, sleep=0)
if TLBPF:
    e(f"s_add_u32 s86, s{pV}, {sU4}")
    e(f"s_addc_u32 s87, s{pV+1}, 0")
    e("v_mov_b32 v12, s86")
    e("v_mov_b32 v13, s87")
    e(f"s_min_u32 {sT0}, {sU3}, {4096*896-131072}")
    e(f"s_add_u32 s86, s{pWO}, {sT0}")
    e(f"s_addc_u32 s87, s{pWO+1}, 0")
    e("v_writelane_b32 v12, s86, 1")
    e("v_writelane_b32 v13, s87, 1")
    e(f"s_add_u32 s86, s86, {127*896}")
    e("s_addc_u32 s87, s87, 0")
    e("v_writelane_b32 v12, s86, 2")
    e("v_writelane_b32 v13, s87, 2")
    e(f"v_writelane_b32 v12, s{pOUT}, 3")
    e(f"v_writelane_b32 v13, s{pOUT+1}, 3")
    e(f"s_add_u32 s86, s{pK}, {sU4}")
    e(f"s_addc_u32 s87, s{pK+1}, 0")
    e("v_writelane_b32 v12, s86, 4")
    e("v_writelane_b32 v13, s87, 4")
    e(f"v_writelane_b32 v12, s{pW2}, 5")
    e(f"v_writelane_b32 v13, s{pW2+1}, 5")
    e("s_mov_b64 exec, 0x3f")
    e("global_load_dword v14, v[12:13], off nt")
    e("s_mov_b64 exec, -1")
if CODEPF and not EARLYPF:
    e("s_getpc_b64 s[86:87]")
    lab("L_pc_here")
    e(f"s_sub_u32 s86, s86, L_pc_here-{NAME}_kernel")
    e("s_subb_u32 s87, s87, 0")
    e(f"s_cmp_ge_u32 {sJ}, {CODE_CHUNKS}")
    e(f"s_cselect_b32 {sT0}, {CODE_CHUNKS}, 0")
    e(f"s_sub_u32 {sT0}, {sJ}, {sT0}")
    e(f"s_cmp_ge_u32 {sT0}, {CODE_CHUNKS}")
    e(f"s_cselect_b32 {sT0}, 0, {sT0}")
    e(f"s_lshl_b32 {sT0}, {sT0}, 10")
    e(f"v_add_u32 v15, {sT0}, v6")
    e("global_load_dwordx4 v[16:19], v15, s[86:87]")
for k in range(4): e(f"v_mov_b32 v{8+k}, -1")
e(f"s_lshl_b32 {sT0}, {sH}, 5")
e(f"s_add_u32 {sT0}, {sT0}, {sJ}")
e(f"s_lshl_b32 {sT0}, {sT0}, 11")
e(f"s_add_u32 {sT0}, {sT0}, {W_OP}")
CP = {"sc1": " sc1", "plain": "", "none": None}[CLR]
if CP is not None:
    e(f"buffer_store_dwordx4 v[8:11], v6, {srd(SRD_WS)}, {sT0} offen{CP}")
    e(f"buffer_store_dwordx4 v[8:11], v6, {srd(SRD_WS)}, {sT0} offen offset:1024{CP}")
e("v_lshlrev_b32 v7, 8, v0")
e(f"s_lshl_b32 {sT0}, {sH}, 9")
e(f"s_lshl_b32 {sT1}, {sJ}, 3")
e(f"s_add_u32 {sT0}, {sT0}, {sT1}")
e(f"s_add_u32 {sT0}, {sT0}, {W_ML}")
e("s_mov_b64 exec, 3")
if CP is not None: e(f"buffer_store_dwordx2 v[8:9], v7, {srd(SRD_WS)}, {sT0} offen{CP}")
e("s_mov_b64 exec, -1")
e(f"s_lshl_b32 {sT0}, {sH}, 2")
e(f"s_add_u32 {sT0}, {sT0}, {sU0}")
e(f"s_lshl_b32 {sT0}, {sT0}, 11")
e(f"s_lshl_b32 {sT1}, {sU1}, 8")
e(f"s_add_u32 {sT0}, {sT0}, {sT1}")
e(f"s_add_u32 {sU2}, {sT0}, {W_AP}")
e(f"s_cmp_ge_u32 {sJ}, 28")
e("s_cbranch_scc1 L_w_noap")
e("s_mov_b64 exec, 0xffff")
if CLR != "none": e(f"buffer_store_dwordx4 v[8:11], v6, {srd(SRD_WS)}, {sU2} offen sc1")
e("s_mov_b64 exec, -1")
lab("L_w_noap")
e(f"s_load_dword {sTAG}, s[{pWS}:{pWS+1}], 0")
e("s_waitcnt vmcnt(0) lgkmcnt(0)")
mk_tag()
e(f"v_mov_b32 v7, {sTAG}")
lds_wait(F_CLR, 1, 4, 11)
e(f"s_lshl_b32 {sT0}, {sH}, 5")
e(f"s_add_u32 {sT0}, {sT0}, {sJ}")
e(f"s_lshl_b32 {sT0}, {sT0}, 2")
e(f"s_add_u32 {sT0}, {sT0}, {W_READY}")
e("s_mov_b64 exec, 1")
e(f"buffer_store_dword v7, v4, {srd(SRD_WS)}, {sT0} offen sc1")
e("s_mov_b64 exec, -1")
stamp(1)
e(f"s_cmp_ge_u32 {sJ}, 28")
e("s_cbranch_scc1 L_final")
mk_srd(SRD_A, pWO, 4096*896)
e("v_lshrrev_b32 v2, 3, v0")
e("v_mul_u32_u24 v2, 7168, v2")
e("v_and_b32 v3, 7, v0")
e("v_lshl_add_u32 v2, v3, 4, v2")
e("v_bfe_u32 v10, v0, 1, 1")
e("v_lshrrev_b32 v11, 4, v0")
e("v_lshl_add_u32 v10, v11, 1, v10")
e("v_lshlrev_b32 v10, 4, v10")
e("v_lshlrev_b32 v9, 5, v3")
if PRESO:
    for s in range(2):
        for r in range(8):
            e(f"s_add_u32 s{16+8*s+r}, {sU3}, {(64*s+r)*896}")
    lds_wait(F_VISS, 4, 4, 11)
    stamp(2)
    if SHARE and WWIN == KWIN:
        e("s_waitcnt vmcnt(0)")
        e("s_branch L_issue16")
    else:
        for i in range(16):
            q = WI+4*i
            if i >= WWIN: e(f"s_waitcnt vmcnt({WWIN-1})")
            e(f"buffer_load_dwordx4 v[{q}:{q+3}], v2, {srd(SRD_A)}, s{16+i} offen nt")
    if SHARE: lab("L_w_issued")
else:
    lds_wait(F_VISS, 4, 4, 11)
    stamp(2)
    for s in range(2):
        for r in range(8):
            q = WI+32*s+4*r
            e(f"s_add_u32 {sT1}, {sU3}, {(64*s+r)*896}")
            e(f"buffer_load_dwordx4 v[{q}:{q+3}], v2, {srd(SRD_A)}, {sT1} offen nt")
e("s_waitcnt vmcnt(8)")
transpose_set(WI, WB)
e("s_waitcnt vmcnt(0)")
transpose_set(WI+32, WB+32)
stamp(3)
lds_wait(F_ORDY, 4, 4, 11, sleep=0)
stamp(4)
e(f"ds_read_b128 v[16:19], v10 offset:{L_OL}")
e(f"ds_read_b128 v[20:23], v10 offset:{L_OL+128}")
e("s_waitcnt lgkmcnt(0)")
WDA = 32
mfma_set(WDA, 16, WB, True)
mfma_set(WDA, 20, WB+32, False)
e("s_nop 3")
for rp in range(8):
    if rp == 7: e("s_nop 3")
    e(f"v_add_f32_dpp v{64+rp}, v{WDA+4*rp+2}, v{WDA+4*rp} row_shl:8 row_mask:0xf bank_mask:0xf")
e("s_mov_b64 exec, 0xff")
e(f"buffer_store_dwordx4 v[64:67], v9, {srd(SRD_WS)}, {sU2} offen {FST}")
e(f"buffer_store_dwordx4 v[68:71], v9, {srd(SRD_WS)}, {sU2} offen offset:16 {FST}")
e("s_mov_b64 exec, -1")
stamp(5)
ROLE[0]="W"
stamps_out(6)
e("s_endpgm")

lab("L_final")
e(f"s_sub_u32 {sT0}, {sJ}, 28")
e(f"s_lshl_b32 {sT0}, {sT0}, 3")
e(f"s_add_u32 {sU0}, {sT0}, {sH}")
e(f"s_cmp_ge_u32 {sU0}, 28")
e("s_cbranch_scc1 L_end")
mk_srd(SRD_A, pX, 896)
mk_srd(SRD_B, pB2, 896)
mk_srd(SRD_C, pOUT, 896)
e("v_and_b32 v2, 3, v0")
e("v_lshlrev_b32 v2, 2, v2")
e("v_bfe_u32 v3, v0, 5, 1")
e("v_lshl_add_u32 v2, v3, 1, v2")
e("v_bfe_u32 v3, v0, 4, 1")
e("v_add_u32 v2, v2, v3")
e(f"s_lshl_b32 {sT0}, {sU0}, 4")
e(f"v_add_u32 v2, {sT0}, v2")
e("v_lshlrev_b32 v2, 1, v2")
e(f"buffer_load_ushort v12, v2, {srd(SRD_A)}, 0 offen")
e(f"buffer_load_ushort v13, v2, {srd(SRD_B)}, 0 offen")
e(f"s_mov_b32 {sT1}, {W_READY}")
lds_wait(F_KISS, 4, 4, 11)
e(f"s_mov_b32 {sCNT}, 0")
lab("L_rdy")
e(f"buffer_load_dwordx4 v[8:11], v6, {srd(SRD_WS)}, {sT1} offen sc1")
e("s_waitcnt vmcnt(0)")
for k in range(4): e(f"v_xor_b32 v{8+k}, v{8+k}, v7")
e("v_or_b32 v8, v8, v9")
e("v_or_b32 v10, v10, v11")
e("v_or_b32 v8, v8, v10")
e("v_cmp_lt_u32 vcc, 7, v8")
e("s_cmp_eq_u64 vcc, 0")
e("s_cbranch_scc1 L_rdy_ok")
e("s_sleep 8")
e(f"s_add_u32 {sCNT}, {sCNT}, 1")
e(f"s_cmp_lt_u32 {sCNT}, {SPIN_LIMIT}")
e("s_cbranch_scc1 L_rdy")
lab("L_rdy_ok")
stamp(2)
e(f"s_cmp_lg_u32 {sU0}, 0")
e("s_cbranch_scc1 L_noep")
e("s_mov_b64 exec, 1")
e(f"buffer_store_dword v7, v4, {srd(SRD_WS)}, 0 offen sc1")
e("s_mov_b64 exec, -1")
lab("L_noep")
e("v_lshrrev_b32 v3, 2, v0")
e("v_lshlrev_b32 v3, 11, v3")
e("v_and_b32 v7, 3, v0")
e("v_lshl_add_u32 v3, v7, 4, v3")
e(f"s_lshl_b32 {sU1}, {sU0}, 6")
e(f"s_add_u32 {sU1}, {sU1}, {W_AP}")
e("v_lshlrev_b32 v13, 16, v13")
e("v_lshlrev_b32 v12, 16, v12")
e("v_lshrrev_b32 v14, 2, v0")
e("v_min_u32 v14, 11, v14")
e("v_lshlrev_b32 v14, 11, v14")
e("v_lshl_add_u32 v14, v7, 4, v14")
e("v_cmp_gt_u32 vcc, 48, v0")
e("s_nop 1")
e("v_cndmask_b32 v15, 0, 1.0, vcc")
lds_wait(F_VISS, 4, 4, 11)
lds_wait(F_SDONE, 4, 4, 11)
stamp(3)
e(f"s_mov_b32 {sCNT}, 0")
lab("L_bpoll")
e(f"s_add_u32 {sT1}, {sU1}, {16*2048*2}")
e(f"buffer_load_dwordx4 v[24:27], v3, {srd(SRD_WS)}, {sT1} offen sc1")
e(f"s_add_u32 {sT1}, {sU1}, {16*2048*3}")
e(f"buffer_load_dwordx4 v[28:31], v14, {srd(SRD_WS)}, {sT1} offen sc1")
e("s_waitcnt vmcnt(0)")
for d in range(4):
    e(f"v_fma_f32 v{104+d}, v{28+d}, v15, v{24+d}")
nan_or_sentinel_check([104, 105, 106, 107], list(range(24, 32)), "L_bgot", "L_bpoll", sCNT, 16, 17)
lab("L_bgot")
def red4(lo):
    for r in (4, 8):
        e("s_nop 1")
        for d in range(4):
            e(f"v_add_f32_dpp v{lo+d}, v{lo+d}, v{lo+d} row_ror:{r} row_mask:0xf bank_mask:0xf")
    e("s_nop 1")
    e(f"v_permlane32_swap_b32 v{lo}, v{lo+2}")
    e(f"v_permlane32_swap_b32 v{lo+1}, v{lo+3}")
    e("s_nop 1")
    e(f"v_add_f32 v{lo}, v{lo}, v{lo+2}")
    e(f"v_add_f32 v{lo+1}, v{lo+1}, v{lo+3}")
    e("s_nop 1")
    e(f"v_permlane16_swap_b32 v{lo}, v{lo+1}")
    e("s_nop 1")
    e(f"v_add_f32 v{lo}, v{lo}, v{lo+1}")
red4(104)
bf16r(104, 104)
e("v_add_f32 v104, v104, v13")
bf16r(104, 104)
stamp(4)
e(f"s_add_u32 {sU2}, {sU1}, {16*2048}")
e(f"s_mov_b32 {sCNT}, 0")
NB = FNB
def issue(b):
    e(f"buffer_load_dwordx4 v[{32+8*b}:{35+8*b}], v3, {srd(SRD_WS)}, {sU1} offen {FLD}")
    e(f"buffer_load_dwordx4 v[{36+8*b}:{39+8*b}], v3, {srd(SRD_WS)}, {sU2} offen {FLD}")
for b in range(NB):
    issue(b)
    if b < NB-1: e(f"s_sleep {FSL}")
lab("L_fpoll")
for b in range(NB):
    e(f"s_waitcnt vmcnt({2*(NB-1)})")
    for d in range(4):
        e(f"v_add_f32 v{100+d}, v{32+8*b+d}, v{36+8*b+d}")
    e("v_add_f32 v16, v100, v101")
    e("v_add_f32 v17, v102, v103")
    e("v_add_f32 v16, v16, v17")
    e("v_cmp_u_f32 vcc, v16, v16")
    e("s_cmp_eq_u64 vcc, 0")
    e("s_cbranch_scc1 L_fgot")
    e(f"v_max3_u32 v16, v{32+8*b}, v{33+8*b}, v{34+8*b}")
    e(f"v_max3_u32 v16, v16, v{35+8*b}, v{36+8*b}")
    e(f"v_max3_u32 v16, v16, v{37+8*b}, v{38+8*b}")
    e(f"v_max_u32 v16, v16, v{39+8*b}")
    e("v_cmp_eq_u32 vcc, -1, v16")
    e("s_cmp_eq_u64 vcc, 0")
    e("s_cbranch_scc1 L_fgot")
    issue(b)
e(f"s_add_u32 {sCNT}, {sCNT}, 1")
e(f"s_cmp_lt_u32 {sCNT}, {SPIN_LIMIT}")
e("s_cbranch_scc1 L_fpoll")
lab("L_fgot")
stamp(5)
red4(100)
bf16r(100, 100)
e("v_add_f32 v100, v100, v12")
bf16r(100, 100)
e("v_add_f32 v100, v100, v104")
e("v_cvt_pk_bf16_f32 v100, v100, v100")
if HOPS:
    e("s_branch L_hop0")
    for i in range(HOPS):
        e(".p2align 8")
        lab(f"L_hop{i}")
        e(f"s_branch L_hop{i+1}")
    e(".p2align 8")
    lab(f"L_hop{HOPS}")
e("s_mov_b32 exec_lo, 0x000f000f")
e("s_mov_b32 exec_hi, 0x000f000f")
e(f"buffer_store_short v100, v2, {srd(SRD_C)}, 0 offen")
e("s_mov_b64 exec, -1")
stamp(6)
ROLE[0]="Fin"
stamps_out(7, sCNT)
lab("L_end")
e("s_endpgm")
lab("L_code_end")

e(f""".section .rodata,"a"
.p2align 6
.amdhsa_kernel {NAME}_kernel
  .amdhsa_next_free_vgpr 160
  .amdhsa_next_free_sgpr 96
  .amdhsa_accum_offset 160
  .amdhsa_group_segment_fixed_size 0
  .amdhsa_kernarg_size 104
  .amdhsa_user_sgpr_count 2
  .amdhsa_user_sgpr_kernarg_segment_ptr 1
  .amdhsa_system_sgpr_workgroup_id_x 1
  .amdhsa_float_denorm_mode_32 3
.end_amdhsa_kernel""")

txt = "\n".join(x for x in out if x is not None) + "\n"
path = sys.argv[1] if len(sys.argv) > 1 else "cdna_kernels/" + NAME + ".s"
open(path, "w").write(txt)
print("wrote", path, len(txt), "bytes")
```
